```python
import torch

def _softmax(x, axis=-1):
    return torch.softmax(x, dim=axis)

def _gelu(x):
    return torch.nn.functional.gelu(x, approximate='tanh')

def _silu(x):
    return torch.nn.functional.silu(x)

def _sigmoid(x):
    return torch.sigmoid(x)

def _layernorm(x, axis=-1, eps=1e-05):
    m = x.mean(dim=axis, keepdim=True)
    v = x.var(dim=axis, keepdim=True, unbiased=False)
    return (x - m) / torch.sqrt(v + eps)

def _scatter_add(tgt, idx, src, axis=0):
    return tgt.clone().index_add_(axis, idx, src)

def _segment_sum(src, seg, n):
    out = torch.zeros((n,) + src.shape[1:], dtype=src.dtype)
    return out.index_add_(0, seg, src)

def _pad(x, pw):
    flat = tuple((v for pair in reversed(pw) for v in pair))
    return torch.nn.functional.pad(x, flat)
kernel_name = 'standalone__autoregressive_conv_wavernn__speech'

def setup_inputs():

    _w = lambda a: (lambda t: t.to(torch.bfloat16) if t.is_floating_point() else t)(torch.as_tensor(a))
    B, T, D, K = (2, 16000, 256, 15)
    return {'x': _w((lambda *s: torch.randn(*s, dtype=torch.bfloat16) * 0.1)(B, T, D)), 'w': _w((lambda *s: torch.randn(*s, dtype=torch.bfloat16) * 0.1)(K, D, 2 * D))}

def reference(x, w):
    B, T, D = x.shape
    K = w.shape[0]
    dil = 2
    pad = (K - 1) * dil
    xp = _pad(x, ((0, 0), (pad, 0), (0, 0)))
    h = torch.einsum('btd,de->bte', xp[:, 0:T, :], w[0])
    for i in range(1, K):
        h = h + torch.einsum('btd,de->bte', xp[:, i * dil:i * dil + T, :], w[i])
    f, g = (h[..., :D].clone(), h[..., D:].clone())
    return torch.tanh(f) * _sigmoid(g)
```

```python
import sys
def gen(mode, amp):
    L = []
    A = L.append
    A("; @launch grid=(32000,1,1) block=(256,1,1) lds=0")
    A('.amdgcn_target "amdgcn-amd-amdhsa--gfx950"')
    A(".text")
    N = "standalone__autoregressive_conv_wavernn__speech_kernel"
    A(f".globl {N}\n.p2align 8\n.type {N},@function\n{N}:")
    A("s_cmp_ge_u32 s2, 32000\ns_cbranch_scc1 L_end")
    A("s_load_dwordx4 s[4:7], s[0:1], 0\ns_load_dwordx2 s[8:9], s[0:1], 16\ns_waitcnt lgkmcnt(0)")
    A("s_cmp_ge_u32 s2, 16000\ns_cselect_b32 s10, 1, 0")
    A("s_mul_i32 s11, s10, 16000\ns_sub_u32 s11, s2, s11")
    A("s_mul_i32 s12, s10, 8192000")
    A("s_add_u32 s16, s4, s12\ns_addc_u32 s17, s5, 0\ns_mov_b32 s18, 8192000\ns_mov_b32 s19, 0x20000")
    A("s_mov_b32 s20, s6\ns_mov_b32 s21, s7\ns_mov_b32 s22, 3932160\ns_mov_b32 s23, 0x20000")
    A("s_mov_b32 s24, s8\ns_mov_b32 s25, s9\ns_mov_b32 s26, 16384000\ns_mov_b32 s27, 0x20000")
    A("v_lshlrev_b32 v1, 1, v0")
    A("v_mov_b32 v2, 0\nv_mov_b32 v3, 0")
    A("s_mov_b32 s13, 0")
    A("L_tap:")
    A("s_lshl_b32 s14, s13, 1\ns_add_u32 s14, s14, s11\ns_sub_u32 s14, s14, 28")
    A("s_cmp_lt_i32 s14, 0\ns_cbranch_scc1 L_next")
    A("s_lshl_b32 s14, s14, 9")
    A("s_lshl_b32 s15, s13, 18")
    A("s_mov_b32 s28, 0")
    A("L_d:")
    A("s_buffer_load_dwordx2 s[32:33], s[16:19], s14")
    for j in range(4):
        A(f"buffer_load_ushort v{10+2*j}, v1, s[20:23], s15 offen offset:{j*1024}")
        A(f"buffer_load_ushort v{11+2*j}, v1, s[20:23], s15 offen offset:{j*1024+512}")
    A("s_waitcnt vmcnt(0) lgkmcnt(0)")
    A("s_lshl_b32 s34, s32, 16\ns_and_b32 s35, s32, 0xffff0000\ns_lshl_b32 s36, s33, 16\ns_and_b32 s37, s33, 0xffff0000")
    for j in range(4):
        A(f"v_lshlrev_b32 v{10+2*j}, 16, v{10+2*j}\nv_lshlrev_b32 v{11+2*j}, 16, v{11+2*j}")
        A(f"v_fmac_f32 v2, s{34+j}, v{10+2*j}\nv_fmac_f32 v3, s{34+j}, v{11+2*j}")
    A("s_add_u32 s14, s14, 8\ns_add_u32 s15, s15, 4096\ns_add_u32 s28, s28, 1\ns_cmp_lt_u32 s28, 64\ns_cbranch_scc1 L_d")
    A("L_next:")
    A("s_add_u32 s13, s13, 1\ns_cmp_lt_u32 s13, 15\ns_cbranch_scc1 L_tap")
    A("v_mul_f32 v4, 0x4038aa3b, v2")
    A("v_exp_f32 v4, v4\ns_nop 0\nv_add_f32 v4, 1.0, v4\nv_rcp_f32 v4, v4\ns_nop 0\nv_fma_f32 v4, v4, -2.0, 1.0")
    A("v_mul_f32 v5, 0xbfb8aa3b, v3")
    A("v_exp_f32 v5, v5\ns_nop 0\nv_add_f32 v5, 1.0, v5\nv_rcp_f32 v5, v5\ns_nop 0\nv_mul_f32 v4, v4, v5")
    import struct
    fb = lambda f: hex(struct.unpack('<I', struct.pack('<f', f))[0])
    if mode == 'one':
        A("s_cmp_eq_u32 s2, 5000\ns_cbranch_scc0 L_np")
        A(f"v_cmp_eq_u32 vcc, 7, v0\nv_mov_b32 v6, {fb(amp)}\ns_nop 1\nv_cndmask_b32 v6, 0, v6, vcc\nv_add_f32 v4, v4, v6")
        A("L_np:")
    elif mode == 'all':
        A(f"v_and_b32 v6, 1, v0\nv_lshlrev_b32 v6, 31, v6\nv_xor_b32 v6, {fb(amp)}, v6\nv_add_f32 v4, v4, v6")
    elif mode == 'frac':
        A(f"v_cmp_eq_u32 vcc, 7, v0\nv_mov_b32 v6, {fb(amp)}\ns_nop 1\nv_cndmask_b32 v6, 0, v6, vcc\nv_add_f32 v4, v4, v6")
    A("v_cvt_pk_bf16_f32 v4, v4, v4")
    A("s_lshl_b32 s14, s2, 9")
    A("buffer_store_short v4, v1, s[24:27], s14 offen")
    A("L_end:\ns_endpgm")
    A(f""".section .rodata,"a"
.p2align 6
.amdhsa_kernel {N}
  .amdhsa_next_free_vgpr 32
  .amdhsa_next_free_sgpr 48
  .amdhsa_accum_offset 32
  .amdhsa_group_segment_fixed_size 0
  .amdhsa_kernarg_size 40
  .amdhsa_user_sgpr_count 2
  .amdhsa_user_sgpr_kernarg_segment_ptr 1
  .amdhsa_system_sgpr_workgroup_id_x 1
.end_amdhsa_kernel""")
    return "\n".join(L) + "\n"
if __name__ == '__main__':
    open(sys.argv[1], 'w').write(gen(sys.argv[2], float(sys.argv[3])))
```

```python
import sys, struct, argparse
KN = "standalone__autoregressive_conv_wavernn__speech_kernel"
PN = "wprep_kernel"
fb = lambda f: struct.unpack('<I', struct.pack('<f', f))[0]

S1, S2, ARR, BUF = 2304, 4624, 36992, 73984
LDS_BYTES = 2 * BUF
STREAM = 560 * 1024

STAGES = [(('22', 0), ('22', 1)),
          (('23', 0), ('21', 0)), (('23', 1), ('21', 1)),
          (('12', 0), ('32', 0)), (('12', 1), ('32', 1)),
          (('13', 0), ('33', 0)), (('13', 1), ('33', 1)),
          (('11', 0), ('31', 0)), (('11', 1), ('31', 1))]
SET = {'22': 0, '23': 1, '21': 0, '12': 2, '32': 3, '13': 0, '33': 1, '11': 2, '31': 3}
FORK = {'22': None, '23': 0, '12': 0, '32': 0, '13': 1}
QOF = {0: 1, 1: 3, 2: 0, 3: 2}
PTYPE = ['A', 'B', 'B', 'C', 'C', 'D', 'D', 'E', 'E']
def taps(pt): return [1, 2, 3] if pt == '11' else [0, 1, 2, 3]

GROUPS = []
_off = 0
for s, st in enumerate(STAGES):
    for a, (pt, dh) in enumerate(st):
        for kp in range(4):
            GROUPS.append((s, a, pt, dh, kp, _off)); _off += 2 * len(taps(pt))
assert _off == 560
GOFF = {(pt, dh, kp): off for (s, a, pt, dh, kp, off) in GROUPS}

def V(n, c=1): return [('v', n + i) for i in range(c)]
def A(n, c=1): return [('a', n + i) for i in range(c)]
def vr(n, c): return f"v[{n}:{n+c-1}]"
def ar(n, c): return f"a[{n}:{n+c-1}]"
class I:
    __slots__ = ('t', 'k', 'rd', 'wr', 'c', 'need', 'tag', 'pos', 'dl', 'seq', 'creads')
    def __init__(s, t, k, rd=(), wr=(), need=None, tag=None, creads=()):
        s.t = t; s.k = k; s.rd = list(rd); s.wr = list(wr); s.need = need or []; s.tag = tag
        s.c = 2 if k == 'trans' else 1; s.pos = None; s.dl = None; s.creads = list(creads)

WA = 1; RB = 10; WL = 12; XA = 13; XBASE = 15; SB = 0
WR = 16; XF = 112; RAW = 156; NRAW = 12; PERS = 204; TMP = 212; OUT = 220; EPI = 236; ACT = 252
SX, SW, SO = 8, 12, 16
SWO = 20; SC1, SC2, SCL, SMASK = 21, 22, 23, 24
SST = 40

class Gen:
    def __init__(g, opt):
        g.o = opt; g.out = []
    def mfmas(g):
        M = []; g.idx = {}
        for G, (s, a, pt, dh, kp, off) in enumerate(GROUPS):
            tp = taps(pt); st = SET[pt]
            first = (kp == 0 and dh == 0 and pt in FORK)
            for j in range(8):
                g.idx[(G, j)] = len(M)
                for h in range(2):
                    for ki, k in enumerate(tp):
                        acc = st * 64 + (j * 2 + h) * 4
                        w = WR + ((G % 3) * 8 + h * len(tp) + ki) * 4
                        x = XF + (j + k) * 4
                        if first and ki == 0:
                            if FORK[pt] is None: cs, cr = '0', []
                            else:
                                c = FORK[pt] * 64 + (j * 2 + h) * 4; cs, cr = ar(c, 4), A(c, 4)
                        else: cs, cr = ar(acc, 4), A(acc, 4)
                        M.append(I(f"v_mfma_f32_16x16x32_bf16 {ar(acc,4)}, {vr(w,4)}, {vr(x,4)}, {cs}", 'mfma',
                                   rd=V(w, 4) + V(x, 4) + cr, wr=A(acc, 4), creads=cr,
                                   need=[(('v', w), ('W', G, h, k)), (('v', x), ('X', G, j + k))]))
        g.idx[(len(GROUPS), 0)] = len(M)
        return M
    def P(g, s, gr, j=0): return g.idx[(s * 8 + gr, j)]
    def wloads(g, G):
        s, a, pt, dh, kp, off = GROUPS[G]; tp = taps(pt); L = []
        for h in range(2):
            for ki, k in enumerate(tp):
                f = off + h * len(tp) + ki
                if f % 4 == 0 and f: L.append(I(f"s_add_u32 s{SWO}, s{SWO}, 4096", 'salu'))
                w = WR + ((G % 3) * 8 + h * len(tp) + ki) * 4
                L.append(I(f"buffer_load_dwordx4 {vr(w,4)}, v{WL}, s[{SW}:{SW+3}], s{SWO} offen offset:{(f%4)*1024}{g.o.wflags}", 'vload',
                           rd=V(WL), wr=V(w, 4), tag=(('v', w), ('W', G, h, k))))
        return L
    def xread(g, G, c):
        s, a, pt, dh, kp, off = GROUPS[G]
        x = XF + c * 4; imm = 2 * kp * S2 + (c % 8) * 288 + (c // 8) * 32
        return I(f"ds_read_b128 {vr(x,4)}, v{RB+a} offset:{imm}", 'dsr', rd=V(RB + a), wr=V(x, 4), tag=(('v', x), ('X', G, c)),
                 need=[(('v', RB + a), ('RB', s))])
    def spread(g, L, p0, p1, dl=None):
        tot = sum(i.c for i in L); acc = 0
        for i in L:
            i.pos = p0 + (p1 - p0) * acc / max(tot, 1); acc += i.c
            i.dl = dl
        return L
    def production(g):
        rows = []
        progs = []
        def newrow(s, ai, imm):
            rows.append((s, ai, imm + STAGES[s][0][1] * 256)); return len(rows) - 1
        rr = lambda n: RAW + (n % NRAW) * 4
        tctr = [0]
        def tmp():
            t = TMP + tctr[0] % 8; tctr[0] += 1; return t
        octr = [0]
        def lo(dst, n, i): return I(f"v_lshlrev_b32 v{dst}, 16, v{rr(n)+i}", 'valu', rd=V(rr(n)+i), wr=V(dst), need=[(('v', rr(n)), ('R', n))], tag=('use', n))
        def hi(dst, n, i): return I(f"v_and_b32 v{dst}, s{SMASK}, v{rr(n)+i}", 'valu', rd=V(rr(n)+i), wr=V(dst), need=[(('v', rr(n)), ('R', n))], tag=('use', n))
        def sub(d, a, b): return I(f"v_sub_f32 v{d}, v{a}, v{b}", 'valu', rd=V(a) + V(b), wr=V(d))
        def cvt(d, a, b): return I(f"v_cvt_pk_bf16_f32 v{d}, v{a}, v{b}", 'valu', rd=V(a) + V(b), wr=V(d))
        def wr(s, i, arr, src): return I(f"ds_write_b128 v{WA+i}, {vr(src,4)} offset:{arr*ARR}", 'dsw', rd=V(WA + i) + V(src, 4), need=[(('v', WA + i), ('WA', s))])
        for s in range(1, 9):
            ty = PTYPE[s]; L = []
            for i in range(9):
                op = 'v_add_u32' if s % 2 else 'v_subrev_u32'
                L.append(I(f"{op} v{WA+i}, {BUF}, v{WA+i}", 'valu', rd=V(WA + i), wr=V(WA + i), tag=(('v', WA + i), ('WA', s))))
            if ty == 'C':
                n1 = newrow(s, 0, 2048)
                for d in range(4): L += [lo(PERS + 2*d, n1, d), hi(PERS + 2*d + 1, n1, d)]
            elif ty in 'DE':
                if ty == 'D': nb, na = newrow(s, 0, 2048), newrow(s, 0, 3072)
                else: na, nb = newrow(s, 0, 1024), newrow(s, 0, 2048)
                for d in range(4):
                    t0, t1 = tmp(), tmp()
                    L += [lo(PERS + 2*d, na, d), hi(PERS + 2*d + 1, na, d), lo(t0, nb, d), hi(t1, nb, d),
                          sub(PERS + 2*d, PERS + 2*d, t0), sub(PERS + 2*d + 1, PERS + 2*d + 1, t1)]
            for i in range(9):
                o0 = OUT + (octr[0] % 2) * 8; o1 = o0 + 4; octr[0] += 1
                if ty == 'B':
                    n2, n3, n4 = newrow(s, i, 3072), newrow(s, i + 1, 0), newrow(s, i + 1, 1024)
                    for d in range(4):
                        a, b, c, e, f, h = [tmp() for _ in range(6)]
                        L += [lo(a, n3, d), hi(b, n3, d), lo(c, n4, d), hi(e, n4, d), lo(f, n2, d), hi(h, n2, d),
                              sub(c, c, a), sub(e, e, b), sub(f, f, a), sub(h, h, b), cvt(o0 + d, c, e), cvt(o1 + d, f, h)]
                elif ty == 'C':
                    n3, n5 = newrow(s, i + 1, 0), newrow(s, i + 1, 2048)
                    for d in range(4):
                        a, b, c, e = [tmp() for _ in range(4)]
                        p0, p1 = PERS + 2*d, PERS + 2*d + 1
                        L += [lo(a, n3, d), hi(b, n3, d), sub(c, p0, a), sub(e, p1, b), lo(p0, n5, d), hi(p1, n5, d), cvt(o0 + d, c, e),
                              sub(a, p0, a), sub(b, p1, b), cvt(o1 + d, a, b)]
                else:
                    if ty == 'D':
                        n3, n4, n5, n6 = [newrow(s, i + 1, 1024 * q) for q in range(4)]
                        mp, mm, np_, nm = n4, n3, n6, n5
                    else:
                        n2 = newrow(s, i, 3072); n3, n4, n5 = [newrow(s, i + 1, 1024 * q) for q in range(3)]
                        mp, mm, np_, nm = n2, n3, n4, n5
                    for d in range(4):
                        a, b, c, e = [tmp() for _ in range(4)]
                        p0, p1 = PERS + 2*d, PERS + 2*d + 1
                        L += [lo(a, mp, d), hi(b, mp, d), lo(c, mm, d), hi(e, mm, d), sub(a, a, c), sub(b, b, e),
                              sub(c, p0, a), sub(e, p1, b), lo(p0, np_, d), hi(p1, np_, d), cvt(o0 + d, c, e),
                              lo(c, nm, d), hi(e, nm, d), sub(p0, p0, c), sub(p1, p1, e), sub(a, p0, a), sub(b, p1, b), cvt(o1 + d, a, b)]
                L += [wr(s, i, 0, o0), wr(s, i, 1, o1)]
            progs.append(L)
        last = {}
        for ps, L in enumerate(progs):
            for k, op in enumerate(L):
                if op.tag and op.tag[0] == 'use': last[op.tag[1]] = (ps, k); op.tag = None
        cur = {}
        def load(n):
            s, ai, imm = rows[n]; r = XA + ai % 2; L = []
            if cur.get(r) != (s, ai):
                L.append(I(f"v_add_u32 v{r}, {4096*ai}, v{XBASE}", 'valu', rd=V(XBASE), wr=V(r))); cur[r] = (s, ai)
            L.append(I(f"buffer_load_dwordx4 {vr(rr(n),4)}, v{r}, s[{SX}:{SX+3}], 0 offen offset:{imm}", 'vload', rd=V(r), wr=V(rr(n), 4), tag=(('v', rr(n)), ('R', n))))
            return L
        head = []
        for n in range(NRAW): head += load(n)
        ins = {}
        prev = (0, -1)
        for n in range(NRAW, len(rows)):
            at = max(last[n - NRAW], prev); prev = at
            ins.setdefault(at, []).extend(load(n))
        res = []
        for ps, L in enumerate(progs):
            R = []
            for k, op in enumerate(L):
                R.append(op); R += ins.get((ps, k), [])
            res.append(R)
        return head, res
    def accop(g, dst, src, sign, tiles):
        L = []; n = 0
        for t in tiles:
            for r in range(0, 4, 2):
                d = dst * 64 + t * 4 + r; s_ = src * 64 + t * 4 + r
                T = [ACT, ACT + 1, ACT + 2, ACT + 3]
                op = 'v_add_f32' if sign > 0 else 'v_sub_f32'
                L += [I(f"v_accvgpr_read_b32 v{T[0]}, a{d}", 'valu', rd=A(d), wr=V(T[0])), I(f"v_accvgpr_read_b32 v{T[1]}, a{s_}", 'valu', rd=A(s_), wr=V(T[1])),
                      I(f"v_accvgpr_read_b32 v{T[2]}, a{d+1}", 'valu', rd=A(d+1), wr=V(T[2])), I(f"v_accvgpr_read_b32 v{T[3]}, a{s_+1}", 'valu', rd=A(s_+1), wr=V(T[3])),
                      I(f"{op} v{T[0]}, v{T[0]}, v{T[1]}", 'valu', rd=V(T[0]) + V(T[1]), wr=V(T[0])), I(f"{op} v{T[2]}, v{T[2]}, v{T[3]}", 'valu', rd=V(T[2]) + V(T[3]), wr=V(T[2])),
                      I(f"v_accvgpr_write_b32 a{d}, v{T[0]}", 'valu', rd=V(T[0]), wr=A(d)), I(f"v_accvgpr_write_b32 a{d+1}, v{T[2]}", 'valu', rd=V(T[2]), wr=A(d+1))]
        return L
    def epi(g, st, banks):
        L = []; q = QOF[st]
        for j in range(8):
            F = banks[j % len(banks)]; Gq = F + 4
            f = st * 64 + j * 8; gg = f + 4
            R = range(4)
            L += [I(f"v_accvgpr_read_b32 v{F+r}, a{f+r}", 'valu', rd=A(f+r), wr=V(F+r)) for r in R]
            L += [I(f"v_accvgpr_read_b32 v{Gq+r}, a{gg+r}", 'valu', rd=A(gg+r), wr=V(Gq+r)) for r in R]
            L += [I(f"v_mul_f32 v{F+r}, s{SC1}, v{F+r}", 'valu', rd=V(F+r), wr=V(F+r)) for r in R]
            L += [I(f"v_mul_f32 v{Gq+r}, s{SC2}, v{Gq+r}", 'valu', rd=V(Gq+r), wr=V(Gq+r)) for r in R]
            L += [I(f"v_med3_f32 v{F+r}, v{F+r}, -s{SCL}, s{SCL}", 'valu', rd=V(F+r), wr=V(F+r)) for r in R]
            L += [I(f"v_exp_f32 v{Gq+r}, v{Gq+r}", 'trans', rd=V(Gq+r), wr=V(Gq+r)) for r in R]
            L += [I(f"v_exp_f32 v{F+r}, v{F+r}", 'trans', rd=V(F+r), wr=V(F+r)) for r in R]
            L += [I(f"v_add_f32 v{Gq+r}, 1.0, v{Gq+r}", 'valu', rd=V(Gq+r), wr=V(Gq+r)) for r in R]
            L += [I(f"v_fma_f32 v{Gq+r}, v{F+r}, v{Gq+r}, v{Gq+r}", 'valu', rd=V(Gq+r) + V(F+r), wr=V(Gq+r)) for r in R]
            L += [I(f"v_rcp_f32 v{Gq+r}, v{Gq+r}", 'trans', rd=V(Gq+r), wr=V(Gq+r)) for r in R]
            L += [I(f"v_fma_f32 v{F+r}, v{F+r}, v{Gq+r}, -v{Gq+r}", 'valu', rd=V(Gq+r) + V(F+r), wr=V(F+r)) for r in R]
            L += [I(f"v_add_u32 v{Gq}, {4096*j}, v{SB}", 'valu', rd=V(SB), wr=V(Gq)),
                  I(f"v_cvt_pk_bf16_f32 v{F}, v{F}, v{F+1}", 'valu', rd=V(F, 2), wr=V(F)),
                  I(f"v_cvt_pk_bf16_f32 v{F+1}, v{F+2}, v{F+3}", 'valu', rd=V(F+2, 2), wr=V(F+1)),
                  I(f"buffer_store_dwordx2 {vr(F,2)}, v{Gq}, s[{SO}:{SO+3}], 0 offen offset:{q*1024}{g.o.sflags}", 'vstore', rd=V(F, 2) + V(Gq))]
        return L
    def stamp(g, n):
        if not g.o.stamps: return []
        return [I(f"s_memtime s[{SST+4*n}:{SST+4*n+1}]", 'salu'), I(f"s_memrealtime s[{SST+4*n+2}:{SST+4*n+3}]", 'salu')]
    def barrier(g, n):
        return g.stamp(n) + [I("s_waitcnt lgkmcnt(0)", 'lgkm0'), I("s_barrier", 'salu')]
    def body(g):
        M = g.mfmas(); NG = len(GROUPS); F = []
        head, prods = g.production()
        pre = []
        for i in range(9):
            r = XA + i % 2
            pre.append(I(f"v_add_u32 v{r}, {4096*(i+1)}, v{XBASE}", 'valu', rd=V(XBASE), wr=V(r)))
            for dh in range(2):
                d = RAW + (i * 2 + dh) * 4
                pre.append(I(f"buffer_load_dwordx4 {vr(d,4)}, v{r}, s[{SX}:{SX+3}], 0 offen offset:{dh*256}", 'vload', rd=V(r), wr=V(d, 4)))
        pre += g.wloads(0) + g.wloads(1)
        for i in range(9):
            for dh in range(2):
                d = RAW + (i * 2 + dh) * 4
                pre.append(I(f"ds_write_b128 v{WA+i}, {vr(d,4)} offset:{dh*ARR}", 'dsw', rd=V(WA + i) + V(d, 4)))
        pre += g.barrier(1)
        pre += [g.xread(0, c) for c in range(7)]
        pre += head
        for G in range(2, NG):
            F += g.spread(g.wloads(G), g.idx[(G - 2, 0)] + 1, g.idx[(G - 1, 0)] - 2, dl=g.idx[(G - 1, 0)] + 8)
        for G in range(NG):
            s = GROUPS[G][0]; used = sorted({j + k for j in range(8) for k in taps(GROUPS[G][2])})
            lastg = (G % 8 == 7)
            for c in used:
                if c >= 7:
                    op = g.xread(G, c)
                    op.pos = g.idx[(G, 0)] + 2 * (c - 7) + 0.5 if lastg else g.idx[(G, c - 7)] + 2.5
                    op.dl = g.idx[(G, c - 3)] - 6 if not lastg else g.idx[(G, 1)] + 2; F.append(op)
                elif G > 0:
                    op = g.xread(G, c)
                    p = g.idx[(G - 1, c + 1)] + 4.5
                    if G % 8 == 0: p = max(p, g.idx[(G - 1, 2)] + 1.5 + 2 * c)
                    op.pos = p; op.dl = g.idx[(G, 0)] - 3; F.append(op)
            if lastg and s < 8:
                L = []
                for a in range(2):
                    op = 'v_add_u32' if (s + 1) % 2 else 'v_subrev_u32'
                    L.append(I(f"{op} v{RB+a}, {BUF}, v{RB+a}", 'valu', rd=V(RB + a), wr=V(RB + a), tag=(('v', RB + a), ('RB', s + 1))))
                L[0].pos = g.idx[(G, 1)] + 4.1; L[1].pos = g.idx[(G, 1)] + 5.1
                B = g.barrier(s + 2)
                for i in B: i.pos = g.idx[(G, 2)] + 0.2; i.c = 0
                for i in L + B: i.dl = g.idx[(G, 2)] + 1
                F += L + B
        for s in range(8):
            p0 = g.P(s, 0) + (96 if s == 0 else 0); p1 = g.P(s, 7, 1)
            F += g.spread(prods[s], p0, p1, dl=g.P(s, 7, 2))
        F += g.spread(g.accop(1, 0, -1, range(16)), g.P(3, 0) + 12, g.P(3, 7), dl=g.P(4, 7))
        F += g.spread(g.accop(1, 3, +1, range(0, 6)), g.P(5, 1) + 12, g.P(5, 4) - 12, dl=g.P(5, 4) - 4)
        F += g.spread(g.accop(0, 2, +1, range(0, 8)), g.P(5, 4) + 12, g.P(6, 0) - 12, dl=g.P(6, 0) - 4)
        F += g.spread(g.accop(1, 3, +1, range(6, 16)), g.P(6, 0) + 12, g.P(6, 4) - 12, dl=g.P(6, 4) - 4)
        F += g.spread(g.accop(0, 2, +1, range(8, 16)), g.P(6, 4) + 12, g.P(7, 0) - 12, dl=g.P(7, 0) - 4)
        F += g.spread(g.epi(0, [EPI, EPI + 8]), g.P(7, 0) + 4, g.P(8, 0) - 4, dl=g.P(8, 0))
        F += g.spread(g.epi(1, [EPI, EPI + 8]), g.P(8, 0) + 4, g.P(8, 4), dl=g.P(8, 4) + 12)
        F += g.spread(g.epi(2, [EPI, EPI + 8]), g.P(8, 4) + 16, len(M) - 2, dl=len(M))
        tail = g.stamp(10) + g.epi(3, [RAW, RAW + 8, RAW + 16, RAW + 24])
        for n, i in enumerate(F): i.seq = n
        F.sort(key=lambda i: (i.pos, i.seq))
        prog = list(pre); qi = 0; cap = g.o.cap
        late = 0
        for mi, m in enumerate(M):
            k = qi; force = qi
            while k < len(F) and F[k].pos < mi:
                if F[k].dl is not None and F[k].dl <= mi: force = k + 1
                k += 1
            late += force - qi
            while qi < force: prog.append(F[qi]); qi += 1
            prog.append(m)
            backlog = 0; k = qi
            while k < len(F) and F[k].pos < mi + 1: backlog += F[k].c; k += 1
            budget = cap + (1 if backlog > g.o.backlog else 0) + (1 if backlog > 3 * g.o.backlog else 0)
            while qi < len(F) and F[qi].pos < mi + 1 and (budget >= F[qi].c or (budget > 0 and F[qi].c == 2 and budget == cap)):
                budget -= F[qi].c; prog.append(F[qi]); qi += 1
        prog += F[qi:]; prog += tail
        sys.stderr.write(f"mfma {len(M)} fillers {len(F)} forced {late} leftover {len(F)-qi}\n")
        return prog
    def finalize(g, prog):
        tags = {('v', RB): ('RB', 0), ('v', RB + 1): ('RB', 0)}
        for i in prog:
            for r, t in i.need:
                assert tags.get(r) == t, (i.t, r, t, tags.get(r))
            if i.tag: tags[i.tag[0]] = i.tag[1]
        out = []; vm = []; lg = []; mcount = 0; nw = 0
        for i in prog:
            regs = set(i.rd) | set(i.wr)
            def need(q, T):
                last = -1
                for k, (dst, mc) in enumerate(q):
                    if dst & regs: last = k
                if last < 0: return None
                while last + 1 < len(q) and mcount - q[last + 1][1] >= T: last += 1
                return len(q) - 1 - last
            nv = need(vm, g.o.tvm); nl = need(lg, g.o.tlg)
            if i.k == 'lgkm0': lg = []
            if nv is not None or nl is not None:
                parts = []
                if nv is not None:
                    nv = min(nv, 63); parts.append(f"vmcnt({nv})"); vm = vm[len(vm) - nv:] if nv else []
                if nl is not None:
                    nl = min(nl, 15); parts.append(f"lgkmcnt({nl})"); lg = lg[len(lg) - nl:] if nl else []
                out.append(I("s_waitcnt " + " ".join(parts), 'salu')); nw += 1
            out.append(i)
            if i.k == 'mfma': mcount += 1
            if i.k == 'vload': vm.append((set(i.wr), mcount))
            if i.k == 'vstore': vm.append((set(), mcount))
            if i.k == 'dsr': lg.append((set(i.wr), mcount))
            if i.k == 'dsw': lg.append((set(), mcount))
        res = []; nn = 0
        isv = lambda k: k in ('valu', 'trans')
        for i in out:
            req = 0; dist = 0
            for p in reversed(res[-12:]):
                w = 0
                pw, prd = set(p.wr), set(p.rd)
                if isv(p.k) and i.k == 'mfma' and pw & set(i.rd): w = 2
                if p.k == 'mfma':
                    if isv(i.k) and pw & (set(i.rd) | set(i.wr)): w = 8
                    if i.k in ('vstore', 'dsw', 'vload', 'dsr') and pw & (set(i.rd) | set(i.wr)): w = 8
                    if isv(i.k) and set(p.creads) & set(i.wr): w = max(w, 3)
                if p.k == 'trans' and i.k != 'trans' and pw & set(i.rd): w = max(w, 1)
                if p.k == 'trans' and i.k == 'trans' and pw & set(i.rd): w = max(w, 1)
                if p.k in ('vstore', 'dsw') and isv(i.k) and prd & set(i.wr): w = max(w, 2)
                req = max(req, w - dist)
                dist += (int(p.t.split()[1]) + 1) if p.t.startswith('s_nop') else 1
            if req > 0: res.append(I(f"s_nop {req-1}", 'salu')); nn += 1
            res.append(i)
        sys.stderr.write(f"waits {nw} nops {nn} total {len(res)}\n")
        return res
    def main_kernel(g):
        E = g.out.append
        E(f".globl {KN}\n.p2align 8\n.type {KN},@function\n{KN}:")
        E("s_cmp_ge_u32 s2, 256\ns_cbranch_scc1 L_end")
        if g.o.stamps: E(f"s_memtime s[{SST}:{SST+1}]\ns_memrealtime s[{SST+2}:{SST+3}]")
        E("s_load_dwordx2 s[4:5], s[0:1], 0\ns_load_dwordx2 s[6:7], s[0:1], 16\ns_load_dwordx2 s[26:27], s[0:1], 32")
        E("s_and_b32 s30, s2, 7\ns_lshr_b32 s31, s2, 3\ns_and_b32 s32, s31, 3\ns_lshr_b32 s31, s31, 2\ns_lshl_b32 s30, s30, 3\ns_add_u32 s30, s30, s31")
        E("s_lshr_b32 s33, s30, 5\ns_and_b32 s34, s30, 31\ns_lshl_b32 s34, s34, 18")
        E("s_mul_i32 s33, s33, 8192000")
        E("v_and_b32 v20, 63, v0\nv_lshrrev_b32 v21, 6, v0")
        E("v_and_b32 v22, 15, v0")
        E("v_bfe_u32 v23, v0, 4, 1")
        E("v_lshrrev_b32 v24, 5, v0")
        E("v_mul_u32_u24 v25, 9, v24")
        E("v_lshlrev_b32 v26, 12, v25\nv_lshlrev_b32 v27, 9, v23\nv_lshlrev_b32 v28, 4, v22")
        E(f"v_add3_u32 v26, v26, v27, v28\ns_sub_u32 s35, s34, {4*4096}\nv_add_u32 v{XBASE}, s35, v26")
        E(f"v_and_b32 v26, 7, v22\nv_mul_u32_u24 v26, {S2}, v26\nv_lshrrev_b32 v27, 3, v22\nv_mul_u32_u24 v27, {S1}, v27\nv_lshlrev_b32 v28, 4, v23\nv_add3_u32 v26, v26, v27, v28")
        for i in range(9):
            E(f"v_add_u32 v27, {i}, v25\nv_and_b32 v28, 7, v27\nv_mul_u32_u24 v28, 288, v28\nv_lshrrev_b32 v27, 3, v27\nv_lshlrev_b32 v27, 5, v27\nv_add3_u32 v{WA+i}, v26, v27, v28")
        E(f"v_bfe_u32 v26, v0, 5, 1\nv_mul_u32_u24 v26, {S2}, v26\nv_mul_u32_u24 v27, {S1}, v23\nv_lshlrev_b32 v28, 4, v22\nv_add3_u32 v{RB}, v26, v27, v28\nv_add_u32 v{RB+1}, {ARR}, v{RB}")
        E(f"s_lshl_b32 s36, s32, 2\nv_add_u32 v26, s36, v21\nv_mul_u32_u24 v26, {STREAM}, v26\nv_lshlrev_b32 v27, 4, v20\nv_add_u32 v{WL}, v26, v27")
        E("v_lshrrev_b32 v26, 1, v22\nv_lshlrev_b32 v26, 15, v26\nv_and_b32 v27, 1, v22\nv_lshlrev_b32 v27, 9, v27\nv_lshlrev_b32 v28, 5, v21\nv_add3_u32 v26, v26, v27, v28")
        E(f"v_lshrrev_b32 v27, 4, v20\nv_lshlrev_b32 v27, 3, v27\ns_lshl_b32 s36, s32, 7\ns_add_u32 s36, s36, s34\nv_add3_u32 v{SB}, v26, v27, s36")
        E(f"s_mov_b32 s{SWO}, 0\ns_mov_b32 s{SC1}, {hex(fb(2*1.4426950408889634))}\ns_mov_b32 s{SC2}, {hex(fb(-1.4426950408889634))}\ns_mov_b32 s{SCL}, {hex(fb(32.0))}\ns_mov_b32 s{SMASK}, 0xffff0000")
        E("s_waitcnt lgkmcnt(0)")
        E(f"s_add_u32 s{SX}, s4, s33\ns_addc_u32 s{SX+1}, s5, 0\ns_mov_b32 s{SX+2}, 8192000\ns_mov_b32 s{SX+3}, 0x20000")
        E(f"s_mov_b32 s{SW}, s26\ns_mov_b32 s{SW+1}, s27\ns_mov_b32 s{SW+2}, {0x10000000 if g.o.stamps else 16*STREAM}\ns_mov_b32 s{SW+3}, 0x20000")
        E(f"s_add_u32 s{SO}, s6, s33\ns_addc_u32 s{SO+1}, s7, 0\ns_mov_b32 s{SO+2}, 8192000\ns_mov_b32 s{SO+3}, 0x20000")
        for i in g.finalize(g.body()): E(i.t)
        if g.o.stamps:
            n = 12
            E(f"s_waitcnt vmcnt(0)\ns_memtime s[{SST+44}:{SST+45}]\ns_memrealtime s[{SST+46}:{SST+47}]\ns_waitcnt lgkmcnt(0)")
            E(f"v_mbcnt_lo_u32_b32 v20, -1, 0\nv_mbcnt_hi_u32_b32 v20, -1, v20\nv_lshlrev_b32 v21, 4, v20\nv_sub_u32 v21, v{WL}, v21\ns_lshl_b32 s36, s32, 2\ns_mul_i32 s36, s36, {STREAM}\nv_subrev_u32 v21, s36, v21\nv_or_b32 v21, v21, v20")
            E("v_cmp_eq_u32 vcc, 0, v21\ns_and_saveexec_b64 s[30:31], vcc\ns_cbranch_execz L_end")
            E(f"s_mul_i32 s36, s2, {16*n}\ns_add_u32 s36, s36, {200<<20}")
            for k in range(n):
                for j in range(4): E(f"v_mov_b32 v{24+j}, s{SST+4*k+j}")
                E(f"buffer_store_dwordx4 v[24:27], v21, s[{SW}:{SW+3}], s36 offen offset:{16*k}\ns_nop 1")
        E("L_end:\ns_endpgm")
    def prep_kernel(g):
        E = g.out.append
        E(f".globl {PN}\n.p2align 8\n.type {PN},@function\n{PN}:")
        E("s_cmp_ge_u32 s2, 256\ns_cbranch_scc1 LP_end")
        E("s_load_dwordx2 s[4:5], s[0:1], 8\ns_load_dwordx2 s[6:7], s[0:1], 32")
        E("s_and_b32 s20, s2, 1\ns_bfe_u32 s21, s2, 0x50001\ns_lshr_b32 s22, s2, 6")
        for i in range(32): E(f"v_mov_b32 v{8+i}, 0")
        E("v_lshlrev_b32 v1, 1, v0\ns_lshl_b32 s23, s20, 9\ns_lshl_b32 s24, s21, 13\ns_add_u32 s23, s23, s24\nv_add_u32 v1, s23, v1\nv_add_u32 v2, 4096, v1")
        E("s_lshl_b32 s25, s22, 20")
        E("s_waitcnt lgkmcnt(0)")
        E("s_mov_b32 s8, s4\ns_mov_b32 s9, s5\ns_mov_b32 s10, 3932160\ns_mov_b32 s11, 0x20000")
        E(f"s_mov_b32 s12, s6\ns_mov_b32 s13, s7\ns_mov_b32 s14, {16*STREAM}\ns_mov_b32 s15, 0x20000")
        def ld(r):
            for i in range(8): E(f"buffer_load_short_d16_hi v{8+8*r+i}, v{1+i//4}, s[8:11], s26 offen offset:{(i%4)*1024}")
        E("s_cmp_eq_u32 s22, 0\ns_cbranch_scc1 LP_skip0\ns_sub_u32 s26, s25, 262144")
        ld(0)
        E("LP_skip0:")
        for r in range(1, 4):
            E(f"s_add_u32 s26, s25, {(r-1)*262144}"); ld(r)
        E(f"v_lshrrev_b32 v3, 4, v0\nv_mul_u32_u24 v3, {STREAM}, v3\nv_and_b32 v4, 15, v0\nv_lshlrev_b32 v4, 4, v4\nv_add_u32 v3, v3, v4")
        E("s_lshr_b32 s27, s21, 4\ns_bfe_u32 s28, s21, 0x20001\ns_and_b32 s29, s21, 1\ns_lshl_b32 s29, s29, 1\ns_bfe_u32 s30, s21, 0x10003\ns_add_u32 s29, s29, s30\ns_lshl_b32 s29, s29, 8")
        E("v_add_u32 v3, s29, v3")
        E("s_waitcnt vmcnt(0)")
        g_ = lambda r: 8 + 8 * r
        T = {'12': 40, '32': 48, '21': 56, '23': 64, '22': 72, '11': g_(0), '13': g_(1), '31': g_(2), '33': g_(3)}
        for i in range(8):
            E(f"v_add_f32 v{40+i}, v{g_(0)+i}, v{g_(1)+i}\nv_add_f32 v{48+i}, v{g_(2)+i}, v{g_(3)+i}\nv_add_f32 v{56+i}, v{g_(0)+i}, v{g_(2)+i}\nv_add_f32 v{64+i}, v{g_(1)+i}, v{g_(3)+i}\nv_add_f32 v{72+i}, v{40+i}, v{48+i}")
        for n, pt in enumerate(['22', '23', '21', '12', '32', '13', '33', '31', '11']):
            nt = len(taps(pt)); k0 = taps(pt)[0]
            base = GOFF[(pt, 0, 0)]; dstr = GOFF[(pt, 1, 0)] - base; kstr = 2 * nt
            o = 80 + 4 * n
            if pt == '11': E("s_cmp_eq_u32 s22, 0\ns_cbranch_scc1 LP_end")
            for i in range(4): E(f"v_cvt_pk_bf16_f32 v{o+i}, v{T[pt]+2*i}, v{T[pt]+2*i+1}")
            E(f"s_mul_i32 s31, s27, {dstr}\ns_mul_i32 s32, s28, {kstr}\ns_add_u32 s31, s31, s32\ns_mul_i32 s32, s20, {nt}\ns_add_u32 s31, s31, s32\ns_add_u32 s31, s31, s22\ns_add_u32 s31, s31, {base-k0}\ns_lshl_b32 s31, s31, 10")
            E(f"buffer_store_dwordx4 v[{o}:{o+3}], v3, s[12:15], s31 offen")
        E("LP_end:\ns_endpgm")
    def emit(g):
        E = g.out.append
        E(f"; @launch kernel={PN} grid=(256,1,1) block=(256,1,1) lds=0")
        E(f"; @launch kernel={KN} grid=(256,1,1) block=(256,1,1) lds={LDS_BYTES}")
        E('.amdgcn_target "amdgcn-amd-amdhsa--gfx950"\n.text')
        g.prep_kernel(); g.main_kernel()
        for n, nv, ao in ((PN, 120, 120), (KN, 512, 256)):
            E(f""".section .rodata,"a"
.p2align 6
.amdhsa_kernel {n}
  .amdhsa_next_free_vgpr {nv}
  .amdhsa_next_free_sgpr 96
  .amdhsa_accum_offset {ao}
  .amdhsa_group_segment_fixed_size 0
  .amdhsa_kernarg_size 40
  .amdhsa_user_sgpr_count 2
  .amdhsa_user_sgpr_kernarg_segment_ptr 1
  .amdhsa_system_sgpr_workgroup_id_x 1
  .amdhsa_float_denorm_mode_32 3
.end_amdhsa_kernel""")
        return "\n".join(g.out) + "\n"

if __name__ == '__main__':
    ap = argparse.ArgumentParser()
    ap.add_argument('-o', default='standalone__autoregressive_conv_wavernn__speech.s')
    ap.add_argument('--stamps', action='store_true'); ap.add_argument('--cap', type=int, default=2); ap.add_argument('--backlog', type=int, default=6)
    ap.add_argument('--tvm', type=int, default=64); ap.add_argument('--tlg', type=int, default=10)
    ap.add_argument('--wflags', default=''); ap.add_argument('--sflags', default='')
    o = ap.parse_args()
    if o.wflags: o.wflags = ' ' + o.wflags
    if o.sflags: o.sflags = ' ' + o.sflags
    open(o.o, 'w').write(Gen(o).emit())
```

```python
import sys, struct, argparse
KN = "standalone__autoregressive_conv_wavernn__speech_kernel"
PN = "wprep_kernel"
fb = lambda f: struct.unpack('<I', struct.pack('<f', f))[0]

S1, S2, ARR, BUF = 2304, 4624, 36992, 73984
LDS_BYTES = 2 * BUF
STREAM = 560 * 1024

STAGES = [(('22', 0), ('22', 1)),
          (('23', 0), ('21', 0)), (('23', 1), ('21', 1)),
          (('12', 0), ('32', 0)), (('12', 1), ('32', 1)),
          (('13', 0), ('33', 0)), (('13', 1), ('33', 1)),
          (('11', 0), ('31', 0)), (('11', 1), ('31', 1))]
SET = {'22': 0, '23': 1, '21': 0, '12': 2, '32': 3, '13': 0, '33': 1, '11': 2, '31': 3}
FORK = {'22': None, '23': 0, '12': 0, '32': 0, '13': 1}
QOF = {0: 1, 1: 3, 2: 0, 3: 2}
PTYPE = ['A', 'B', 'B', 'C', 'C', 'D', 'D', 'E', 'E']
def taps(pt): return [1, 2, 3] if pt == '11' else [0, 1, 2, 3]

GROUPS = []
_off = 0
for s, st in enumerate(STAGES):
    for a, (pt, dh) in enumerate(st):
        for kp in range(4):
            GROUPS.append((s, a, pt, dh, kp, _off)); _off += 2 * len(taps(pt))
assert _off == 560
GOFF = {(pt, dh, kp): off for (s, a, pt, dh, kp, off) in GROUPS}

def V(n, c=1): return [('v', n + i) for i in range(c)]
def A(n, c=1): return [('a', n + i) for i in range(c)]
def vr(n, c): return f"v[{n}:{n+c-1}]"
def ar(n, c): return f"a[{n}:{n+c-1}]"
class I:
    __slots__ = ('t', 'k', 'rd', 'wr', 'c', 'need', 'tag', 'pos', 'dl', 'seq', 'creads')
    def __init__(s, t, k, rd=(), wr=(), need=None, tag=None, creads=()):
        s.t = t; s.k = k; s.rd = list(rd); s.wr = list(wr); s.need = need or []; s.tag = tag
        s.c = {'trans': 2, 'dsw': 2, 'salu': 0}.get(k, 1); s.pos = None; s.dl = None; s.creads = list(creads)

WA = 1; RB = 10; WL = 12; XA = 13; XBASE = 15; SB = 0
WR = 16; XF = 112; RAW = 156; NRAW = 12; PERS = 204; TMP = 212; OUT = 220; EPI = 236; ACT = 252
SX, SW, SO = 8, 12, 16
SWO = 20; SC1, SC2, SCL, SMASK = 21, 22, 23, 24
SST = 40

def gapcost(gap):
    t = 4; sawv = False
    for i in gap:
        if i.k in ('valu', 'trans'): t = max(t, 8) + (8 if i.k == 'trans' else 4); sawv = True
        elif i.k == 'dsw': t += 24 + (8 if sawv else 0)
        elif i.k in ('vload', 'dsr', 'vstore'): t += 8 + (8 if sawv else 0)
        else: t += 4
    return max(t, 16)

class Gen:
    def __init__(g, opt):
        g.o = opt; g.out = []; g.tr = {}; g.lastdsw = -99
    def mfmas(g):
        M = []; g.idx = {}
        for G, (s, a, pt, dh, kp, off) in enumerate(GROUPS):
            tp = taps(pt); st = SET[pt]
            first = (kp == 0 and dh == 0 and pt in FORK)
            for j in range(8):
                g.idx[(G, j)] = len(M)
                for h in range(2):
                    for ki, k in enumerate(tp):
                        acc = st * 64 + (j * 2 + h) * 4
                        w = WR + ((G % 3) * 8 + h * len(tp) + ki) * 4
                        x = XF + (j + k) * 4
                        if first and ki == 0:
                            if FORK[pt] is None: cs, cr = '0', []
                            else:
                                c = FORK[pt] * 64 + (j * 2 + h) * 4; cs, cr = ar(c, 4), A(c, 4)
                        else: cs, cr = ar(acc, 4), A(acc, 4)
                        M.append(I(f"v_mfma_f32_16x16x32_bf16 {ar(acc,4)}, {vr(w,4)}, {vr(x,4)}, {cs}", 'mfma',
                                   rd=V(w, 4) + V(x, 4) + cr, wr=A(acc, 4), creads=cr,
                                   need=[(('v', w), ('W', G, h, k)), (('v', x), ('X', G, j + k))]))
        g.idx[(len(GROUPS), 0)] = len(M)
        for s in range(9): M[g.idx[(8 * s, 0)]].t = f"L_st{s}:\n" + M[g.idx[(8 * s, 0)]].t
        return M
    def P(g, s, gr, j=0): return g.idx[(s * 8 + gr, j)]
    def wloads(g, G):
        s, a, pt, dh, kp, off = GROUPS[G]; tp = taps(pt); L = []
        for h in range(2):
            for ki, k in enumerate(tp):
                f = off + h * len(tp) + ki
                if f % 4 == 0 and f: L.append(I(f"s_add_u32 s{SWO}, s{SWO}, 4096" if not ('wwrap' in g.o.skip and f % 64 == 0) else f"s_add_u32 s{SWO}, s{SWO}, {hex((1<<32)-61440)}", 'salu', rd=[('s', SWO)], wr=[('s', SWO)]))
                w = WR + ((G % 3) * 8 + h * len(tp) + ki) * 4
                L.append(I(f"buffer_load_dwordx4 {vr(w,4)}, v{WL}, s[{SW}:{SW+3}], s{SWO} offen offset:{(f%4)*1024}{g.o.wflags}", 'vload',
                           rd=V(WL) + [('s', SWO)], wr=V(w, 4), tag=(('v', w), ('W', G, h, k))))
        return L
    def xread(g, G, c):
        s, a, pt, dh, kp, off = GROUPS[G]
        x = XF + c * 4; imm = 2 * kp * S2 + (c % 8) * 288 + (c // 8) * 32
        return I(f"ds_read_b128 {vr(x,4)}, v{RB+a} offset:{imm}", 'dsr', rd=V(RB + a), wr=V(x, 4), tag=(('v', x), ('X', G, c)),
                 need=[(('v', RB + a), ('RB', s))])
    def spread(g, L, p0, p1, dl=None):
        tot = sum(i.c for i in L); acc = 0
        for i in L:
            i.pos = p0 + (p1 - p0) * acc / max(tot, 1); acc += i.c
            i.dl = dl
        return L
    def production(g):
        rows = []
        progs = []
        def newrow(s, ai, imm):
            rows.append((s, ai, imm + STAGES[s][0][1] * 256)); return len(rows) - 1
        rr = lambda n: RAW + (n % NRAW) * 4
        tctr = [0]
        def tmp():
            t = TMP + tctr[0] % 8; tctr[0] += 1; return t
        octr = [0]
        def lo(dst, n, i): return I(f"v_lshlrev_b32 v{dst}, 16, v{rr(n)+i}", 'valu', rd=V(rr(n)+i), wr=V(dst), need=[(('v', rr(n)), ('R', n))], tag=('use', n))
        def hi(dst, n, i): return I(f"v_and_b32 v{dst}, s{SMASK}, v{rr(n)+i}", 'valu', rd=V(rr(n)+i), wr=V(dst), need=[(('v', rr(n)), ('R', n))], tag=('use', n))
        def sub(d, a, b): return I(f"v_sub_f32 v{d}, v{a}, v{b}", 'valu', rd=V(a) + V(b), wr=V(d))
        def cvt(d, a, b): return I(f"v_cvt_pk_bf16_f32 v{d}, v{a}, v{b}", 'valu', rd=V(a) + V(b), wr=V(d))
        def wr(s, i, arr, src): return I(f"ds_write_b128 v{WA+i}, {vr(src,4)} offset:{arr*ARR}", 'dsw', rd=V(WA + i) + V(src, 4), need=[(('v', WA + i), ('WA', s))])
        for s in range(1, 9):
            ty = PTYPE[s]; L = []
            for i in range(9):
                op = 'v_add_u32' if s % 2 else 'v_subrev_u32'
                L.append(I(f"{op} v{WA+i}, {BUF}, v{WA+i}", 'valu', rd=V(WA + i), wr=V(WA + i), tag=(('v', WA + i), ('WA', s))))
            if ty == 'C':
                n1 = newrow(s, 0, 2048)
                for d in range(4): L += [lo(PERS + 2*d, n1, d), hi(PERS + 2*d + 1, n1, d)]
            elif ty in 'DE':
                if ty == 'D': nb, na = newrow(s, 0, 2048), newrow(s, 0, 3072)
                else: na, nb = newrow(s, 0, 1024), newrow(s, 0, 2048)
                for d in range(4):
                    t0, t1 = tmp(), tmp()
                    L += [lo(PERS + 2*d, na, d), hi(PERS + 2*d + 1, na, d), lo(t0, nb, d), hi(t1, nb, d),
                          sub(PERS + 2*d, PERS + 2*d, t0), sub(PERS + 2*d + 1, PERS + 2*d + 1, t1)]
            pend = None
            for i in range(9):
                stepstart = len(L)
                o0 = OUT + (octr[0] % 2) * 8; o1 = o0 + 4; octr[0] += 1
                if ty == 'B':
                    n2, n3, n4 = newrow(s, i, 3072), newrow(s, i + 1, 0), newrow(s, i + 1, 1024)
                    for d in range(4):
                        a, b, c, e, f, h = [tmp() for _ in range(6)]
                        L += [lo(a, n3, d), hi(b, n3, d), lo(c, n4, d), hi(e, n4, d), lo(f, n2, d), hi(h, n2, d),
                              sub(c, c, a), sub(e, e, b), sub(f, f, a), sub(h, h, b), cvt(o0 + d, c, e), cvt(o1 + d, f, h)]
                elif ty == 'C':
                    n3, n5 = newrow(s, i + 1, 0), newrow(s, i + 1, 2048)
                    for d in range(4):
                        a, b, c, e = [tmp() for _ in range(4)]
                        p0, p1 = PERS + 2*d, PERS + 2*d + 1
                        L += [lo(a, n3, d), hi(b, n3, d), sub(c, p0, a), sub(e, p1, b), lo(p0, n5, d), hi(p1, n5, d), cvt(o0 + d, c, e),
                              sub(a, p0, a), sub(b, p1, b), cvt(o1 + d, a, b)]
                else:
                    if ty == 'D':
                        n3, n4, n5, n6 = [newrow(s, i + 1, 1024 * q) for q in range(4)]
                        mp, mm, np_, nm = n4, n3, n6, n5
                    else:
                        n2 = newrow(s, i, 3072); n3, n4, n5 = [newrow(s, i + 1, 1024 * q) for q in range(3)]
                        mp, mm, np_, nm = n2, n3, n4, n5
                    for d in range(4):
                        a, b, c, e = [tmp() for _ in range(4)]
                        p0, p1 = PERS + 2*d, PERS + 2*d + 1
                        L += [lo(a, mp, d), hi(b, mp, d), lo(c, mm, d), hi(e, mm, d), sub(a, a, c), sub(b, b, e),
                              sub(c, p0, a), sub(e, p1, b), lo(p0, np_, d), hi(p1, np_, d), cvt(o0 + d, c, e),
                              lo(c, nm, d), hi(e, nm, d), sub(p0, p0, c), sub(p1, p1, e), sub(a, p0, a), sub(b, p1, b), cvt(o1 + d, a, b)]
                w0, w1 = wr(s, i, 0, o0), wr(s, i, 1, o1)
                if pend is not None:
                    L.insert(stepstart + (len(L) - stepstart) // 2, pend)
                L.append(w0); pend = w1
                if i == 8:
                    pad = I("", 'pad'); pad.c = 10
                    L += [pad, w1]
            progs.append(L)
        last = {}
        for ps, L in enumerate(progs):
            for k, op in enumerate(L):
                if op.tag and op.tag[0] == 'use': last[op.tag[1]] = (ps, k); op.tag = None
        cur = {}
        def load(n):
            s, ai, imm = rows[n]; r = XA + ai % 2; L = []
            if cur.get(r) != (s, ai):
                L.append(I(f"v_add_u32 v{r}, {4096*ai}, v{XBASE}", 'valu', rd=V(XBASE), wr=V(r))); cur[r] = (s, ai)
            L.append(I(f"buffer_load_dwordx4 {vr(rr(n),4)}, v{r}, s[{SX}:{SX+3}], 0 offen offset:{imm}", 'vload', rd=V(r), wr=V(rr(n), 4), tag=(('v', rr(n)), ('R', n))))
            return L
        head = []
        for n in range(NRAW): head += load(n)
        ins = {}
        prev = (0, -1)
        for n in range(NRAW, len(rows)):
            at = max(last[n - NRAW], prev); prev = at
            ins.setdefault(at, []).extend(load(n))
        res = []
        for ps, L in enumerate(progs):
            R = []
            for k, op in enumerate(L):
                R.append(op); R += ins.get((ps, k), [])
            res.append(R)
        return head, res
    def accop(g, dst, src, sign, tiles):
        L = []; n = 0
        for t in tiles:
            for r in range(0, 4, 2):
                d = dst * 64 + t * 4 + r; s_ = src * 64 + t * 4 + r
                T = [ACT, ACT + 1, ACT + 2, ACT + 3]
                op = 'v_add_f32' if sign > 0 else 'v_sub_f32'
                L += [I(f"v_accvgpr_read_b32 v{T[0]}, a{d}", 'valu', rd=A(d), wr=V(T[0])), I(f"v_accvgpr_read_b32 v{T[1]}, a{s_}", 'valu', rd=A(s_), wr=V(T[1])),
                      I(f"v_accvgpr_read_b32 v{T[2]}, a{d+1}", 'valu', rd=A(d+1), wr=V(T[2])), I(f"v_accvgpr_read_b32 v{T[3]}, a{s_+1}", 'valu', rd=A(s_+1), wr=V(T[3])),
                      I(f"{op} v{T[0]}, v{T[0]}, v{T[1]}", 'valu', rd=V(T[0]) + V(T[1]), wr=V(T[0])), I(f"{op} v{T[2]}, v{T[2]}, v{T[3]}", 'valu', rd=V(T[2]) + V(T[3]), wr=V(T[2])),
                      I(f"v_accvgpr_write_b32 a{d}, v{T[0]}", 'valu', rd=V(T[0]), wr=A(d)), I(f"v_accvgpr_write_b32 a{d+1}, v{T[2]}", 'valu', rd=V(T[2]), wr=A(d+1))]
        return L
    def epi(g, st, banks):
        L = []; q = QOF[st]
        for j in range(8):
            F = banks[j % len(banks)]; Gq = F + 4
            f = st * 64 + j * 8; gg = f + 4
            R = range(4)
            L += [I(f"v_accvgpr_read_b32 v{F+r}, a{f+r}", 'valu', rd=A(f+r), wr=V(F+r)) for r in R]
            L += [I(f"v_accvgpr_read_b32 v{Gq+r}, a{gg+r}", 'valu', rd=A(gg+r), wr=V(Gq+r)) for r in R]
            L += [I(f"v_mul_f32 v{F+r}, s{SC1}, v{F+r}", 'valu', rd=V(F+r), wr=V(F+r)) for r in R]
            L += [I(f"v_mul_f32 v{Gq+r}, s{SC2}, v{Gq+r}", 'valu', rd=V(Gq+r), wr=V(Gq+r)) for r in R]
            L += [I(f"v_med3_f32 v{F+r}, v{F+r}, -s{SCL}, s{SCL}", 'valu', rd=V(F+r), wr=V(F+r)) for r in R]
            L += [I(f"v_exp_f32 v{Gq+r}, v{Gq+r}", 'trans', rd=V(Gq+r), wr=V(Gq+r)) for r in R]
            L += [I(f"v_exp_f32 v{F+r}, v{F+r}", 'trans', rd=V(F+r), wr=V(F+r)) for r in R]
            L += [I(f"v_add_f32 v{Gq+r}, 1.0, v{Gq+r}", 'valu', rd=V(Gq+r), wr=V(Gq+r)) for r in R]
            L += [I(f"v_fma_f32 v{Gq+r}, v{F+r}, v{Gq+r}, v{Gq+r}", 'valu', rd=V(Gq+r) + V(F+r), wr=V(Gq+r)) for r in R]
            L += [I(f"v_rcp_f32 v{Gq+r}, v{Gq+r}", 'trans', rd=V(Gq+r), wr=V(Gq+r)) for r in R]
            L += [I(f"v_fma_f32 v{F+r}, v{F+r}, v{Gq+r}, -v{Gq+r}", 'valu', rd=V(Gq+r) + V(F+r), wr=V(F+r)) for r in R]
            L += [I(f"v_add_u32 v{Gq}, {4096*j}, v{SB}", 'valu', rd=V(SB), wr=V(Gq)),
                  I(f"v_cvt_pk_bf16_f32 v{F}, v{F}, v{F+1}", 'valu', rd=V(F, 2), wr=V(F)),
                  I(f"v_cvt_pk_bf16_f32 v{F+1}, v{F+2}, v{F+3}", 'valu', rd=V(F+2, 2), wr=V(F+1)),
                  I(f"buffer_store_dwordx2 {vr(F,2)}, v{Gq}, s[{SO}:{SO+3}], 0 offen offset:{q*1024}{g.o.sflags}", 'vstore', rd=V(F, 2) + V(Gq))]
        return L
    def stamp(g, n):
        if not g.o.stamps or g.o.trace >= 0: return []
        return [I(f"s_memtime s[{SST+4*n}:{SST+4*n+1}]", 'salu'), I(f"s_memrealtime s[{SST+4*n+2}:{SST+4*n+3}]", 'salu')]
    def barrier(g, n):
        return g.stamp(n) + [I("s_waitcnt lgkmcnt(0)", 'lgkm0'), I("s_barrier", 'salu')]
    def body(g):
        M = g.mfmas(); NG = len(GROUPS); F = []
        head, prods = g.production()
        pre = []
        for i in range(9):
            r = XA + i % 2
            pre.append(I(f"v_add_u32 v{r}, {4096*(i+1)}, v{XBASE}", 'valu', rd=V(XBASE), wr=V(r)))
            for dh in range(2):
                d = RAW + (i * 2 + dh) * 4
                pre.append(I(f"buffer_load_dwordx4 {vr(d,4)}, v{r}, s[{SX}:{SX+3}], 0 offen offset:{dh*256}", 'vload', rd=V(r), wr=V(d, 4)))
        pre += g.wloads(0) + g.wloads(1)
        if g.o.pf:
            for k in range(g.o.pf):
                pre.append(I(f"buffer_load_dword v{EPI+1+k}, v{EPI}, s[28:31], s{36+k} offen", 'vload', rd=V(EPI), wr=V(EPI + 1 + k)))
        for i in range(9):
            for dh in range(2):
                d = RAW + (i * 2 + dh) * 4
                pre.append(I(f"ds_write_b128 v{WA+i}, {vr(d,4)} offset:{dh*ARR}", 'dsw', rd=V(WA + i) + V(d, 4)))
        pre += g.barrier(1)
        pre += [g.xread(0, c) for c in range(7)]
        pre += head
        for G in range(2, NG):
            F += g.spread(g.wloads(G), g.idx[(G - 2, 0)] + 1, g.idx[(G - 1, 0)] - 2, dl=g.idx[(G - 1, 0)] + 8)
        for G in range(NG):
            s = GROUPS[G][0]; used = sorted({j + k for j in range(8) for k in taps(GROUPS[G][2])})
            lastg = (G % 8 == 7)
            for c in used:
                if c >= 7:
                    op = g.xread(G, c)
                    op.pos = g.idx[(G, 0)] + 2 * (c - 7) + 0.5 if lastg else g.idx[(G, c - 7)] + 2.5
                    op.dl = g.idx[(G, c - 3)] - 10 if not lastg else g.idx[(G, 1)] + 2; F.append(op)
                elif G > 0:
                    op = g.xread(G, c)
                    p = g.idx[(G - 1, c + 1)] + 4.5
                    if G % 8 == 0: p = max(p, g.idx[(G - 1, 2)] + 1.5 + 2 * c)
                    op.pos = p; op.dl = max(p + 1, g.idx[(G, max(0, c - 3))] - 10); F.append(op)
            if lastg and s < 8:
                L = []
                for a in range(2):
                    op = 'v_add_u32' if (s + 1) % 2 else 'v_subrev_u32'
                    L.append(I(f"{op} v{RB+a}, {BUF}, v{RB+a}", 'valu', rd=V(RB + a), wr=V(RB + a), tag=(('v', RB + a), ('RB', s + 1))))
                L[0].pos = g.idx[(G, 1)] + 4.1; L[1].pos = g.idx[(G, 1)] + 5.1
                B = g.barrier(s + 2)
                for i in B: i.pos = g.idx[(G, 2)] + 0.2; i.c = 0
                for i in L + B: i.dl = g.idx[(G, 2)] + 1
                F += L + B
        for s in range(8):
            p0 = g.P(s, 0) + (96 if s == 0 else 0); p1 = g.P(s, 7, 1)
            F += g.spread(prods[s], p0, p1, dl=g.P(s, 7, 2))
        if g.o.pf:
            for s in range(1, 7):
                a = I(f"s_mov_b32 s36, L_st{s+1}-L_pc", 'salu', wr=[('s', 36)])
                b = I(f"buffer_load_dword v{EPI+1}, v{EPI}, s[28:31], s36 offen", 'vload', rd=V(EPI) + [('s', 36)], wr=V(EPI + 1))
                a.pos = g.P(s, 0) + 20; b.pos = g.P(s, 0) + 21; F += [a, b]
        F += g.spread(g.accop(1, 0, -1, range(16)), g.P(3, 0) + 12, g.P(3, 7), dl=g.P(4, 7))
        F += g.spread(g.accop(1, 3, +1, range(0, 6)), g.P(5, 1) + 12, g.P(5, 4) - 12, dl=g.P(5, 4) - 4)
        F += g.spread(g.accop(0, 2, +1, range(0, 8)), g.P(5, 4) + 12, g.P(6, 0) - 12, dl=g.P(6, 0) - 4)
        F += g.spread(g.accop(1, 3, +1, range(6, 16)), g.P(6, 0) + 12, g.P(6, 4) - 12, dl=g.P(6, 4) - 4)
        F += g.spread(g.accop(0, 2, +1, range(8, 16)), g.P(6, 4) + 12, g.P(7, 0) - 12, dl=g.P(7, 0) - 4)
        F += g.spread(g.epi(0, [EPI, EPI + 8]), g.P(7, 0) + 4, g.P(8, 0) - 4, dl=g.P(8, 0))
        F += g.spread(g.epi(1, [EPI, EPI + 8]), g.P(8, 0) + 4, g.P(8, 4), dl=g.P(8, 4) + 12)
        F += g.spread(g.epi(2, [EPI, EPI + 8]), g.P(8, 4) + 16, len(M) - 2, dl=len(M))
        tail = g.stamp(10) + g.epi(3, [RAW, RAW + 8, RAW + 16, RAW + 24])
        F = [i for i in F if i.k != 'pad']
        if g.o.trace >= 0:
            for n in range(49):
                g.tr[g.o.trace + n * g.o.tstep] = n
        sk = g.o.skip
        if 'valu' in sk: F = [i for i in F if i.k not in ('valu', 'trans') or i.t.startswith('v_add_u32') or i.t.startswith('v_subrev_u32')]
        if 'wld' in sk: F = [i for i in F if not (i.k == 'vload' and f's[{SW}:' in i.t)]
        if 'xld' in sk: F = [i for i in F if not (i.k == 'vload' and f's[{SX}:' in i.t)]
        if 'dsr' in sk: F = [i for i in F if i.k != 'dsr']
        if 'dsw' in sk: F = [i for i in F if i.k != 'dsw']
        if 'st' in sk: F = [i for i in F if i.k != 'vstore']
        if 'bar' in sk: F = [i for i in F if i.t != 's_barrier']
        for n, i in enumerate(F): i.seq = n
        F.sort(key=lambda i: (i.pos, i.seq))
        MEM = ('vload', 'dsr', 'dsw', 'vstore')
        def indep(x, skipped):
            xr, xw = set(x.rd), set(x.wr)
            for y in skipped:
                if y.k == 'lgkm0' or y.t == 's_barrier' or x.k == 'lgkm0' or x.t == 's_barrier': return False
                if xr & set(y.wr) or xw & set(y.rd) or xw & set(y.wr): return False
            return True
        gaps = []; Q = list(F); late = 0
        for mi, m in enumerate(M):
            gap = []
            if mi in g.tr and g.tr[mi] < 48: gap.append(I(f"s_memtime s[{92+2*(g.tr[mi]%2)}:{93+2*(g.tr[mi]%2)}]", 'salu'))
            if mi - 1 in g.tr and g.tr[mi - 1] > 0: gap.append(I(f"s_mov_b32 s{SST+g.tr[mi-1]-1}, s{92+2*((g.tr[mi-1]-1)%2)}", 'salu'))
            nready = 0; backlog = 0; force = 0
            while nready < len(Q) and Q[nready].pos < mi + 1:
                backlog += Q[nready].c
                if Q[nready].dl is not None and Q[nready].dl <= mi + 1: force = nready + 1
                nready += 1
            lim = 16 + (4 if backlog > g.o.backlog else 0) + (4 if backlog > 3 * g.o.backlog else 0)
            W = min(nready, g.o.look)
            taken = set()
            def pick(pred):
                sk = []
                for k in range(W):
                    if k in taken: continue
                    if pred(Q[k]) and indep(Q[k], sk): return k
                    sk.append(Q[k])
                return None
            while True:
                k = pick(lambda x: x.k in ('salu', 'lgkm0'))
                if k is None or (gapcost(gap + [Q[k]]) > 16 and Q[k].t.startswith('s_add')): break
                gap.append(Q[k]); taken.add(k)
            k = pick(lambda x: x.k in MEM)
            if k is not None and (Q[k].k != 'dsw' or mi - g.lastdsw >= g.o.dswsep):
                gap.append(Q[k]); taken.add(k)
                if Q[k].k == 'dsw': g.lastdsw = mi
            while True:
                k = pick(lambda x: x.k in ('valu', 'trans'))
                if k is None or gapcost(gap + [Q[k]]) > lim: break
                gap.append(Q[k]); taken.add(k)
            for k in range(force):
                if k not in taken: gap.append(Q[k]); taken.add(k); late += 1
            Q = [x for k, x in enumerate(Q) if k not in taken] if taken else Q
            gaps.append(gap)
        sys.stderr.write(f"mfma {len(M)} fillers {len(F)} forced {late} leftover {len(Q)}\n")
        return pre, M, gaps, Q + tail
    def finalize(g, parts):
        pre, M, gaps, tail = parts
        segs = [list(pre)] + [list(x) for x in gaps]; segs[-1] += tail
        def linear():
            for k, sg in enumerate(segs):
                if k: yield M[k - 1]
                for i in sg: yield i
        tags = {('v', RB): ('RB', 0), ('v', RB + 1): ('RB', 0)}
        for i in linear():
            for r, t in i.need:
                assert g.o.skip or tags.get(r) == t, (i.t, r, t, tags.get(r))
            if i.tag: tags[i.tag[0]] = i.tag[1]
        vm = []; lg = []; nw = 0; floor = 0
        head = {}
        def handle(i, k, lst):
            nonlocal vm, lg, nw
            regs = set(i.rd) | set(i.wr)
            for name, q, T, Tmin, mx in (('vmcnt', vm, g.o.tvm, g.o.hvm, 63), ('lgkmcnt', lg, g.o.tlg, g.o.hlg, 15)):
                last = -1
                for n, (dst, sg) in enumerate(q):
                    if dst & regs: last = n
                if last < 0: continue
                if q[last][1] >= k or k == len(segs) - 1 or k < floor:
                    while len(q) - 1 - last > mx: last += 1
                    lst.append(I(f"s_waitcnt {name}({len(q)-1-last})", 'salu')); nw += 1
                else:
                    best = k
                    for c in range(k, max(floor - 1, k - 12, q[last][1] + Tmin - 1), -1):
                        cur = lst + rest if c == k else segs[c]
                        if c in head or gapcost([I('', 'salu')] + cur) == gapcost(cur): best = c; break
                    while last + 1 < len(q) and best - q[last + 1][1] >= T: last += 1
                    n = sum(1 for e in q[last + 1:] if e[1] < best)
                    while n > mx: last += 1; n -= 1
                    h = head.setdefault(best, {})
                    h[name] = min(n, h.get(name, 99))
                if name == 'vmcnt': vm = q[last + 1:]
                else: lg = q[last + 1:]
        for k in range(len(segs)):
            lst = []
            for n, i in enumerate(segs[k]):
                rest = segs[k][n:]
                handle(i, k, lst)
                lst.append(i)
                if i.k == 'lgkm0': lg = []; floor = k + 1
                if i.k == 'vload': vm.append((set(i.wr), k))
                if i.k == 'vstore': vm.append((set(), k))
                if i.k == 'dsr': lg.append((set(i.wr), k))
                if i.k == 'dsw': lg.append((set(), k))
            rest = []
            if k < len(M): handle(M[k], k, lst)
            segs[k] = lst
        for k, h in head.items():
            segs[k].insert(0, I("s_waitcnt " + " ".join(f"{a}({b})" for a, b in h.items()), 'salu')); nw += 1
        st = [0] * 9
        for G in range(len(GROUPS)):
            for k in range(g.idx[(G, 0)], g.idx[(G + 1, 0)]):
                if k + 1 < len(segs) - 1: st[G // 8] += gapcost(segs[k + 1])
        sys.stderr.write(f"model cycles {st} sum {sum(st)} tail {gapcost(segs[-1])}\n")
        out = list(linear())
        res = []; nn = 0
        isv = lambda k: k in ('valu', 'trans')
        for i in out:
            req = 0; dist = 0
            for p in reversed(res[-12:]):
                w = 0
                pw, prd = set(p.wr), set(p.rd)
                if isv(p.k) and i.k == 'mfma' and pw & set(i.rd): w = 2
                if p.k == 'mfma':
                    if isv(i.k) and pw & (set(i.rd) | set(i.wr)): w = 8
                    if i.k in ('vstore', 'dsw', 'vload', 'dsr') and pw & (set(i.rd) | set(i.wr)): w = 8
                    if isv(i.k) and set(p.creads) & set(i.wr): w = max(w, 3)
                if p.k == 'trans' and i.k != 'trans' and pw & set(i.rd): w = max(w, 1)
                if p.k == 'trans' and i.k == 'trans' and pw & set(i.rd): w = max(w, 1)
                if p.k in ('vstore', 'dsw') and isv(i.k) and prd & set(i.wr): w = max(w, 2)
                req = max(req, w - dist)
                dist += (int(p.t.split()[1]) + 1) if p.t.startswith('s_nop') else 1
            if req > 0: res.append(I(f"s_nop {req-1}", 'salu')); nn += 1
            res.append(i)
        sys.stderr.write(f"waits {nw} nops {nn} total {len(res)}\n")
        return res
    def main_kernel(g):
        E = g.out.append
        E(f".globl {KN}\n.p2align 8\n.type {KN},@function\n{KN}:")
        E("s_cmp_ge_u32 s2, 256\ns_cbranch_scc1 L_end")
        if g.o.stamps: E(f"s_memtime s[{SST}:{SST+1}]\ns_memrealtime s[{SST+2}:{SST+3}]")
        E("s_load_dwordx2 s[4:5], s[0:1], 0\ns_load_dwordx2 s[6:7], s[0:1], 16\ns_load_dwordx2 s[26:27], s[0:1], 32")
        if g.o.map == 0:
            E("s_and_b32 s30, s2, 7\ns_lshr_b32 s31, s2, 3\ns_and_b32 s32, s31, 3\ns_lshr_b32 s31, s31, 2\ns_lshl_b32 s30, s30, 3\ns_add_u32 s30, s30, s31")
        elif g.o.map == 1:
            E("s_and_b32 s32, s2, 3\ns_lshr_b32 s30, s2, 2")
        else:
            E("s_and_b32 s32, s2, 1\ns_lshl_b32 s32, s32, 1\ns_bfe_u32 s31, s2, 0x10003\ns_add_u32 s32, s32, s31\ns_bfe_u32 s30, s2, 0x20001\ns_lshl_b32 s30, s30, 4\ns_lshr_b32 s31, s2, 4\ns_add_u32 s30, s30, s31")
        E("s_lshr_b32 s33, s30, 5\ns_and_b32 s34, s30, 31\ns_lshl_b32 s34, s34, 18")
        E("s_mul_i32 s33, s33, 8192000")
        E(f"v_lshlrev_b32 v{EPI}, 7, v0")
        E("v_and_b32 v20, 63, v0\nv_lshrrev_b32 v21, 6, v0")
        E("v_and_b32 v22, 15, v0")
        E("v_bfe_u32 v23, v0, 4, 1")
        E("v_lshrrev_b32 v24, 5, v0")
        E("v_mul_u32_u24 v25, 9, v24")
        E("v_lshlrev_b32 v26, 12, v25\nv_lshlrev_b32 v27, 9, v23\nv_lshlrev_b32 v28, 4, v22")
        E(f"v_add3_u32 v26, v26, v27, v28\ns_sub_u32 s35, s34, {4*4096}\nv_add_u32 v{XBASE}, s35, v26")
        E(f"v_and_b32 v26, 7, v22\nv_mul_u32_u24 v26, {S2}, v26\nv_lshrrev_b32 v27, 3, v22\nv_mul_u32_u24 v27, {S1}, v27\nv_lshlrev_b32 v28, 4, v23\nv_add3_u32 v26, v26, v27, v28")
        for i in range(9):
            E(f"v_add_u32 v27, {i}, v25\nv_and_b32 v28, 7, v27\nv_mul_u32_u24 v28, 288, v28\nv_lshrrev_b32 v27, 3, v27\nv_lshlrev_b32 v27, 5, v27\nv_add3_u32 v{WA+i}, v26, v27, v28")
        E(f"v_bfe_u32 v26, v0, 5, 1\nv_mul_u32_u24 v26, {S2}, v26\nv_mul_u32_u24 v27, {S1}, v23\nv_lshlrev_b32 v28, 4, v22\nv_add3_u32 v{RB}, v26, v27, v28\nv_add_u32 v{RB+1}, {ARR}, v{RB}")
        E(f"s_lshl_b32 s36, s32, 2\nv_add_u32 v26, s36, v21\nv_mul_u32_u24 v26, {STREAM}, v26\nv_lshlrev_b32 v27, 4, v20\nv_add_u32 v{WL}, v26, v27")
        E("v_lshrrev_b32 v26, 1, v22\nv_lshlrev_b32 v26, 15, v26\nv_and_b32 v27, 1, v22\nv_lshlrev_b32 v27, 9, v27\nv_lshlrev_b32 v28, 5, v21\nv_add3_u32 v26, v26, v27, v28")
        E(f"v_lshrrev_b32 v27, 4, v20\nv_lshlrev_b32 v27, 3, v27\ns_lshl_b32 s36, s32, 7\ns_add_u32 s36, s36, s34\nv_add3_u32 v{SB}, v26, v27, s36")
        E(f"s_mov_b32 s{SWO}, 0\ns_mov_b32 s{SC1}, {hex(fb(2*1.4426950408889634))}\ns_mov_b32 s{SC2}, {hex(fb(-1.4426950408889634))}\ns_mov_b32 s{SCL}, {hex(fb(32.0))}\ns_mov_b32 s{SMASK}, 0xffff0000")
        E("s_waitcnt lgkmcnt(0)")
        E(f"s_add_u32 s{SX}, s4, s33\ns_addc_u32 s{SX+1}, s5, 0\ns_mov_b32 s{SX+2}, 8192000\ns_mov_b32 s{SX+3}, 0x20000")
        E(f"s_mov_b32 s{SW}, s26\ns_mov_b32 s{SW+1}, s27\ns_mov_b32 s{SW+2}, {0x10000000 if g.o.stamps else 16*STREAM}\ns_mov_b32 s{SW+3}, 0x20000")
        E(f"s_add_u32 s{SO}, s6, s33\ns_addc_u32 s{SO+1}, s7, 0\ns_mov_b32 s{SO+2}, 8192000\ns_mov_b32 s{SO+3}, 0x20000")
        E(f"s_getpc_b64 s[28:29]\nL_pc:\ns_mov_b32 s30, L_end-L_pc\ns_mov_b32 s31, 0x20000\ns_mov_b32 s36, 0\ns_mov_b32 s37, 32768\ns_mov_b32 s38, 65536\ns_mov_b32 s39, 98304")
        for i in g.finalize(g.body()): E(i.t)
        if g.o.stamps:
            n = 12
            if g.o.trace < 0: E(f"s_waitcnt vmcnt(0)\ns_memtime s[{SST+44}:{SST+45}]\ns_memrealtime s[{SST+46}:{SST+47}]\ns_waitcnt lgkmcnt(0)")
            E(f"v_mbcnt_lo_u32_b32 v20, -1, 0\nv_mbcnt_hi_u32_b32 v20, -1, v20\nv_lshlrev_b32 v21, 4, v20\nv_sub_u32 v21, v{WL}, v21\ns_lshl_b32 s36, s32, 2\ns_mul_i32 s36, s36, {STREAM}\nv_subrev_u32 v21, s36, v21\nv_or_b32 v21, v21, v20")
            E("v_cmp_eq_u32 vcc, 0, v21\ns_and_saveexec_b64 s[90:91], vcc\ns_cbranch_execz L_end")
            E(f"s_mul_i32 s36, s2, {16*n}\ns_add_u32 s36, s36, {200<<20}")
            for k in range(n):
                for j in range(4): E(f"v_mov_b32 v{24+j}, s{SST+4*k+j}")
                E(f"buffer_store_dwordx4 v[24:27], v21, s[{SW}:{SW+3}], s36 offen offset:{16*k}\ns_nop 1")
        E("L_end:\ns_endpgm")
    def prep_kernel(g):
        E = g.out.append
        E(f".globl {PN}\n.p2align 8\n.type {PN},@function\n{PN}:")
        E("s_cmp_ge_u32 s2, 256\ns_cbranch_scc1 LP_end")
        E("s_load_dwordx2 s[4:5], s[0:1], 8\ns_load_dwordx2 s[6:7], s[0:1], 32")
        E("s_and_b32 s20, s2, 1\ns_bfe_u32 s21, s2, 0x50001\ns_lshr_b32 s22, s2, 6")
        for i in range(32): E(f"v_mov_b32 v{8+i}, 0")
        E("v_lshlrev_b32 v1, 1, v0\ns_lshl_b32 s23, s20, 9\ns_lshl_b32 s24, s21, 13\ns_add_u32 s23, s23, s24\nv_add_u32 v1, s23, v1\nv_add_u32 v2, 4096, v1")
        E("s_lshl_b32 s25, s22, 20")
        E("s_waitcnt lgkmcnt(0)")
        E("s_mov_b32 s8, s4\ns_mov_b32 s9, s5\ns_mov_b32 s10, 3932160\ns_mov_b32 s11, 0x20000")
        E(f"s_mov_b32 s12, s6\ns_mov_b32 s13, s7\ns_mov_b32 s14, {16*STREAM}\ns_mov_b32 s15, 0x20000")
        def ld(r):
            for i in range(8): E(f"buffer_load_short_d16_hi v{8+8*r+i}, v{1+i//4}, s[8:11], s26 offen offset:{(i%4)*1024}")
        E("s_cmp_eq_u32 s22, 0\ns_cbranch_scc1 LP_skip0\ns_sub_u32 s26, s25, 262144")
        ld(0)
        E("LP_skip0:")
        for r in range(1, 4):
            E(f"s_add_u32 s26, s25, {(r-1)*262144}"); ld(r)
        E(f"v_lshrrev_b32 v3, 4, v0\nv_mul_u32_u24 v3, {STREAM}, v3\nv_and_b32 v4, 15, v0\nv_lshlrev_b32 v4, 4, v4\nv_add_u32 v3, v3, v4")
        E("s_lshr_b32 s27, s21, 4\ns_bfe_u32 s28, s21, 0x20001\ns_and_b32 s29, s21, 1\ns_lshl_b32 s29, s29, 1\ns_bfe_u32 s30, s21, 0x10003\ns_add_u32 s29, s29, s30\ns_lshl_b32 s29, s29, 8")
        E("v_add_u32 v3, s29, v3")
        E("s_waitcnt vmcnt(0)")
        g_ = lambda r: 8 + 8 * r
        T = {'12': 40, '32': 48, '21': 56, '23': 64, '22': 72, '11': g_(0), '13': g_(1), '31': g_(2), '33': g_(3)}
        for i in range(8):
            E(f"v_add_f32 v{40+i}, v{g_(0)+i}, v{g_(1)+i}\nv_add_f32 v{48+i}, v{g_(2)+i}, v{g_(3)+i}\nv_add_f32 v{56+i}, v{g_(0)+i}, v{g_(2)+i}\nv_add_f32 v{64+i}, v{g_(1)+i}, v{g_(3)+i}\nv_add_f32 v{72+i}, v{40+i}, v{48+i}")
        for n, pt in enumerate(['22', '23', '21', '12', '32', '13', '33', '31', '11']):
            nt = len(taps(pt)); k0 = taps(pt)[0]
            base = GOFF[(pt, 0, 0)]; dstr = GOFF[(pt, 1, 0)] - base; kstr = 2 * nt
            o = 80 + 4 * n
            if pt == '11': E("s_cmp_eq_u32 s22, 0\ns_cbranch_scc1 LP_end")
            for i in range(4): E(f"v_cvt_pk_bf16_f32 v{o+i}, v{T[pt]+2*i}, v{T[pt]+2*i+1}")
            E(f"s_mul_i32 s31, s27, {dstr}\ns_mul_i32 s32, s28, {kstr}\ns_add_u32 s31, s31, s32\ns_mul_i32 s32, s20, {nt}\ns_add_u32 s31, s31, s32\ns_add_u32 s31, s31, s22\ns_add_u32 s31, s31, {base-k0}\ns_lshl_b32 s31, s31, 10")
            E(f"buffer_store_dwordx4 v[{o}:{o+3}], v3, s[12:15], s31 offen")
        E("LP_end:\ns_endpgm")
    def emit(g):
        E = g.out.append
        E(f"; F(4,4) nested fast-FIR (Karatsuba x2) dilated conv + gated activation; generated by gen.py")
        E(f"; @launch kernel={PN} grid=(256,1,1) block=(256,1,1) lds=0")
        E(f"; @launch kernel={KN} grid=(256,1,1) block=(256,1,1) lds={LDS_BYTES}")
        E('.amdgcn_target "amdgcn-amd-amdhsa--gfx950"\n.text')
        g.prep_kernel(); g.main_kernel()
        for n, nv, ao in ((PN, 120, 120), (KN, 512, 256)):
            E(f""".section .rodata,"a"
.p2align 6
.amdhsa_kernel {n}
  .amdhsa_next_free_vgpr {nv}
  .amdhsa_next_free_sgpr 100
  .amdhsa_accum_offset {ao}
  .amdhsa_group_segment_fixed_size 0
  .amdhsa_kernarg_size 40
  .amdhsa_user_sgpr_count 2
  .amdhsa_user_sgpr_kernarg_segment_ptr 1
  .amdhsa_system_sgpr_workgroup_id_x 1
  .amdhsa_float_denorm_mode_32 3
.end_amdhsa_kernel""")
        return "\n".join(g.out) + "\n"

if __name__ == '__main__':
    ap = argparse.ArgumentParser()
    ap.add_argument('-o', default='standalone__autoregressive_conv_wavernn__speech.s')
    ap.add_argument('--stamps', action='store_true'); ap.add_argument('--cap', type=int, default=2); ap.add_argument('--backlog', type=int, default=6)
    ap.add_argument('--tvm', type=int, default=64); ap.add_argument('--tlg', type=int, default=10)
    ap.add_argument('--wflags', default=''); ap.add_argument('--sflags', default='')
    ap.add_argument('--skip', default=''); ap.add_argument('--pf', type=int, default=1); ap.add_argument('--map', type=int, default=0); ap.add_argument('--look', type=int, default=10); ap.add_argument('--dswsep', type=int, default=6)
    ap.add_argument('--hvm', type=int, default=48); ap.add_argument('--hlg', type=int, default=8); ap.add_argument('--trace', type=int, default=-1); ap.add_argument('--tstep', type=int, default=8)
    o = ap.parse_args()
    o.skip = [x for x in o.skip.split(',') if x]
    if o.wflags: o.wflags = ' ' + o.wflags
    if o.sflags: o.sflags = ' ' + o.sflags
    open(o.o, 'w').write(Gen(o).emit())
```

```python
import sys, struct, argparse
KN = "standalone__autoregressive_conv_wavernn__speech_kernel"
PN = "wprep_kernel"
fb = lambda f: struct.unpack('<I', struct.pack('<f', f))[0]

S1, S2, ARR, BUF = 2304, 4624, 36992, 73984
LDS_BYTES = 2 * BUF
STREAM = 560 * 1024

STAGES = [(('22', 0), ('22', 1)),
          (('23', 0), ('21', 0)), (('23', 1), ('21', 1)),
          (('12', 0), ('32', 0)), (('12', 1), ('32', 1)),
          (('13', 0), ('33', 0)), (('13', 1), ('33', 1)),
          (('11', 0), ('31', 0)), (('11', 1), ('31', 1))]
SET = {'22': 0, '23': 1, '21': 0, '12': 2, '32': 3, '13': 0, '33': 1, '11': 2, '31': 3}
FORK = {'22': None, '23': 0, '12': 0, '32': 0, '13': 1}
QOF = {0: 1, 1: 3, 2: 0, 3: 2}
PTYPE = ['A', 'B', 'B', 'C', 'C', 'D', 'D', 'E', 'E']
def taps(pt): return [1, 2, 3] if pt == '11' else [0, 1, 2, 3]

GROUPS = []
_off = 0
for s, st in enumerate(STAGES):
    for a, (pt, dh) in enumerate(st):
        for kp in range(4):
            GROUPS.append((s, a, pt, dh, kp, _off)); _off += 2 * len(taps(pt))
assert _off == 560
GOFF = {(pt, dh, kp): off for (s, a, pt, dh, kp, off) in GROUPS}

def V(n, c=1): return [('v', n + i) for i in range(c)]
def A(n, c=1): return [('a', n + i) for i in range(c)]
def vr(n, c): return f"v[{n}:{n+c-1}]"
def ar(n, c): return f"a[{n}:{n+c-1}]"
class I:
    __slots__ = ('t', 'k', 'rd', 'wr', 'c', 'need', 'tag', 'pos', 'dl', 'seq', 'creads')
    def __init__(s, t, k, rd=(), wr=(), need=None, tag=None, creads=()):
        s.t = t; s.k = k; s.rd = list(rd); s.wr = list(wr); s.need = need or []; s.tag = tag
        s.c = {'trans': 2, 'dsw': 2, 'salu': 0}.get(k, 1); s.pos = None; s.dl = None; s.creads = list(creads)

WA = 1; RB = 10; WL = 12; XA = 13; XBASE = 15; SB = 0
WR = 16; XF = 112; RAW = 156; NRAW = 12; PERS = 204; TMP = 212; OUT = 220; EPI = 236; ACT = 252
SX, SW, SO = 8, 12, 16
SWO = 20; SC1, SC2, SCL, SMASK = 21, 22, 23, 24
SST = 40

def gapcost(gap):
    t = 4; sawv = False
    for i in gap:
        if i.k in ('valu', 'trans'): t = max(t, 8) + (8 if i.k == 'trans' else 4); sawv = True
        elif i.k == 'dsw': t += 24 + (8 if sawv else 0)
        elif i.k in ('vload', 'dsr', 'vstore'): t += 8 + (8 if sawv else 0)
        else: t += 4
    return max(t, 16)

class Gen:
    def __init__(g, opt):
        g.o = opt; g.out = []; g.tr = {}; g.lastdsw = -99
    def mfmas(g):
        M = []; g.idx = {}
        for G, (s, a, pt, dh, kp, off) in enumerate(GROUPS):
            tp = taps(pt); st = SET[pt]
            first = (kp == 0 and dh == 0 and pt in FORK)
            for j in range(8):
                g.idx[(G, j)] = len(M)
                for h in range(2):
                    for ki, k in enumerate(tp):
                        acc = st * 64 + (j * 2 + h) * 4
                        w = WR + ((G % 3) * 8 + h * len(tp) + ki) * 4
                        x = XF + (j + k) * 4
                        if first and ki == 0:
                            if FORK[pt] is None: cs, cr = '0', []
                            else:
                                c = FORK[pt] * 64 + (j * 2 + h) * 4; cs, cr = ar(c, 4), A(c, 4)
                        else: cs, cr = ar(acc, 4), A(acc, 4)
                        M.append(I(f"v_mfma_f32_16x16x32_bf16 {ar(acc,4)}, {vr(w,4)}, {vr(x,4)}, {cs}", 'mfma',
                                   rd=V(w, 4) + V(x, 4) + cr, wr=A(acc, 4), creads=cr,
                                   need=[(('v', w), ('W', G, h, k)), (('v', x), ('X', G, j + k))]))
        g.idx[(len(GROUPS), 0)] = len(M)
        for s in range(9): M[g.idx[(8 * s, 0)]].t = f"L_st{s}:\n" + M[g.idx[(8 * s, 0)]].t
        return M
    def P(g, s, gr, j=0): return g.idx[(s * 8 + gr, j)]
    def wloads(g, G):
        s, a, pt, dh, kp, off = GROUPS[G]; tp = taps(pt); L = []
        for h in range(2):
            for ki, k in enumerate(tp):
                f = off + h * len(tp) + ki
                if f % 4 == 0 and f: L.append(I(f"s_add_u32 s{SWO}, s{SWO}, 4096" if not ('wwrap' in g.o.skip and f % 64 == 0) else f"s_add_u32 s{SWO}, s{SWO}, {hex((1<<32)-61440)}", 'salu', rd=[('s', SWO)], wr=[('s', SWO)]))
                w = WR + ((G % 3) * 8 + h * len(tp) + ki) * 4
                L.append(I(f"buffer_load_dwordx4 {vr(w,4)}, v{WL}, s[{SW}:{SW+3}], s{SWO} offen offset:{(f%4)*1024}{g.o.wflags}", 'vload',
                           rd=V(WL) + [('s', SWO)], wr=V(w, 4), tag=(('v', w), ('W', G, h, k))))
        return L
    def xread(g, G, c):
        s, a, pt, dh, kp, off = GROUPS[G]
        x = XF + c * 4; imm = 2 * kp * S2 + (c % 8) * 288 + (c // 8) * 32
        return I(f"ds_read_b128 {vr(x,4)}, v{RB+a} offset:{imm}", 'dsr', rd=V(RB + a), wr=V(x, 4), tag=(('v', x), ('X', G, c)),
                 need=[(('v', RB + a), ('RB', s))])
    def spread(g, L, p0, p1, dl=None):
        tot = sum(i.c for i in L); acc = 0
        for i in L:
            i.pos = p0 + (p1 - p0) * acc / max(tot, 1); acc += i.c
            i.dl = dl
        return L
    def production(g):
        rows = []
        progs = []
        def newrow(s, ai, imm):
            rows.append((s, ai, imm + STAGES[s][0][1] * 256)); return len(rows) - 1
        rr = lambda n: RAW + (n % NRAW) * 4
        tctr = [0]
        def tmp():
            t = TMP + tctr[0] % 8; tctr[0] += 1; return t
        octr = [0]
        def lo(dst, n, i): return I(f"v_lshlrev_b32 v{dst}, 16, v{rr(n)+i}", 'valu', rd=V(rr(n)+i), wr=V(dst), need=[(('v', rr(n)), ('R', n))], tag=('use', n))
        def hi(dst, n, i): return I(f"v_and_b32 v{dst}, s{SMASK}, v{rr(n)+i}", 'valu', rd=V(rr(n)+i), wr=V(dst), need=[(('v', rr(n)), ('R', n))], tag=('use', n))
        def sub(d, a, b): return I(f"v_sub_f32 v{d}, v{a}, v{b}", 'valu', rd=V(a) + V(b), wr=V(d))
        def cvt(d, a, b): return I(f"v_cvt_pk_bf16_f32 v{d}, v{a}, v{b}", 'valu', rd=V(a) + V(b), wr=V(d))
        def wr(s, i, arr, src): return I(f"ds_write_b128 v{WA+i}, {vr(src,4)} offset:{arr*ARR}", 'dsw', rd=V(WA + i) + V(src, 4), need=[(('v', WA + i), ('WA', s))])
        for s in range(1, 9):
            ty = PTYPE[s]; L = []
            for i in range(9):
                op = 'v_add_u32' if s % 2 else 'v_subrev_u32'
                L.append(I(f"{op} v{WA+i}, {BUF}, v{WA+i}", 'valu', rd=V(WA + i), wr=V(WA + i), tag=(('v', WA + i), ('WA', s))))
            if ty == 'C':
                n1 = newrow(s, 0, 2048)
                for d in range(4): L += [lo(PERS + 2*d, n1, d), hi(PERS + 2*d + 1, n1, d)]
            elif ty in 'DE':
                if ty == 'D': nb, na = newrow(s, 0, 2048), newrow(s, 0, 3072)
                else: na, nb = newrow(s, 0, 1024), newrow(s, 0, 2048)
                for d in range(4):
                    t0, t1 = tmp(), tmp()
                    L += [lo(PERS + 2*d, na, d), hi(PERS + 2*d + 1, na, d), lo(t0, nb, d), hi(t1, nb, d),
                          sub(PERS + 2*d, PERS + 2*d, t0), sub(PERS + 2*d + 1, PERS + 2*d + 1, t1)]
            pend = None
            for i in range(9):
                stepstart = len(L)
                o0 = OUT + (octr[0] % 2) * 8; o1 = o0 + 4; octr[0] += 1
                if ty == 'B':
                    n2, n3, n4 = newrow(s, i, 3072), newrow(s, i + 1, 0), newrow(s, i + 1, 1024)
                    for d in range(4):
                        a, b, c, e, f, h = [tmp() for _ in range(6)]
                        L += [lo(a, n3, d), hi(b, n3, d), lo(c, n4, d), hi(e, n4, d), lo(f, n2, d), hi(h, n2, d),
                              sub(c, c, a), sub(e, e, b), sub(f, f, a), sub(h, h, b), cvt(o0 + d, c, e), cvt(o1 + d, f, h)]
                elif ty == 'C':
                    n3, n5 = newrow(s, i + 1, 0), newrow(s, i + 1, 2048)
                    for d in range(4):
                        a, b, c, e = [tmp() for _ in range(4)]
                        p0, p1 = PERS + 2*d, PERS + 2*d + 1
                        L += [lo(a, n3, d), hi(b, n3, d), sub(c, p0, a), sub(e, p1, b), lo(p0, n5, d), hi(p1, n5, d), cvt(o0 + d, c, e),
                              sub(a, p0, a), sub(b, p1, b), cvt(o1 + d, a, b)]
                else:
                    if ty == 'D':
                        n3, n4, n5, n6 = [newrow(s, i + 1, 1024 * q) for q in range(4)]
                        mp, mm, np_, nm = n4, n3, n6, n5
                    else:
                        n2 = newrow(s, i, 3072); n3, n4, n5 = [newrow(s, i + 1, 1024 * q) for q in range(3)]
                        mp, mm, np_, nm = n2, n3, n4, n5
                    for d in range(4):
                        a, b, c, e = [tmp() for _ in range(4)]
                        p0, p1 = PERS + 2*d, PERS + 2*d + 1
                        L += [lo(a, mp, d), hi(b, mp, d), lo(c, mm, d), hi(e, mm, d), sub(a, a, c), sub(b, b, e),
                              sub(c, p0, a), sub(e, p1, b), lo(p0, np_, d), hi(p1, np_, d), cvt(o0 + d, c, e),
                              lo(c, nm, d), hi(e, nm, d), sub(p0, p0, c), sub(p1, p1, e), sub(a, p0, a), sub(b, p1, b), cvt(o1 + d, a, b)]
                w0, w1 = wr(s, i, 0, o0), wr(s, i, 1, o1)
                if pend is not None:
                    L.insert(stepstart + (len(L) - stepstart) // 2, pend)
                L.append(w0); pend = w1
                if i == 8:
                    pad = I("", 'pad'); pad.c = 10
                    L += [pad, w1]
            progs.append(L)
        last = {}
        for ps, L in enumerate(progs):
            for k, op in enumerate(L):
                if op.tag and op.tag[0] == 'use': last[op.tag[1]] = (ps, k); op.tag = None
        cur = {}
        def load(n):
            s, ai, imm = rows[n]; r = XA + ai % 2; L = []
            if cur.get(r) != (s, ai):
                L.append(I(f"v_add_u32 v{r}, {4096*ai}, v{XBASE}", 'valu', rd=V(XBASE), wr=V(r))); cur[r] = (s, ai)
            L.append(I(f"buffer_load_dwordx4 {vr(rr(n),4)}, v{r}, s[{SX}:{SX+3}], 0 offen offset:{imm}", 'vload', rd=V(r), wr=V(rr(n), 4), tag=(('v', rr(n)), ('R', n))))
            return L
        head = []
        for n in range(NRAW): head += load(n)
        ins = {}
        prev = (0, -1)
        for n in range(NRAW, len(rows)):
            at = max(last[n - NRAW], prev); prev = at
            ins.setdefault(at, []).extend(load(n))
        res = []
        for ps, L in enumerate(progs):
            R = []
            for k, op in enumerate(L):
                R.append(op); R += ins.get((ps, k), [])
            res.append(R)
        return head, res
    def accop(g, dst, src, sign, tiles):
        L = []; n = 0
        for t in tiles:
            for r in range(0, 4, 2):
                d = dst * 64 + t * 4 + r; s_ = src * 64 + t * 4 + r
                T = [ACT, ACT + 1, ACT + 2, ACT + 3]
                op = 'v_add_f32' if sign > 0 else 'v_sub_f32'
                L += [I(f"v_accvgpr_read_b32 v{T[0]}, a{d}", 'valu', rd=A(d), wr=V(T[0])), I(f"v_accvgpr_read_b32 v{T[1]}, a{s_}", 'valu', rd=A(s_), wr=V(T[1])),
                      I(f"v_accvgpr_read_b32 v{T[2]}, a{d+1}", 'valu', rd=A(d+1), wr=V(T[2])), I(f"v_accvgpr_read_b32 v{T[3]}, a{s_+1}", 'valu', rd=A(s_+1), wr=V(T[3])),
                      I(f"{op} v{T[0]}, v{T[0]}, v{T[1]}", 'valu', rd=V(T[0]) + V(T[1]), wr=V(T[0])), I(f"{op} v{T[2]}, v{T[2]}, v{T[3]}", 'valu', rd=V(T[2]) + V(T[3]), wr=V(T[2])),
                      I(f"v_accvgpr_write_b32 a{d}, v{T[0]}", 'valu', rd=V(T[0]), wr=A(d)), I(f"v_accvgpr_write_b32 a{d+1}, v{T[2]}", 'valu', rd=V(T[2]), wr=A(d+1))]
        return L
    def epi(g, st, banks):
        L = []; q = QOF[st]
        for j in range(8):
            F = banks[j % len(banks)]; Gq = F + 4
            f = st * 64 + j * 8; gg = f + 4
            R = range(4)
            L += [I(f"v_accvgpr_read_b32 v{F+r}, a{f+r}", 'valu', rd=A(f+r), wr=V(F+r)) for r in R]
            L += [I(f"v_accvgpr_read_b32 v{Gq+r}, a{gg+r}", 'valu', rd=A(gg+r), wr=V(Gq+r)) for r in R]
            L += [I(f"v_mul_f32 v{F+r}, s{SC1}, v{F+r}", 'valu', rd=V(F+r), wr=V(F+r)) for r in R]
            L += [I(f"v_mul_f32 v{Gq+r}, s{SC2}, v{Gq+r}", 'valu', rd=V(Gq+r), wr=V(Gq+r)) for r in R]
            L += [I(f"v_med3_f32 v{F+r}, v{F+r}, -s{SCL}, s{SCL}", 'valu', rd=V(F+r), wr=V(F+r)) for r in R]
            L += [I(f"v_exp_f32 v{Gq+r}, v{Gq+r}", 'trans', rd=V(Gq+r), wr=V(Gq+r)) for r in R]
            L += [I(f"v_exp_f32 v{F+r}, v{F+r}", 'trans', rd=V(F+r), wr=V(F+r)) for r in R]
            L += [I(f"v_add_f32 v{Gq+r}, 1.0, v{Gq+r}", 'valu', rd=V(Gq+r), wr=V(Gq+r)) for r in R]
            L += [I(f"v_fma_f32 v{Gq+r}, v{F+r}, v{Gq+r}, v{Gq+r}", 'valu', rd=V(Gq+r) + V(F+r), wr=V(Gq+r)) for r in R]
            L += [I(f"v_rcp_f32 v{Gq+r}, v{Gq+r}", 'trans', rd=V(Gq+r), wr=V(Gq+r)) for r in R]
            L += [I(f"v_fma_f32 v{F+r}, v{F+r}, v{Gq+r}, -v{Gq+r}", 'valu', rd=V(Gq+r) + V(F+r), wr=V(F+r)) for r in R]
            L += [I(f"v_add_u32 v{Gq}, {4096*j}, v{SB}", 'valu', rd=V(SB), wr=V(Gq)),
                  I(f"v_cvt_pk_bf16_f32 v{F}, v{F}, v{F+1}", 'valu', rd=V(F, 2), wr=V(F)),
                  I(f"v_cvt_pk_bf16_f32 v{F+1}, v{F+2}, v{F+3}", 'valu', rd=V(F+2, 2), wr=V(F+1)),
                  I(f"buffer_store_dwordx2 {vr(F,2)}, v{Gq}, s[{SO}:{SO+3}], 0 offen offset:{q*1024}{g.o.sflags}", 'vstore', rd=V(F, 2) + V(Gq))]
        return L
    def stamp(g, n):
        if not g.o.stamps or g.o.trace >= 0: return []
        return [I(f"s_memtime s[{SST+4*n}:{SST+4*n+1}]", 'salu'), I(f"s_memrealtime s[{SST+4*n+2}:{SST+4*n+3}]", 'salu')]
    def barrier(g, n):
        return g.stamp(n) + [I("s_waitcnt lgkmcnt(0)", 'lgkm0'), I("s_barrier", 'salu')]
    def body(g):
        M = g.mfmas(); NG = len(GROUPS); F = []
        head, prods = g.production()
        pre = []
        for i in range(9):
            r = XA + i % 2
            pre.append(I(f"v_add_u32 v{r}, {4096*(i+1)}, v{XBASE}", 'valu', rd=V(XBASE), wr=V(r)))
            for dh in range(2):
                d = RAW + (i * 2 + dh) * 4
                pre.append(I(f"buffer_load_dwordx4 {vr(d,4)}, v{r}, s[{SX}:{SX+3}], 0 offen offset:{dh*256}", 'vload', rd=V(r), wr=V(d, 4)))
        pre += g.wloads(0) + g.wloads(1)
        if g.o.pf:
            for k in range(g.o.pf):
                pre.append(I(f"buffer_load_dword v{EPI+1+k}, v{EPI}, s[28:31], s{36+k} offen", 'vload', rd=V(EPI), wr=V(EPI + 1 + k)))
        for i in range(9):
            for dh in range(2):
                d = RAW + (i * 2 + dh) * 4
                pre.append(I(f"ds_write_b128 v{WA+i}, {vr(d,4)} offset:{dh*ARR}", 'dsw', rd=V(WA + i) + V(d, 4)))
        pre += g.barrier(1)
        pre += [g.xread(0, c) for c in range(7)]
        pre += head
        for G in range(2, NG):
            F += g.spread(g.wloads(G), g.idx[(G - 2, 0)] + 1, g.idx[(G - 1, 0)] - 2, dl=g.idx[(G - 1, 0)] + 8)
        for G in range(NG):
            s = GROUPS[G][0]; used = sorted({j + k for j in range(8) for k in taps(GROUPS[G][2])})
            lastg = (G % 8 == 7)
            for c in used:
                if c >= 7:
                    op = g.xread(G, c)
                    op.pos = g.idx[(G, 0)] + 2 * (c - 7) + 0.5 if lastg else g.idx[(G, c - 7)] + 2.5
                    op.dl = g.idx[(G, c - 3)] - 10 if not lastg else g.idx[(G, 1)] + 2; F.append(op)
                elif G > 0:
                    op = g.xread(G, c)
                    p = g.idx[(G - 1, c + 1)] + 4.5
                    if G % 8 == 0: p = max(p, g.idx[(G - 1, 2)] + 1.5 + 2 * c)
                    op.pos = p; op.dl = max(p + 1, g.idx[(G, max(0, c - 3))] - 10); F.append(op)
            if lastg and s < 8:
                L = []
                for a in range(2):
                    op = 'v_add_u32' if (s + 1) % 2 else 'v_subrev_u32'
                    L.append(I(f"{op} v{RB+a}, {BUF}, v{RB+a}", 'valu', rd=V(RB + a), wr=V(RB + a), tag=(('v', RB + a), ('RB', s + 1))))
                L[0].pos = g.idx[(G, 1)] + 4.1; L[1].pos = g.idx[(G, 1)] + 5.1
                B = g.barrier(s + 2)
                for i in B: i.pos = g.idx[(G, 2)] + 0.2; i.c = 0
                for i in L + B: i.dl = g.idx[(G, 2)] + 1
                F += L + B
        for s in range(8):
            p0 = g.P(s, 0) + (96 if s == 0 else 0); p1 = g.P(s, 7, 1)
            F += g.spread(prods[s], p0, p1, dl=g.P(s, 7, 2))
        if g.o.pf:
            for s in range(1, 7):
                a = I(f"s_mov_b32 s36, L_st{s+1}-L_pc", 'salu', wr=[('s', 36)])
                b = I(f"buffer_load_dword v{EPI+1}, v{EPI}, s[28:31], s36 offen", 'vload', rd=V(EPI) + [('s', 36)], wr=V(EPI + 1))
                a.pos = g.P(s, 0) + 20; b.pos = g.P(s, 0) + 21; F += [a, b]
        F += g.spread(g.accop(1, 0, -1, range(16)), g.P(3, 0) + 12, g.P(3, 7), dl=g.P(4, 7))
        F += g.spread(g.accop(1, 3, +1, range(0, 6)), g.P(5, 1) + 12, g.P(5, 4) - 12, dl=g.P(5, 4) - 4)
        F += g.spread(g.accop(0, 2, +1, range(0, 8)), g.P(5, 4) + 12, g.P(6, 0) - 12, dl=g.P(6, 0) - 4)
        F += g.spread(g.accop(1, 3, +1, range(6, 16)), g.P(6, 0) + 12, g.P(6, 4) - 12, dl=g.P(6, 4) - 4)
        F += g.spread(g.accop(0, 2, +1, range(8, 16)), g.P(6, 4) + 12, g.P(7, 0) - 12, dl=g.P(7, 0) - 4)
        F += g.spread(g.epi(0, [EPI, EPI + 8]), g.P(7, 0) + 4, g.P(8, 0) - 4, dl=g.P(8, 0))
        F += g.spread(g.epi(1, [EPI, EPI + 8]), g.P(8, 0) + 4, g.P(8, 4), dl=g.P(8, 4) + 12)
        F += g.spread(g.epi(2, [EPI, EPI + 8]), g.P(8, 4) + 16, len(M) - 2, dl=len(M))
        tail = g.stamp(10) + g.epi(3, [RAW, RAW + 8, RAW + 16, RAW + 24])
        F = [i for i in F if i.k != 'pad']
        if g.o.trace >= 0:
            for n in range(49):
                g.tr[g.o.trace + n * g.o.tstep] = n
        sk = g.o.skip
        if 'valu' in sk: F = [i for i in F if i.k not in ('valu', 'trans') or i.t.startswith('v_add_u32') or i.t.startswith('v_subrev_u32')]
        if 'wld' in sk: F = [i for i in F if not (i.k == 'vload' and f's[{SW}:' in i.t)]
        if 'xld' in sk: F = [i for i in F if not (i.k == 'vload' and f's[{SX}:' in i.t)]
        if 'dsr' in sk: F = [i for i in F if i.k != 'dsr']
        if 'dsw' in sk: F = [i for i in F if i.k != 'dsw']
        if 'st' in sk: F = [i for i in F if i.k != 'vstore']
        if 'bar' in sk: F = [i for i in F if i.t != 's_barrier']
        for n, i in enumerate(F): i.seq = n
        F.sort(key=lambda i: (i.pos, i.seq))
        MEM = ('vload', 'dsr', 'dsw', 'vstore')
        def indep(x, skipped):
            xr, xw = set(x.rd), set(x.wr)
            for y in skipped:
                if y.k == 'lgkm0' or y.t == 's_barrier' or x.k == 'lgkm0' or x.t == 's_barrier': return False
                if xr & set(y.wr) or xw & set(y.rd) or xw & set(y.wr): return False
            return True
        gaps = []; Q = list(F); late = 0
        for mi, m in enumerate(M):
            gap = []
            if mi in g.tr and g.tr[mi] < 48: gap.append(I(f"s_memtime s[{92+2*(g.tr[mi]%2)}:{93+2*(g.tr[mi]%2)}]", 'salu'))
            if mi - 1 in g.tr and g.tr[mi - 1] > 0: gap.append(I(f"s_mov_b32 s{SST+g.tr[mi-1]-1}, s{92+2*((g.tr[mi-1]-1)%2)}", 'salu'))
            nready = 0; backlog = 0; force = 0
            while nready < len(Q) and Q[nready].pos < mi + 1:
                backlog += Q[nready].c
                if Q[nready].dl is not None and Q[nready].dl <= mi + 1: force = nready + 1
                nready += 1
            lim = 16 + (4 if backlog > g.o.backlog else 0) + (4 if backlog > 3 * g.o.backlog else 0)
            W = min(nready, g.o.look)
            taken = set()
            def pick(pred):
                sk = []
                for k in range(W):
                    if k in taken: continue
                    if pred(Q[k]) and indep(Q[k], sk): return k
                    sk.append(Q[k])
                return None
            while True:
                k = pick(lambda x: x.k in ('salu', 'lgkm0'))
                if k is None or (gapcost(gap + [Q[k]]) > 16 and Q[k].t.startswith('s_add')): break
                gap.append(Q[k]); taken.add(k)
            k = pick(lambda x: x.k in MEM)
            if k is not None and (Q[k].k != 'dsw' or mi - g.lastdsw >= g.o.dswsep):
                gap.append(Q[k]); taken.add(k)
                if Q[k].k == 'dsw': g.lastdsw = mi
            while True:
                k = pick(lambda x: x.k in ('valu', 'trans'))
                if k is None or gapcost(gap + [Q[k]]) > lim: break
                gap.append(Q[k]); taken.add(k)
            for k in range(force):
                if k not in taken: gap.append(Q[k]); taken.add(k); late += 1
            Q = [x for k, x in enumerate(Q) if k not in taken] if taken else Q
            gaps.append(gap)
        sys.stderr.write(f"mfma {len(M)} fillers {len(F)} forced {late} leftover {len(Q)}\n")
        return pre, M, gaps, Q + tail
    def finalize(g, parts):
        pre, M, gaps, tail = parts
        segs = [list(pre)] + [list(x) for x in gaps]; segs[-1] += tail
        def linear():
            for k, sg in enumerate(segs):
                if k: yield M[k - 1]
                for i in sg: yield i
        tags = {('v', RB): ('RB', 0), ('v', RB + 1): ('RB', 0)}
        for i in linear():
            for r, t in i.need:
                assert g.o.skip or tags.get(r) == t, (i.t, r, t, tags.get(r))
            if i.tag: tags[i.tag[0]] = i.tag[1]
        vm = []; lg = []; nw = 0; floor = 0
        head = {}
        def handle(i, k, lst):
            nonlocal vm, lg, nw
            regs = set(i.rd) | set(i.wr)
            for name, q, T, Tmin, mx in (('vmcnt', vm, g.o.tvm, g.o.hvm, 63), ('lgkmcnt', lg, g.o.tlg, g.o.hlg, 15)):
                last = -1
                for n, (dst, sg) in enumerate(q):
                    if dst & regs: last = n
                if last < 0: continue
                if q[last][1] >= k or k == len(segs) - 1 or k < floor:
                    while len(q) - 1 - last > mx: last += 1
                    lst.append(I(f"s_waitcnt {name}({len(q)-1-last})", 'salu')); nw += 1
                else:
                    best = k
                    for c in range(k, max(floor - 1, k - 12, q[last][1] + Tmin - 1), -1):
                        cur = lst + rest if c == k else segs[c]
                        if c in head or gapcost([I('', 'salu')] + cur) == gapcost(cur): best = c; break
                    while last + 1 < len(q) and best - q[last + 1][1] >= T: last += 1
                    n = sum(1 for e in q[last + 1:] if e[1] < best)
                    while n > mx: last += 1; n -= 1
                    h = head.setdefault(best, {})
                    h[name] = min(n, h.get(name, 99))
                if name == 'vmcnt': vm = q[last + 1:]
                else: lg = q[last + 1:]
        for k in range(len(segs)):
            lst = []
            for n, i in enumerate(segs[k]):
                rest = segs[k][n:]
                handle(i, k, lst)
                lst.append(i)
                if i.k == 'lgkm0': lg = []; floor = k + 1
                if i.k == 'vload': vm.append((set(i.wr), k))
                if i.k == 'vstore': vm.append((set(), k))
                if i.k == 'dsr': lg.append((set(i.wr), k))
                if i.k == 'dsw': lg.append((set(), k))
            rest = []
            if k < len(M): handle(M[k], k, lst)
            segs[k] = lst
        for k, h in head.items():
            segs[k].insert(0, I("s_waitcnt " + " ".join(f"{a}({b})" for a, b in h.items()), 'salu')); nw += 1
        st = [0] * 9
        for G in range(len(GROUPS)):
            for k in range(g.idx[(G, 0)], g.idx[(G + 1, 0)]):
                if k + 1 < len(segs) - 1: st[G // 8] += gapcost(segs[k + 1])
        sys.stderr.write(f"model cycles {st} sum {sum(st)} tail {gapcost(segs[-1])}\n")
        if g.o.stall:
            for k in range(1, len(segs) - 1, g.o.stall): segs[k].append(I("s_nop 7", 'salu'))
        out = list(linear())
        res = []; nn = 0
        isv = lambda k: k in ('valu', 'trans')
        for i in out:
            req = 0; dist = 0
            for p in reversed(res[-12:]):
                w = 0
                pw, prd = set(p.wr), set(p.rd)
                if isv(p.k) and i.k == 'mfma' and pw & set(i.rd): w = 2
                if p.k == 'mfma':
                    if isv(i.k) and pw & (set(i.rd) | set(i.wr)): w = 8
                    if i.k in ('vstore', 'dsw', 'vload', 'dsr') and pw & (set(i.rd) | set(i.wr)): w = 8
                    if isv(i.k) and set(p.creads) & set(i.wr): w = max(w, 3)
                if p.k == 'trans' and i.k != 'trans' and pw & set(i.rd): w = max(w, 1)
                if p.k == 'trans' and i.k == 'trans' and pw & set(i.rd): w = max(w, 1)
                if p.k in ('vstore', 'dsw') and isv(i.k) and prd & set(i.wr): w = max(w, 2)
                req = max(req, w - dist)
                dist += (int(p.t.split()[1]) + 1) if p.t.startswith('s_nop') else 1
            if req > 0: res.append(I(f"s_nop {req-1}", 'salu')); nn += 1
            res.append(i)
        sys.stderr.write(f"waits {nw} nops {nn} total {len(res)}\n")
        return res
    def dbgstamp(g, slot, inv, back, vt=250):
        if not g.o.dbg: return ""
        t = f"s_memrealtime s[96:97]\ns_load_dwordx2 s[98:99], s[0:1], 24\ns_waitcnt lgkmcnt(0)\n"
        if back: t += "s_sub_u32 s98, s98, 512\ns_subb_u32 s99, s99, 0\n"
        if inv: t += "s_not_b32 s96, s96\n"
        t += f"v_mov_b32 v{vt}, s96\nv_mov_b32 v{vt+1}, {4*slot}\ns_mov_b64 s[94:95], exec\ns_mov_b64 exec, 1\nglobal_atomic_umax v{vt+1}, v{vt}, s[98:99]\ns_mov_b64 exec, s[94:95]"
        return t
    def main_kernel(g):
        E = g.out.append
        E(f".globl {KN}\n.p2align 8\n.type {KN},@function\n{KN}:")
        E("s_cmp_ge_u32 s2, 256\ns_cbranch_scc1 L_end")
        E(g.dbgstamp(2, True, True)); E(g.dbgstamp(3, False, True))
        if g.o.stamps: E(f"s_memtime s[{SST}:{SST+1}]\ns_memrealtime s[{SST+2}:{SST+3}]")
        E("s_load_dwordx2 s[4:5], s[0:1], 0\ns_load_dwordx2 s[6:7], s[0:1], 16\ns_load_dwordx2 s[26:27], s[0:1], 32")
        if g.o.map == 0:
            E("s_and_b32 s30, s2, 7\ns_lshr_b32 s31, s2, 3\ns_and_b32 s32, s31, 3\ns_lshr_b32 s31, s31, 2\ns_lshl_b32 s30, s30, 3\ns_add_u32 s30, s30, s31")
        elif g.o.map == 1:
            E("s_and_b32 s32, s2, 3\ns_lshr_b32 s30, s2, 2")
        else:
            E("s_and_b32 s32, s2, 1\ns_lshl_b32 s32, s32, 1\ns_bfe_u32 s31, s2, 0x10003\ns_add_u32 s32, s32, s31\ns_bfe_u32 s30, s2, 0x20001\ns_lshl_b32 s30, s30, 4\ns_lshr_b32 s31, s2, 4\ns_add_u32 s30, s30, s31")
        E("s_lshr_b32 s33, s30, 5\ns_and_b32 s34, s30, 31\ns_lshl_b32 s34, s34, 18")
        E("s_mul_i32 s33, s33, 8192000")
        E(f"v_lshlrev_b32 v{EPI}, 7, v0")
        E("v_and_b32 v20, 63, v0\nv_lshrrev_b32 v21, 6, v0")
        E("v_and_b32 v22, 15, v0")
        E("v_bfe_u32 v23, v0, 4, 1")
        E("v_lshrrev_b32 v24, 5, v0")
        E("v_mul_u32_u24 v25, 9, v24")
        E("v_lshlrev_b32 v26, 12, v25\nv_lshlrev_b32 v27, 9, v23\nv_lshlrev_b32 v28, 4, v22")
        E(f"v_add3_u32 v26, v26, v27, v28\ns_sub_u32 s35, s34, {4*4096}\nv_add_u32 v{XBASE}, s35, v26")
        E(f"v_and_b32 v26, 7, v22\nv_mul_u32_u24 v26, {S2}, v26\nv_lshrrev_b32 v27, 3, v22\nv_mul_u32_u24 v27, {S1}, v27\nv_lshlrev_b32 v28, 4, v23\nv_add3_u32 v26, v26, v27, v28")
        for i in range(9):
            E(f"v_add_u32 v27, {i}, v25\nv_and_b32 v28, 7, v27\nv_mul_u32_u24 v28, 288, v28\nv_lshrrev_b32 v27, 3, v27\nv_lshlrev_b32 v27, 5, v27\nv_add3_u32 v{WA+i}, v26, v27, v28")
        E(f"v_bfe_u32 v26, v0, 5, 1\nv_mul_u32_u24 v26, {S2}, v26\nv_mul_u32_u24 v27, {S1}, v23\nv_lshlrev_b32 v28, 4, v22\nv_add3_u32 v{RB}, v26, v27, v28\nv_add_u32 v{RB+1}, {ARR}, v{RB}")
        E(f"s_lshl_b32 s36, s32, 2\nv_add_u32 v26, s36, v21\nv_mul_u32_u24 v26, {STREAM}, v26\nv_lshlrev_b32 v27, 4, v20\nv_add_u32 v{WL}, v26, v27")
        E("v_lshrrev_b32 v26, 1, v22\nv_lshlrev_b32 v26, 15, v26\nv_and_b32 v27, 1, v22\nv_lshlrev_b32 v27, 9, v27\nv_lshlrev_b32 v28, 5, v21\nv_add3_u32 v26, v26, v27, v28")
        E(f"v_lshrrev_b32 v27, 4, v20\nv_lshlrev_b32 v27, 3, v27\ns_lshl_b32 s36, s32, 7\ns_add_u32 s36, s36, s34\nv_add3_u32 v{SB}, v26, v27, s36")
        E(f"s_mov_b32 s{SWO}, 0\ns_mov_b32 s{SC1}, {hex(fb(2*1.4426950408889634))}\ns_mov_b32 s{SC2}, {hex(fb(-1.4426950408889634))}\ns_mov_b32 s{SCL}, {hex(fb(32.0))}\ns_mov_b32 s{SMASK}, 0xffff0000")
        E("s_waitcnt lgkmcnt(0)")
        E(f"s_add_u32 s{SX}, s4, s33\ns_addc_u32 s{SX+1}, s5, 0\ns_mov_b32 s{SX+2}, 8192000\ns_mov_b32 s{SX+3}, 0x20000")
        E(f"s_mov_b32 s{SW}, s26\ns_mov_b32 s{SW+1}, s27\ns_mov_b32 s{SW+2}, {0x10000000 if g.o.stamps else 16*STREAM}\ns_mov_b32 s{SW+3}, 0x20000")
        E(f"s_add_u32 s{SO}, s6, s33\ns_addc_u32 s{SO+1}, s7, 0\ns_mov_b32 s{SO+2}, 8192000\ns_mov_b32 s{SO+3}, 0x20000")
        E(f"s_getpc_b64 s[28:29]\nL_pc:\ns_mov_b32 s30, L_end-L_pc\ns_mov_b32 s31, 0x20000\ns_mov_b32 s36, 0\ns_mov_b32 s37, 32768\ns_mov_b32 s38, 65536\ns_mov_b32 s39, 98304")
        for i in g.finalize(g.body()): E(i.t)
        if g.o.stamps:
            n = 12
            if g.o.trace < 0: E(f"s_waitcnt vmcnt(0)\ns_memtime s[{SST+44}:{SST+45}]\ns_memrealtime s[{SST+46}:{SST+47}]\ns_waitcnt lgkmcnt(0)")
            E(f"v_mbcnt_lo_u32_b32 v20, -1, 0\nv_mbcnt_hi_u32_b32 v20, -1, v20\nv_lshlrev_b32 v21, 4, v20\nv_sub_u32 v21, v{WL}, v21\ns_lshl_b32 s36, s32, 2\ns_mul_i32 s36, s36, {STREAM}\nv_subrev_u32 v21, s36, v21\nv_or_b32 v21, v21, v20")
            E("v_cmp_eq_u32 vcc, 0, v21\ns_and_saveexec_b64 s[90:91], vcc\ns_cbranch_execz L_end")
            E(f"s_mul_i32 s36, s2, {16*n}\ns_add_u32 s36, s36, {200<<20}")
            for k in range(n):
                for j in range(4): E(f"v_mov_b32 v{24+j}, s{SST+4*k+j}")
                E(f"buffer_store_dwordx4 v[24:27], v21, s[{SW}:{SW+3}], s36 offen offset:{16*k}\ns_nop 1")
        if g.o.dbg: E(g.dbgstamp(4, False, True)); E("s_waitcnt vmcnt(0)"); E(g.dbgstamp(5, False, True)); E(g.dbgstamp(6, True, True))
        E("L_end:\ns_endpgm")
    def prep_kernel(g):
        E = g.out.append
        E(f".globl {PN}\n.p2align 8\n.type {PN},@function\n{PN}:")
        E("s_cmp_ge_u32 s2, 256\ns_cbranch_scc1 LP_end2")
        E(g.dbgstamp(0, True, False, 116))
        E("s_load_dwordx2 s[4:5], s[0:1], 8\ns_load_dwordx2 s[6:7], s[0:1], 32")
        E("s_and_b32 s20, s2, 1\ns_bfe_u32 s21, s2, 0x50001\ns_lshr_b32 s22, s2, 6")
        for i in range(32): E(f"v_mov_b32 v{8+i}, 0")
        E("v_lshlrev_b32 v1, 1, v0\ns_lshl_b32 s23, s20, 9\ns_lshl_b32 s24, s21, 13\ns_add_u32 s23, s23, s24\nv_add_u32 v1, s23, v1\nv_add_u32 v2, 4096, v1")
        E("s_lshl_b32 s25, s22, 20")
        E("s_waitcnt lgkmcnt(0)")
        E("s_mov_b32 s8, s4\ns_mov_b32 s9, s5\ns_mov_b32 s10, 3932160\ns_mov_b32 s11, 0x20000")
        E(f"s_mov_b32 s12, s6\ns_mov_b32 s13, s7\ns_mov_b32 s14, {16*STREAM}\ns_mov_b32 s15, 0x20000")
        def ld(r):
            for i in range(8): E(f"buffer_load_short_d16_hi v{8+8*r+i}, v{1+i//4}, s[8:11], s26 offen offset:{(i%4)*1024}")
        E("s_cmp_eq_u32 s22, 0\ns_cbranch_scc1 LP_skip0\ns_sub_u32 s26, s25, 262144")
        ld(0)
        E("LP_skip0:")
        for r in range(1, 4):
            E(f"s_add_u32 s26, s25, {(r-1)*262144}"); ld(r)
        E(f"v_lshrrev_b32 v3, 4, v0\nv_mul_u32_u24 v3, {STREAM}, v3\nv_and_b32 v4, 15, v0\nv_lshlrev_b32 v4, 4, v4\nv_add_u32 v3, v3, v4")
        E("s_lshr_b32 s27, s21, 4\ns_bfe_u32 s28, s21, 0x20001\ns_and_b32 s29, s21, 1\ns_lshl_b32 s29, s29, 1\ns_bfe_u32 s30, s21, 0x10003\ns_add_u32 s29, s29, s30\ns_lshl_b32 s29, s29, 8")
        E("v_add_u32 v3, s29, v3")
        E("s_waitcnt vmcnt(0)")
        g_ = lambda r: 8 + 8 * r
        T = {'12': 40, '32': 48, '21': 56, '23': 64, '22': 72, '11': g_(0), '13': g_(1), '31': g_(2), '33': g_(3)}
        for i in range(8):
            E(f"v_add_f32 v{40+i}, v{g_(0)+i}, v{g_(1)+i}\nv_add_f32 v{48+i}, v{g_(2)+i}, v{g_(3)+i}\nv_add_f32 v{56+i}, v{g_(0)+i}, v{g_(2)+i}\nv_add_f32 v{64+i}, v{g_(1)+i}, v{g_(3)+i}\nv_add_f32 v{72+i}, v{40+i}, v{48+i}")
        for n, pt in enumerate(['22', '23', '21', '12', '32', '13', '33', '31', '11']):
            nt = len(taps(pt)); k0 = taps(pt)[0]
            base = GOFF[(pt, 0, 0)]; dstr = GOFF[(pt, 1, 0)] - base; kstr = 2 * nt
            o = 80 + 4 * n
            if pt == '11': E("s_cmp_eq_u32 s22, 0\ns_cbranch_scc1 LP_end")
            for i in range(4): E(f"v_cvt_pk_bf16_f32 v{o+i}, v{T[pt]+2*i}, v{T[pt]+2*i+1}")
            E(f"s_mul_i32 s31, s27, {dstr}\ns_mul_i32 s32, s28, {kstr}\ns_add_u32 s31, s31, s32\ns_mul_i32 s32, s20, {nt}\ns_add_u32 s31, s31, s32\ns_add_u32 s31, s31, s22\ns_add_u32 s31, s31, {base-k0}\ns_lshl_b32 s31, s31, 10")
            E(f"buffer_store_dwordx4 v[{o}:{o+3}], v3, s[12:15], s31 offen")
        E("LP_end:")
        if g.o.dbg: E("s_waitcnt vmcnt(0)"); E(g.dbgstamp(1, False, False, 116))
        E("LP_end2:\ns_endpgm")
    def emit(g):
        E = g.out.append
        E(f"; F(4,4) nested fast-FIR (Karatsuba x2) dilated conv + gated activation; generated by gen.py")
        E(f"; @launch kernel={PN} grid=(256,1,1) block=(256,1,1) lds=0")
        E(f"; @launch kernel={KN} grid=(256,1,1) block=(256,1,1) lds={LDS_BYTES}")
        E('.amdgcn_target "amdgcn-amd-amdhsa--gfx950"\n.text')
        g.prep_kernel(); g.main_kernel()
        for n, nv, ao in ((PN, 120, 120), (KN, 512, 256)):
            E(f""".section .rodata,"a"
.p2align 6
.amdhsa_kernel {n}
  .amdhsa_next_free_vgpr {nv}
  .amdhsa_next_free_sgpr 100
  .amdhsa_accum_offset {ao}
  .amdhsa_group_segment_fixed_size 0
  .amdhsa_kernarg_size 40
  .amdhsa_user_sgpr_count 2
  .amdhsa_user_sgpr_kernarg_segment_ptr 1
  .amdhsa_system_sgpr_workgroup_id_x 1
  .amdhsa_float_denorm_mode_32 3
.end_amdhsa_kernel""")
        return "\n".join(x for x in g.out if x) + "\n"

if __name__ == '__main__':
    ap = argparse.ArgumentParser()
    ap.add_argument('-o', default='standalone__autoregressive_conv_wavernn__speech.s')
    ap.add_argument('--stamps', action='store_true'); ap.add_argument('--cap', type=int, default=2); ap.add_argument('--backlog', type=int, default=6)
    ap.add_argument('--tvm', type=int, default=64); ap.add_argument('--tlg', type=int, default=10)
    ap.add_argument('--wflags', default=''); ap.add_argument('--sflags', default='')
    ap.add_argument('--skip', default=''); ap.add_argument('--pf', type=int, default=1); ap.add_argument('--map', type=int, default=0); ap.add_argument('--look', type=int, default=10); ap.add_argument('--dswsep', type=int, default=6)
    ap.add_argument('--dbg', action='store_true'); ap.add_argument('--stall', type=int, default=0); ap.add_argument('--hvm', type=int, default=48); ap.add_argument('--hlg', type=int, default=8); ap.add_argument('--trace', type=int, default=-1); ap.add_argument('--tstep', type=int, default=8)
    o = ap.parse_args()
    o.skip = [x for x in o.skip.split(',') if x]
    if o.wflags: o.wflags = ' ' + o.wflags
    if o.sflags: o.sflags = ' ' + o.sflags
    open(o.o, 'w').write(Gen(o).emit())
```

```python
import sys, struct, argparse
KN = "standalone__autoregressive_conv_wavernn__speech_kernel"
PN = "wprep_kernel"
fb = lambda f: struct.unpack('<I', struct.pack('<f', f))[0]

S1, S2, ARR, BUF = 2304, 4624, 36992, 73984
LDS_BYTES = 2 * BUF
STREAM = 560 * 1024

STAGES = [(('22', 0), ('22', 1)),
          (('23', 0), ('21', 0)), (('23', 1), ('21', 1)),
          (('12', 0), ('32', 0)), (('12', 1), ('32', 1)),
          (('13', 0), ('33', 0)), (('13', 1), ('33', 1)),
          (('11', 0), ('31', 0)), (('11', 1), ('31', 1))]
SET = {'22': 0, '23': 1, '21': 0, '12': 2, '32': 3, '13': 0, '33': 1, '11': 2, '31': 3}
FORK = {'22': None, '23': 0, '12': 0, '32': 0, '13': 1}
QOF = {0: 1, 1: 3, 2: 0, 3: 2}
PTYPE = ['A', 'B', 'B', 'C', 'C', 'D', 'D', 'E', 'E']
def taps(pt): return [1, 2, 3] if pt == '11' else [0, 1, 2, 3]

GROUPS = []
_off = 0
for s, st in enumerate(STAGES):
    for a, (pt, dh) in enumerate(st):
        for kp in range(4):
            GROUPS.append((s, a, pt, dh, kp, _off)); _off += 2 * len(taps(pt))
assert _off == 560
GOFF = {(pt, dh, kp): off for (s, a, pt, dh, kp, off) in GROUPS}

def V(n, c=1): return [('v', n + i) for i in range(c)]
def A(n, c=1): return [('a', n + i) for i in range(c)]
def vr(n, c): return f"v[{n}:{n+c-1}]"
def ar(n, c): return f"a[{n}:{n+c-1}]"
class I:
    __slots__ = ('t', 'k', 'rd', 'wr', 'c', 'need', 'tag', 'pos', 'dl', 'seq', 'creads')
    def __init__(s, t, k, rd=(), wr=(), need=None, tag=None, creads=()):
        s.t = t; s.k = k; s.rd = list(rd); s.wr = list(wr); s.need = need or []; s.tag = tag
        s.c = {'trans': 2, 'dsw': 2, 'salu': 0}.get(k, 1); s.pos = None; s.dl = None; s.creads = list(creads)

WA = 1; RB = 10; WL = 12; XA = 13; XBASE = 15; SB = 0
WR = 16; XF = 112; RAW = 156; NRAW = 12; PERS = 204; TMP = 212; OUT = 220; EPI = 236; ACT = 252
SX, SW, SO = 8, 12, 16
SWO = 20; SC1, SC2, SCL, SMASK = 21, 22, 23, 24
SST = 40

def gapcost(gap):
    t = 4; sawv = False
    for i in gap:
        if i.k in ('valu', 'trans'): t = max(t, 8) + (8 if i.k == 'trans' else 4); sawv = True
        elif i.k == 'dsw': t += 24 + (8 if sawv else 0)
        elif i.k in ('vload', 'dsr', 'vstore'): t += 8 + (8 if sawv else 0)
        else: t += 4
    return max(t, 16)

class Gen:
    def __init__(g, opt):
        g.o = opt; g.out = []; g.tr = {}; g.lastdsw = -99
    def mfmas(g):
        M = []; g.idx = {}
        for G, (s, a, pt, dh, kp, off) in enumerate(GROUPS):
            tp = taps(pt); st = SET[pt]
            first = (kp == 0 and dh == 0 and pt in FORK)
            for j in range(8):
                g.idx[(G, j)] = len(M)
                for h in range(2):
                    for ki, k in enumerate(tp):
                        acc = st * 64 + (j * 2 + h) * 4
                        w = WR + ((G % 3) * 8 + h * len(tp) + ki) * 4
                        x = XF + (j + k) * 4
                        if first and ki == 0:
                            if FORK[pt] is None: cs, cr = '0', []
                            else:
                                c = FORK[pt] * 64 + (j * 2 + h) * 4; cs, cr = ar(c, 4), A(c, 4)
                        else: cs, cr = ar(acc, 4), A(acc, 4)
                        M.append(I(f"v_mfma_f32_16x16x32_bf16 {ar(acc,4)}, {vr(w,4)}, {vr(x,4)}, {cs}", 'mfma',
                                   rd=V(w, 4) + V(x, 4) + cr, wr=A(acc, 4), creads=cr,
                                   need=[(('v', w), ('W', G, h, k)), (('v', x), ('X', G, j + k))]))
        g.idx[(len(GROUPS), 0)] = len(M)
        for s in range(9): M[g.idx[(8 * s, 0)]].t = f"L_st{s}:\n" + M[g.idx[(8 * s, 0)]].t
        return M
    def P(g, s, gr, j=0): return g.idx[(s * 8 + gr, j)]
    def wloads(g, G):
        s, a, pt, dh, kp, off = GROUPS[G]; tp = taps(pt); L = []
        for h in range(2):
            for ki, k in enumerate(tp):
                f = off + h * len(tp) + ki
                if f % 4 == 0 and f: L.append(I(f"s_add_u32 s{SWO}, s{SWO}, 4096" if not ('wwrap' in g.o.skip and f % 64 == 0) else f"s_add_u32 s{SWO}, s{SWO}, {hex((1<<32)-61440)}", 'salu', rd=[('s', SWO)], wr=[('s', SWO)]))
                w = WR + ((G % 3) * 8 + h * len(tp) + ki) * 4
                L.append(I(f"buffer_load_dwordx4 {vr(w,4)}, v{WL}, s[{SW}:{SW+3}], s{SWO} offen offset:{(f%4)*1024}{g.o.wflags}", 'vload',
                           rd=V(WL) + [('s', SWO)], wr=V(w, 4), tag=(('v', w), ('W', G, h, k))))
        return L
    def xread(g, G, c):
        s, a, pt, dh, kp, off = GROUPS[G]
        x = XF + c * 4; imm = 2 * kp * S2 + (c % 8) * 288 + (c // 8) * 32
        return I(f"ds_read_b128 {vr(x,4)}, v{RB+a} offset:{imm}", 'dsr', rd=V(RB + a), wr=V(x, 4), tag=(('v', x), ('X', G, c)),
                 need=[(('v', RB + a), ('RB', s))])
    def spread(g, L, p0, p1, dl=None):
        tot = sum(i.c for i in L); acc = 0
        for i in L:
            i.pos = p0 + (p1 - p0) * acc / max(tot, 1); acc += i.c
            i.dl = dl
        return L
    def production(g):
        rows = []
        progs = []
        def newrow(s, ai, imm):
            rows.append((s, ai, imm + STAGES[s][0][1] * 256)); return len(rows) - 1
        rr = lambda n: RAW + (n % NRAW) * 4
        tctr = [0]
        def tmp():
            t = TMP + tctr[0] % 8; tctr[0] += 1; return t
        octr = [0]
        def lo(dst, n, i): return I(f"v_lshlrev_b32 v{dst}, 16, v{rr(n)+i}", 'valu', rd=V(rr(n)+i), wr=V(dst), need=[(('v', rr(n)), ('R', n))], tag=('use', n))
        def hi(dst, n, i): return I(f"v_and_b32 v{dst}, s{SMASK}, v{rr(n)+i}", 'valu', rd=V(rr(n)+i), wr=V(dst), need=[(('v', rr(n)), ('R', n))], tag=('use', n))
        def sub(d, a, b): return I(f"v_sub_f32 v{d}, v{a}, v{b}", 'valu', rd=V(a) + V(b), wr=V(d))
        def cvt(d, a, b): return I(f"v_cvt_pk_bf16_f32 v{d}, v{a}, v{b}", 'valu', rd=V(a) + V(b), wr=V(d))
        def wr(s, i, arr, src): return I(f"ds_write_b128 v{WA+i}, {vr(src,4)} offset:{arr*ARR}", 'dsw', rd=V(WA + i) + V(src, 4), need=[(('v', WA + i), ('WA', s))])
        for s in range(1, 9):
            ty = PTYPE[s]; L = []
            for i in range(9):
                op = 'v_add_u32' if s % 2 else 'v_subrev_u32'
                L.append(I(f"{op} v{WA+i}, {BUF}, v{WA+i}", 'valu', rd=V(WA + i), wr=V(WA + i), tag=(('v', WA + i), ('WA', s))))
            if ty == 'C':
                n1 = newrow(s, 0, 2048)
                for d in range(4): L += [lo(PERS + 2*d, n1, d), hi(PERS + 2*d + 1, n1, d)]
            elif ty in 'DE':
                if ty == 'D': nb, na = newrow(s, 0, 2048), newrow(s, 0, 3072)
                else: na, nb = newrow(s, 0, 1024), newrow(s, 0, 2048)
                for d in range(4):
                    t0, t1 = tmp(), tmp()
                    L += [lo(PERS + 2*d, na, d), hi(PERS + 2*d + 1, na, d), lo(t0, nb, d), hi(t1, nb, d),
                          sub(PERS + 2*d, PERS + 2*d, t0), sub(PERS + 2*d + 1, PERS + 2*d + 1, t1)]
            pend = None
            for i in range(9):
                stepstart = len(L)
                o0 = OUT + (octr[0] % 2) * 8; o1 = o0 + 4; octr[0] += 1
                if ty == 'B':
                    n2, n3, n4 = newrow(s, i, 3072), newrow(s, i + 1, 0), newrow(s, i + 1, 1024)
                    for d in range(4):
                        a, b, c, e, f, h = [tmp() for _ in range(6)]
                        L += [lo(a, n3, d), hi(b, n3, d), lo(c, n4, d), hi(e, n4, d), lo(f, n2, d), hi(h, n2, d),
                              sub(c, c, a), sub(e, e, b), sub(f, f, a), sub(h, h, b), cvt(o0 + d, c, e), cvt(o1 + d, f, h)]
                elif ty == 'C':
                    n3, n5 = newrow(s, i + 1, 0), newrow(s, i + 1, 2048)
                    for d in range(4):
                        a, b, c, e = [tmp() for _ in range(4)]
                        p0, p1 = PERS + 2*d, PERS + 2*d + 1
                        L += [lo(a, n3, d), hi(b, n3, d), sub(c, p0, a), sub(e, p1, b), lo(p0, n5, d), hi(p1, n5, d), cvt(o0 + d, c, e),
                              sub(a, p0, a), sub(b, p1, b), cvt(o1 + d, a, b)]
                else:
                    if ty == 'D':
                        n3, n4, n5, n6 = [newrow(s, i + 1, 1024 * q) for q in range(4)]
                        mp, mm, np_, nm = n4, n3, n6, n5
                    else:
                        n2 = newrow(s, i, 3072); n3, n4, n5 = [newrow(s, i + 1, 1024 * q) for q in range(3)]
                        mp, mm, np_, nm = n2, n3, n4, n5
                    for d in range(4):
                        a, b, c, e = [tmp() for _ in range(4)]
                        p0, p1 = PERS + 2*d, PERS + 2*d + 1
                        L += [lo(a, mp, d), hi(b, mp, d), lo(c, mm, d), hi(e, mm, d), sub(a, a, c), sub(b, b, e),
                              sub(c, p0, a), sub(e, p1, b), lo(p0, np_, d), hi(p1, np_, d), cvt(o0 + d, c, e),
                              lo(c, nm, d), hi(e, nm, d), sub(p0, p0, c), sub(p1, p1, e), sub(a, p0, a), sub(b, p1, b), cvt(o1 + d, a, b)]
                w0, w1 = wr(s, i, 0, o0), wr(s, i, 1, o1)
                if pend is not None:
                    L.insert(stepstart + (len(L) - stepstart) // 2, pend)
                L.append(w0); pend = w1
                if i == 8:
                    pad = I("", 'pad'); pad.c = 10
                    L += [pad, w1]
            progs.append(L)
        last = {}
        for ps, L in enumerate(progs):
            for k, op in enumerate(L):
                if op.tag and op.tag[0] == 'use': last[op.tag[1]] = (ps, k); op.tag = None
        cur = {}
        def load(n):
            s, ai, imm = rows[n]; r = XA + ai % 2; L = []
            if cur.get(r) != (s, ai):
                L.append(I(f"v_add_u32 v{r}, {4096*ai}, v{XBASE}", 'valu', rd=V(XBASE), wr=V(r))); cur[r] = (s, ai)
            L.append(I(f"buffer_load_dwordx4 {vr(rr(n),4)}, v{r}, s[{SX}:{SX+3}], 0 offen offset:{imm}", 'vload', rd=V(r), wr=V(rr(n), 4), tag=(('v', rr(n)), ('R', n))))
            return L
        head = []
        for n in range(NRAW): head += load(n)
        ins = {}
        prev = (0, -1)
        for n in range(NRAW, len(rows)):
            at = max(last[n - NRAW], prev); prev = at
            ins.setdefault(at, []).extend(load(n))
        res = []
        for ps, L in enumerate(progs):
            R = []
            for k, op in enumerate(L):
                R.append(op); R += ins.get((ps, k), [])
            res.append(R)
        return head, res
    def accop(g, dst, src, sign, tiles):
        L = []; n = 0
        for t in tiles:
            for r in range(0, 4, 2):
                d = dst * 64 + t * 4 + r; s_ = src * 64 + t * 4 + r
                T = [ACT, ACT + 1, ACT + 2, ACT + 3]
                op = 'v_add_f32' if sign > 0 else 'v_sub_f32'
                L += [I(f"v_accvgpr_read_b32 v{T[0]}, a{d}", 'valu', rd=A(d), wr=V(T[0])), I(f"v_accvgpr_read_b32 v{T[1]}, a{s_}", 'valu', rd=A(s_), wr=V(T[1])),
                      I(f"v_accvgpr_read_b32 v{T[2]}, a{d+1}", 'valu', rd=A(d+1), wr=V(T[2])), I(f"v_accvgpr_read_b32 v{T[3]}, a{s_+1}", 'valu', rd=A(s_+1), wr=V(T[3])),
                      I(f"{op} v{T[0]}, v{T[0]}, v{T[1]}", 'valu', rd=V(T[0]) + V(T[1]), wr=V(T[0])), I(f"{op} v{T[2]}, v{T[2]}, v{T[3]}", 'valu', rd=V(T[2]) + V(T[3]), wr=V(T[2])),
                      I(f"v_accvgpr_write_b32 a{d}, v{T[0]}", 'valu', rd=V(T[0]), wr=A(d)), I(f"v_accvgpr_write_b32 a{d+1}, v{T[2]}", 'valu', rd=V(T[2]), wr=A(d+1))]
        return L
    def epi(g, st, banks):
        L = []; q = QOF[st]
        for j in range(8):
            F = banks[j % len(banks)]; Gq = F + 4
            f = st * 64 + j * 8; gg = f + 4
            R = range(4)
            L += [I(f"v_accvgpr_read_b32 v{F+r}, a{f+r}", 'valu', rd=A(f+r), wr=V(F+r)) for r in R]
            L += [I(f"v_accvgpr_read_b32 v{Gq+r}, a{gg+r}", 'valu', rd=A(gg+r), wr=V(Gq+r)) for r in R]
            L += [I(f"v_mul_f32 v{F+r}, s{SC1}, v{F+r}", 'valu', rd=V(F+r), wr=V(F+r)) for r in R]
            L += [I(f"v_mul_f32 v{Gq+r}, s{SC2}, v{Gq+r}", 'valu', rd=V(Gq+r), wr=V(Gq+r)) for r in R]
            L += [I(f"v_med3_f32 v{F+r}, v{F+r}, -s{SCL}, s{SCL}", 'valu', rd=V(F+r), wr=V(F+r)) for r in R]
            L += [I(f"v_exp_f32 v{Gq+r}, v{Gq+r}", 'trans', rd=V(Gq+r), wr=V(Gq+r)) for r in R]
            L += [I(f"v_exp_f32 v{F+r}, v{F+r}", 'trans', rd=V(F+r), wr=V(F+r)) for r in R]
            L += [I(f"v_add_f32 v{Gq+r}, 1.0, v{Gq+r}", 'valu', rd=V(Gq+r), wr=V(Gq+r)) for r in R]
            L += [I(f"v_fma_f32 v{Gq+r}, v{F+r}, v{Gq+r}, v{Gq+r}", 'valu', rd=V(Gq+r) + V(F+r), wr=V(Gq+r)) for r in R]
            L += [I(f"v_rcp_f32 v{Gq+r}, v{Gq+r}", 'trans', rd=V(Gq+r), wr=V(Gq+r)) for r in R]
            L += [I(f"v_fma_f32 v{F+r}, v{F+r}, v{Gq+r}, -v{Gq+r}", 'valu', rd=V(Gq+r) + V(F+r), wr=V(F+r)) for r in R]
            L += [I(f"v_add_u32 v{Gq}, {4096*j}, v{SB}", 'valu', rd=V(SB), wr=V(Gq)),
                  I(f"v_cvt_pk_bf16_f32 v{F}, v{F}, v{F+1}", 'valu', rd=V(F, 2), wr=V(F)),
                  I(f"v_cvt_pk_bf16_f32 v{F+1}, v{F+2}, v{F+3}", 'valu', rd=V(F+2, 2), wr=V(F+1)),
                  I(f"buffer_store_dwordx2 {vr(F,2)}, v{Gq}, s[{SO}:{SO+3}], 0 offen offset:{q*1024}{g.o.sflags}", 'vstore', rd=V(F, 2) + V(Gq))]
        return L
    def stamp(g, n):
        if not g.o.stamps or g.o.trace >= 0: return []
        return [I(f"s_memtime s[{SST+4*n}:{SST+4*n+1}]", 'salu'), I(f"s_memrealtime s[{SST+4*n+2}:{SST+4*n+3}]", 'salu')]
    def barrier(g, n):
        return g.stamp(n) + [I("s_waitcnt lgkmcnt(0)", 'lgkm0'), I("s_barrier", 'salu')]
    def body(g):
        M = g.mfmas(); NG = len(GROUPS); F = []
        head, prods = g.production()
        pre = []
        for i in range(9):
            r = XA + i % 2
            pre.append(I(f"v_add_u32 v{r}, {4096*(i+1)}, v{XBASE}", 'valu', rd=V(XBASE), wr=V(r)))
            for dh in range(2):
                d = RAW + (i * 2 + dh) * 4
                pre.append(I(f"buffer_load_dwordx4 {vr(d,4)}, v{r}, s[{SX}:{SX+3}], 0 offen offset:{dh*256}", 'vload', rd=V(r), wr=V(d, 4)))
        pre += g.wloads(0) + g.wloads(1)
        if g.o.pf:
            for k in range(g.o.pf):
                pre.append(I(f"buffer_load_dword v{EPI+1+k}, v{EPI}, s[28:31], s{36+k} offen", 'vload', rd=V(EPI), wr=V(EPI + 1 + k)))
        for i in range(9):
            for dh in range(2):
                d = RAW + (i * 2 + dh) * 4
                pre.append(I(f"ds_write_b128 v{WA+i}, {vr(d,4)} offset:{dh*ARR}", 'dsw', rd=V(WA + i) + V(d, 4)))
        pre += g.barrier(1)
        pre += [g.xread(0, c) for c in range(7)]
        pre += head
        for G in range(2, NG):
            F += g.spread(g.wloads(G), g.idx[(G - 2, 0)] + 1, g.idx[(G - 1, 0)] - 2, dl=g.idx[(G - 1, 0)] + 8)
        for G in range(NG):
            s = GROUPS[G][0]; used = sorted({j + k for j in range(8) for k in taps(GROUPS[G][2])})
            lastg = (G % 8 == 7)
            for c in used:
                if c >= 7:
                    op = g.xread(G, c)
                    op.pos = g.idx[(G, 0)] + 2 * (c - 7) + 0.5 if lastg else g.idx[(G, c - 7)] + 2.5
                    op.dl = g.idx[(G, c - 3)] - 10 if not lastg else g.idx[(G, 1)] + 2; F.append(op)
                elif G > 0:
                    op = g.xread(G, c)
                    p = g.idx[(G - 1, c + 1)] + 4.5
                    if G % 8 == 0: p = max(p, g.idx[(G - 1, 2)] + 1.5 + 2 * c)
                    op.pos = p; op.dl = max(p + 1, g.idx[(G, max(0, c - 3))] - 10); F.append(op)
            if lastg and s < 8:
                L = []
                for a in range(2):
                    op = 'v_add_u32' if (s + 1) % 2 else 'v_subrev_u32'
                    L.append(I(f"{op} v{RB+a}, {BUF}, v{RB+a}", 'valu', rd=V(RB + a), wr=V(RB + a), tag=(('v', RB + a), ('RB', s + 1))))
                L[0].pos = g.idx[(G, 1)] + 4.1; L[1].pos = g.idx[(G, 1)] + 5.1
                B = g.barrier(s + 2)
                for i in B: i.pos = g.idx[(G, 2)] + 0.2; i.c = 0
                for i in L + B: i.dl = g.idx[(G, 2)] + 1
                F += L + B
        for s in range(8):
            p0 = g.P(s, 0) + (96 if s == 0 else 0); p1 = g.P(s, 7, 1)
            F += g.spread(prods[s], p0, p1, dl=g.P(s, 7, 2))
        if g.o.pf:
            for s in range(1, 7):
                a = I(f"s_mov_b32 s36, L_st{s+1}-L_pc", 'salu', wr=[('s', 36)])
                b = I(f"buffer_load_dword v{EPI+1}, v{EPI}, s[28:31], s36 offen", 'vload', rd=V(EPI) + [('s', 36)], wr=V(EPI + 1))
                a.pos = g.P(s, 0) + 20; b.pos = g.P(s, 0) + 21; F += [a, b]
        F += g.spread(g.accop(1, 0, -1, range(16)), g.P(3, 0) + 12, g.P(3, 7), dl=g.P(4, 7))
        F += g.spread(g.accop(1, 3, +1, range(0, 6)), g.P(5, 1) + 12, g.P(5, 4) - 12, dl=g.P(5, 4) - 4)
        F += g.spread(g.accop(0, 2, +1, range(0, 8)), g.P(5, 4) + 12, g.P(6, 0) - 12, dl=g.P(6, 0) - 4)
        F += g.spread(g.accop(1, 3, +1, range(6, 16)), g.P(6, 0) + 12, g.P(6, 4) - 12, dl=g.P(6, 4) - 4)
        F += g.spread(g.accop(0, 2, +1, range(8, 16)), g.P(6, 4) + 12, g.P(7, 0) - 12, dl=g.P(7, 0) - 4)
        F += g.spread(g.epi(0, [EPI, EPI + 8]), g.P(7, 0) + 4, g.P(8, 0) - 4, dl=g.P(8, 0))
        F += g.spread(g.epi(1, [EPI, EPI + 8]), g.P(8, 0) + 4, g.P(8, 4), dl=g.P(8, 4) + 12)
        F += g.spread(g.epi(2, [EPI, EPI + 8]), g.P(8, 4) + 16, len(M) - 2, dl=len(M))
        tail = g.stamp(10) + g.epi(3, [RAW, RAW + 8, RAW + 16, RAW + 24])
        F = [i for i in F if i.k != 'pad']
        if g.o.trace >= 0:
            for n in range(49):
                g.tr[g.o.trace + n * g.o.tstep] = n
        sk = g.o.skip
        if 'valu' in sk: F = [i for i in F if i.k not in ('valu', 'trans') or i.t.startswith('v_add_u32') or i.t.startswith('v_subrev_u32')]
        if 'wld' in sk: F = [i for i in F if not (i.k == 'vload' and f's[{SW}:' in i.t)]
        if 'xld' in sk: F = [i for i in F if not (i.k == 'vload' and f's[{SX}:' in i.t)]
        if 'dsr' in sk: F = [i for i in F if i.k != 'dsr']
        if 'dsw' in sk: F = [i for i in F if i.k != 'dsw']
        if 'st' in sk: F = [i for i in F if i.k != 'vstore']
        if 'bar' in sk: F = [i for i in F if i.t != 's_barrier']
        for n, i in enumerate(F): i.seq = n
        F.sort(key=lambda i: (i.pos, i.seq))
        MEM = ('vload', 'dsr', 'dsw', 'vstore')
        def indep(x, skipped):
            xr, xw = set(x.rd), set(x.wr)
            for y in skipped:
                if y.k == 'lgkm0' or y.t == 's_barrier' or x.k == 'lgkm0' or x.t == 's_barrier': return False
                if xr & set(y.wr) or xw & set(y.rd) or xw & set(y.wr): return False
            return True
        gaps = []; Q = list(F); late = 0
        for mi, m in enumerate(M):
            gap = []
            if mi in g.tr and g.tr[mi] < 48: gap.append(I(f"s_memtime s[{92+2*(g.tr[mi]%2)}:{93+2*(g.tr[mi]%2)}]", 'salu'))
            if mi - 1 in g.tr and g.tr[mi - 1] > 0: gap.append(I(f"s_mov_b32 s{SST+g.tr[mi-1]-1}, s{92+2*((g.tr[mi-1]-1)%2)}", 'salu'))
            nready = 0; backlog = 0; force = 0
            while nready < len(Q) and Q[nready].pos < mi + 1:
                backlog += Q[nready].c
                if Q[nready].dl is not None and Q[nready].dl <= mi + 1: force = nready + 1
                nready += 1
            lim = 16 + (4 if backlog > g.o.backlog else 0) + (4 if backlog > 3 * g.o.backlog else 0)
            W = min(nready, g.o.look)
            taken = set()
            def pick(pred):
                sk = []
                for k in range(W):
                    if k in taken: continue
                    if pred(Q[k]) and indep(Q[k], sk): return k
                    sk.append(Q[k])
                return None
            while True:
                k = pick(lambda x: x.k in ('salu', 'lgkm0'))
                if k is None or (gapcost(gap + [Q[k]]) > 16 and Q[k].t.startswith('s_add')): break
                gap.append(Q[k]); taken.add(k)
            k = pick(lambda x: x.k in MEM)
            if k is not None and (Q[k].k != 'dsw' or mi - g.lastdsw >= g.o.dswsep):
                gap.append(Q[k]); taken.add(k)
                if Q[k].k == 'dsw': g.lastdsw = mi
            while True:
                k = pick(lambda x: x.k in ('valu', 'trans'))
                if k is None or gapcost(gap + [Q[k]]) > lim: break
                gap.append(Q[k]); taken.add(k)
            for k in range(force):
                if k not in taken: gap.append(Q[k]); taken.add(k); late += 1
            Q = [x for k, x in enumerate(Q) if k not in taken] if taken else Q
            gaps.append(gap)
        sys.stderr.write(f"mfma {len(M)} fillers {len(F)} forced {late} leftover {len(Q)}\n")
        return pre, M, gaps, Q + tail
    def finalize(g, parts):
        pre, M, gaps, tail = parts
        segs = [list(pre)] + [list(x) for x in gaps]; segs[-1] += tail
        def linear():
            for k, sg in enumerate(segs):
                if k: yield M[k - 1]
                for i in sg: yield i
        tags = {('v', RB): ('RB', 0), ('v', RB + 1): ('RB', 0)}
        for i in linear():
            for r, t in i.need:
                assert g.o.skip or tags.get(r) == t, (i.t, r, t, tags.get(r))
            if i.tag: tags[i.tag[0]] = i.tag[1]
        vm = []; lg = []; nw = 0; floor = 0
        head = {}
        def handle(i, k, lst):
            nonlocal vm, lg, nw
            regs = set(i.rd) | set(i.wr)
            for name, q, T, Tmin, mx in (('vmcnt', vm, g.o.tvm, g.o.hvm, 63), ('lgkmcnt', lg, g.o.tlg, g.o.hlg, 15)):
                last = -1
                for n, (dst, sg) in enumerate(q):
                    if dst & regs: last = n
                if last < 0: continue
                if q[last][1] >= k or k == len(segs) - 1 or k < floor:
                    while len(q) - 1 - last > mx: last += 1
                    lst.append(I(f"s_waitcnt {name}({len(q)-1-last})", 'salu')); nw += 1
                else:
                    best = k
                    for c in range(k, max(floor - 1, k - 12, q[last][1] + Tmin - 1), -1):
                        cur = lst + rest if c == k else segs[c]
                        if c in head or gapcost([I('', 'salu')] + cur) == gapcost(cur): best = c; break
                    while last + 1 < len(q) and best - q[last + 1][1] >= T: last += 1
                    n = sum(1 for e in q[last + 1:] if e[1] < best)
                    while n > mx: last += 1; n -= 1
                    h = head.setdefault(best, {})
                    h[name] = min(n, h.get(name, 99))
                if name == 'vmcnt': vm = q[last + 1:]
                else: lg = q[last + 1:]
        for k in range(len(segs)):
            lst = []
            for n, i in enumerate(segs[k]):
                rest = segs[k][n:]
                handle(i, k, lst)
                lst.append(i)
                if i.k == 'lgkm0': lg = []; floor = k + 1
                if i.k == 'vload': vm.append((set(i.wr), k))
                if i.k == 'vstore': vm.append((set(), k))
                if i.k == 'dsr': lg.append((set(i.wr), k))
                if i.k == 'dsw': lg.append((set(), k))
            rest = []
            if k < len(M): handle(M[k], k, lst)
            segs[k] = lst
        for k, h in head.items():
            segs[k].insert(0, I("s_waitcnt " + " ".join(f"{a}({b})" for a, b in h.items()), 'salu')); nw += 1
        st = [0] * 9
        for G in range(len(GROUPS)):
            for k in range(g.idx[(G, 0)], g.idx[(G + 1, 0)]):
                if k + 1 < len(segs) - 1: st[G // 8] += gapcost(segs[k + 1])
        sys.stderr.write(f"model cycles {st} sum {sum(st)} tail {gapcost(segs[-1])}\n")
        if g.o.stall:
            for k in range(1, len(segs) - 1, g.o.stall): segs[k].append(I("s_nop 7", 'salu'))
        out = list(linear())
        res = []; nn = 0
        isv = lambda k: k in ('valu', 'trans')
        for i in out:
            req = 0; dist = 0
            for p in reversed(res[-12:]):
                w = 0
                pw, prd = set(p.wr), set(p.rd)
                if isv(p.k) and i.k == 'mfma' and pw & set(i.rd): w = 2
                if p.k == 'mfma':
                    if isv(i.k) and pw & (set(i.rd) | set(i.wr)): w = 8
                    if i.k in ('vstore', 'dsw', 'vload', 'dsr') and pw & (set(i.rd) | set(i.wr)): w = 8
                    if isv(i.k) and set(p.creads) & set(i.wr): w = max(w, 3)
                if p.k == 'trans' and i.k != 'trans' and pw & set(i.rd): w = max(w, 1)
                if p.k == 'trans' and i.k == 'trans' and pw & set(i.rd): w = max(w, 1)
                if p.k in ('vstore', 'dsw') and isv(i.k) and prd & set(i.wr): w = max(w, 2)
                req = max(req, w - dist)
                dist += (int(p.t.split()[1]) + 1) if p.t.startswith('s_nop') else 1
            if req > 0: res.append(I(f"s_nop {req-1}", 'salu')); nn += 1
            res.append(i)
        sys.stderr.write(f"waits {nw} nops {nn} total {len(res)}\n")
        return res
    def dbgstamp(g, slot, inv, back, vt=250):
        if not g.o.dbg: return ""
        t = f"s_and_b32 s96, s2, 0x38\ns_cmp_lg_u32 s96, 0\ns_cbranch_scc1 L_dbg{slot}\ns_memrealtime s[96:97]\ns_load_dwordx2 s[98:99], s[0:1], 24\ns_waitcnt lgkmcnt(0)\n"
        if not back: t += "s_add_u32 s98, s98, 512\ns_addc_u32 s99, s99, 0\n"
        if inv: t += "s_not_b32 s96, s96\n"
        t += f"v_mov_b32 v{vt}, s96\nv_mov_b32 v{vt+1}, {4*slot}\ns_mov_b64 s[94:95], exec\ns_mov_b64 exec, 1\nglobal_atomic_umax v{vt+1}, v{vt}, s[98:99]\ns_mov_b64 exec, s[94:95]\nL_dbg{slot}:"
        return t
    def main_kernel(g):
        E = g.out.append
        E(f".globl {KN}\n.p2align 8\n.type {KN},@function\n{KN}:")
        E("s_cmp_ge_u32 s2, 256\ns_cbranch_scc1 L_end")
        E(g.dbgstamp(2, True, True)); E(g.dbgstamp(3, False, True))
        if g.o.stamps: E(f"s_memtime s[{SST}:{SST+1}]\ns_memrealtime s[{SST+2}:{SST+3}]")
        E("s_load_dwordx2 s[4:5], s[0:1], 0\ns_load_dwordx2 s[6:7], s[0:1], 16\ns_load_dwordx2 s[26:27], s[0:1], 32")
        if g.o.map == 0:
            E("s_and_b32 s30, s2, 7\ns_lshr_b32 s31, s2, 3\ns_and_b32 s32, s31, 3\ns_lshr_b32 s31, s31, 2\ns_lshl_b32 s30, s30, 3\ns_add_u32 s30, s30, s31")
        elif g.o.map == 1:
            E("s_and_b32 s32, s2, 3\ns_lshr_b32 s30, s2, 2")
        else:
            E("s_and_b32 s32, s2, 1\ns_lshl_b32 s32, s32, 1\ns_bfe_u32 s31, s2, 0x10003\ns_add_u32 s32, s32, s31\ns_bfe_u32 s30, s2, 0x20001\ns_lshl_b32 s30, s30, 4\ns_lshr_b32 s31, s2, 4\ns_add_u32 s30, s30, s31")
        E("s_lshr_b32 s33, s30, 5\ns_and_b32 s34, s30, 31\ns_lshl_b32 s34, s34, 18")
        E("s_mul_i32 s33, s33, 8192000")
        E(f"v_lshlrev_b32 v{EPI}, 7, v0")
        E("v_and_b32 v20, 63, v0\nv_lshrrev_b32 v21, 6, v0")
        E("v_and_b32 v22, 15, v0")
        E("v_bfe_u32 v23, v0, 4, 1")
        E("v_lshrrev_b32 v24, 5, v0")
        E("v_mul_u32_u24 v25, 9, v24")
        E("v_lshlrev_b32 v26, 12, v25\nv_lshlrev_b32 v27, 9, v23\nv_lshlrev_b32 v28, 4, v22")
        E(f"v_add3_u32 v26, v26, v27, v28\ns_sub_u32 s35, s34, {4*4096}\nv_add_u32 v{XBASE}, s35, v26")
        E(f"v_and_b32 v26, 7, v22\nv_mul_u32_u24 v26, {S2}, v26\nv_lshrrev_b32 v27, 3, v22\nv_mul_u32_u24 v27, {S1}, v27\nv_lshlrev_b32 v28, 4, v23\nv_add3_u32 v26, v26, v27, v28")
        for i in range(9):
            E(f"v_add_u32 v27, {i}, v25\nv_and_b32 v28, 7, v27\nv_mul_u32_u24 v28, 288, v28\nv_lshrrev_b32 v27, 3, v27\nv_lshlrev_b32 v27, 5, v27\nv_add3_u32 v{WA+i}, v26, v27, v28")
        E(f"v_bfe_u32 v26, v0, 5, 1\nv_mul_u32_u24 v26, {S2}, v26\nv_mul_u32_u24 v27, {S1}, v23\nv_lshlrev_b32 v28, 4, v22\nv_add3_u32 v{RB}, v26, v27, v28\nv_add_u32 v{RB+1}, {ARR}, v{RB}")
        E(f"s_lshl_b32 s36, s32, 2\nv_add_u32 v26, s36, v21\nv_mul_u32_u24 v26, {STREAM}, v26\nv_lshlrev_b32 v27, 4, v20\nv_add_u32 v{WL}, v26, v27")
        E("v_lshrrev_b32 v26, 1, v22\nv_lshlrev_b32 v26, 15, v26\nv_and_b32 v27, 1, v22\nv_lshlrev_b32 v27, 9, v27\nv_lshlrev_b32 v28, 5, v21\nv_add3_u32 v26, v26, v27, v28")
        E(f"v_lshrrev_b32 v27, 4, v20\nv_lshlrev_b32 v27, 3, v27\ns_lshl_b32 s36, s32, 7\ns_add_u32 s36, s36, s34\nv_add3_u32 v{SB}, v26, v27, s36")
        E(f"s_mov_b32 s{SWO}, 0\ns_mov_b32 s{SC1}, {hex(fb(2*1.4426950408889634))}\ns_mov_b32 s{SC2}, {hex(fb(-1.4426950408889634))}\ns_mov_b32 s{SCL}, {hex(fb(32.0))}\ns_mov_b32 s{SMASK}, 0xffff0000")
        E("s_waitcnt lgkmcnt(0)")
        E(f"s_add_u32 s{SX}, s4, s33\ns_addc_u32 s{SX+1}, s5, 0\ns_mov_b32 s{SX+2}, 8192000\ns_mov_b32 s{SX+3}, 0x20000")
        E(f"s_mov_b32 s{SW}, s26\ns_mov_b32 s{SW+1}, s27\ns_mov_b32 s{SW+2}, {0x10000000 if g.o.stamps else 16*STREAM}\ns_mov_b32 s{SW+3}, 0x20000")
        E(f"s_add_u32 s{SO}, s6, s33\ns_addc_u32 s{SO+1}, s7, 0\ns_mov_b32 s{SO+2}, 8192000\ns_mov_b32 s{SO+3}, 0x20000")
        E(f"s_getpc_b64 s[28:29]\nL_pc:\ns_mov_b32 s30, L_end-L_pc\ns_mov_b32 s31, 0x20000\ns_mov_b32 s36, 0\ns_mov_b32 s37, 32768\ns_mov_b32 s38, 65536\ns_mov_b32 s39, 98304")
        for i in g.finalize(g.body()): E(i.t)
        if g.o.stamps:
            n = 12
            if g.o.trace < 0: E(f"s_waitcnt vmcnt(0)\ns_memtime s[{SST+44}:{SST+45}]\ns_memrealtime s[{SST+46}:{SST+47}]\ns_waitcnt lgkmcnt(0)")
            E(f"v_mbcnt_lo_u32_b32 v20, -1, 0\nv_mbcnt_hi_u32_b32 v20, -1, v20\nv_lshlrev_b32 v21, 4, v20\nv_sub_u32 v21, v{WL}, v21\ns_lshl_b32 s36, s32, 2\ns_mul_i32 s36, s36, {STREAM}\nv_subrev_u32 v21, s36, v21\nv_or_b32 v21, v21, v20")
            E("v_cmp_eq_u32 vcc, 0, v21\ns_and_saveexec_b64 s[90:91], vcc\ns_cbranch_execz L_end")
            E(f"s_mul_i32 s36, s2, {16*n}\ns_add_u32 s36, s36, {200<<20}")
            for k in range(n):
                for j in range(4): E(f"v_mov_b32 v{24+j}, s{SST+4*k+j}")
                E(f"buffer_store_dwordx4 v[24:27], v21, s[{SW}:{SW+3}], s36 offen offset:{16*k}\ns_nop 1")
        if g.o.dbg: E(g.dbgstamp(4, False, True)); E("s_waitcnt vmcnt(0)"); E(g.dbgstamp(5, False, True)); E(g.dbgstamp(6, True, True))
        E("L_end:\ns_endpgm")
    def prep_kernel(g):
        E = g.out.append
        E(f".globl {PN}\n.p2align 8\n.type {PN},@function\n{PN}:")
        E("s_cmp_ge_u32 s2, 256\ns_cbranch_scc1 LP_end2")
        E(g.dbgstamp(0, True, False, 116))
        E("s_load_dwordx2 s[4:5], s[0:1], 8\ns_load_dwordx2 s[6:7], s[0:1], 32")
        E("s_and_b32 s20, s2, 1\ns_bfe_u32 s21, s2, 0x50001\ns_lshr_b32 s22, s2, 6")
        for i in range(32): E(f"v_mov_b32 v{8+i}, 0")
        E("v_lshlrev_b32 v1, 1, v0\ns_lshl_b32 s23, s20, 9\ns_lshl_b32 s24, s21, 13\ns_add_u32 s23, s23, s24\nv_add_u32 v1, s23, v1\nv_add_u32 v2, 4096, v1")
        E("s_lshl_b32 s25, s22, 20")
        E("s_waitcnt lgkmcnt(0)")
        E("s_mov_b32 s8, s4\ns_mov_b32 s9, s5\ns_mov_b32 s10, 3932160\ns_mov_b32 s11, 0x20000")
        E(f"s_mov_b32 s12, s6\ns_mov_b32 s13, s7\ns_mov_b32 s14, {16*STREAM}\ns_mov_b32 s15, 0x20000")
        def ld(r):
            for i in range(8): E(f"buffer_load_short_d16_hi v{8+8*r+i}, v{1+i//4}, s[8:11], s26 offen offset:{(i%4)*1024}")
        E("s_cmp_eq_u32 s22, 0\ns_cbranch_scc1 LP_skip0\ns_sub_u32 s26, s25, 262144")
        ld(0)
        E("LP_skip0:")
        for r in range(1, 4):
            E(f"s_add_u32 s26, s25, {(r-1)*262144}"); ld(r)
        E(f"v_lshrrev_b32 v3, 4, v0\nv_mul_u32_u24 v3, {STREAM}, v3\nv_and_b32 v4, 15, v0\nv_lshlrev_b32 v4, 4, v4\nv_add_u32 v3, v3, v4")
        E("s_lshr_b32 s27, s21, 4\ns_bfe_u32 s28, s21, 0x20001\ns_and_b32 s29, s21, 1\ns_lshl_b32 s29, s29, 1\ns_bfe_u32 s30, s21, 0x10003\ns_add_u32 s29, s29, s30\ns_lshl_b32 s29, s29, 8")
        E("v_add_u32 v3, s29, v3")
        E("s_waitcnt vmcnt(0)")
        g_ = lambda r: 8 + 8 * r
        T = {'12': 40, '32': 48, '21': 56, '23': 64, '22': 72, '11': g_(0), '13': g_(1), '31': g_(2), '33': g_(3)}
        for i in range(8):
            E(f"v_add_f32 v{40+i}, v{g_(0)+i}, v{g_(1)+i}\nv_add_f32 v{48+i}, v{g_(2)+i}, v{g_(3)+i}\nv_add_f32 v{56+i}, v{g_(0)+i}, v{g_(2)+i}\nv_add_f32 v{64+i}, v{g_(1)+i}, v{g_(3)+i}\nv_add_f32 v{72+i}, v{40+i}, v{48+i}")
        for n, pt in enumerate(['22', '23', '21', '12', '32', '13', '33', '31', '11']):
            nt = len(taps(pt)); k0 = taps(pt)[0]
            base = GOFF[(pt, 0, 0)]; dstr = GOFF[(pt, 1, 0)] - base; kstr = 2 * nt
            o = 80 + 4 * n
            if pt == '11': E("s_cmp_eq_u32 s22, 0\ns_cbranch_scc1 LP_end")
            for i in range(4): E(f"v_cvt_pk_bf16_f32 v{o+i}, v{T[pt]+2*i}, v{T[pt]+2*i+1}")
            E(f"s_mul_i32 s31, s27, {dstr}\ns_mul_i32 s32, s28, {kstr}\ns_add_u32 s31, s31, s32\ns_mul_i32 s32, s20, {nt}\ns_add_u32 s31, s31, s32\ns_add_u32 s31, s31, s22\ns_add_u32 s31, s31, {base-k0}\ns_lshl_b32 s31, s31, 10")
            E(f"buffer_store_dwordx4 v[{o}:{o+3}], v3, s[12:15], s31 offen")
        E("LP_end:")
        if g.o.dbg: E("s_waitcnt vmcnt(0)"); E(g.dbgstamp(1, False, False, 116))
        E("LP_end2:\ns_endpgm")
    def emit(g):
        E = g.out.append
        E(f"; F(4,4) nested fast-FIR (Karatsuba x2) dilated conv + gated activation; generated by gen.py")
        E(f"; @launch kernel={PN} grid=(256,1,1) block=(256,1,1) lds=0")
        E(f"; @launch kernel={KN} grid=(256,1,1) block=(256,1,1) lds={LDS_BYTES}")
        E('.amdgcn_target "amdgcn-amd-amdhsa--gfx950"\n.text')
        g.prep_kernel(); g.main_kernel()
        for n, nv, ao in ((PN, 120, 120), (KN, 512, 256)):
            E(f""".section .rodata,"a"
.p2align 6
.amdhsa_kernel {n}
  .amdhsa_next_free_vgpr {nv}
  .amdhsa_next_free_sgpr 100
  .amdhsa_accum_offset {ao}
  .amdhsa_group_segment_fixed_size 0
  .amdhsa_kernarg_size 40
  .amdhsa_user_sgpr_count 2
  .amdhsa_user_sgpr_kernarg_segment_ptr 1
  .amdhsa_system_sgpr_workgroup_id_x 1
  .amdhsa_float_denorm_mode_32 3
.end_amdhsa_kernel""")
        return "\n".join(x for x in g.out if x) + "\n"

if __name__ == '__main__':
    ap = argparse.ArgumentParser()
    ap.add_argument('-o', default='standalone__autoregressive_conv_wavernn__speech.s')
    ap.add_argument('--stamps', action='store_true'); ap.add_argument('--cap', type=int, default=2); ap.add_argument('--backlog', type=int, default=6)
    ap.add_argument('--tvm', type=int, default=64); ap.add_argument('--tlg', type=int, default=10)
    ap.add_argument('--wflags', default=''); ap.add_argument('--sflags', default='')
    ap.add_argument('--skip', default=''); ap.add_argument('--pf', type=int, default=1); ap.add_argument('--map', type=int, default=0); ap.add_argument('--look', type=int, default=10); ap.add_argument('--dswsep', type=int, default=6)
    ap.add_argument('--dbg', action='store_true'); ap.add_argument('--stall', type=int, default=0); ap.add_argument('--hvm', type=int, default=48); ap.add_argument('--hlg', type=int, default=8); ap.add_argument('--trace', type=int, default=-1); ap.add_argument('--tstep', type=int, default=8)
    o = ap.parse_args()
    o.skip = [x for x in o.skip.split(',') if x]
    if o.wflags: o.wflags = ' ' + o.wflags
    if o.sflags: o.sflags = ' ' + o.sflags
    open(o.o, 'w').write(Gen(o).emit())
```

```python
import sys, struct, argparse
KN = "standalone__autoregressive_conv_wavernn__speech_kernel"
PN = "wprep_kernel"
fb = lambda f: struct.unpack('<I', struct.pack('<f', f))[0]

S1, S2, ARR, BUF = 2304, 4624, 36992, 73984
LDS_BYTES = 2 * BUF
STREAM = 560 * 1024

STAGES = [(('22', 0), ('22', 1)),
          (('23', 0), ('21', 0)), (('23', 1), ('21', 1)),
          (('12', 0), ('32', 0)), (('12', 1), ('32', 1)),
          (('13', 0), ('33', 0)), (('13', 1), ('33', 1)),
          (('11', 0), ('31', 0)), (('11', 1), ('31', 1))]
SET = {'22': 0, '23': 1, '21': 0, '12': 2, '32': 3, '13': 0, '33': 1, '11': 2, '31': 3}
FORK = {'22': None, '23': 0, '12': 0, '32': 0, '13': 1}
QOF = {0: 1, 1: 3, 2: 0, 3: 2}
PTYPE = ['A', 'B', 'B', 'C', 'C', 'D', 'D', 'E', 'E']
def taps(pt): return [1, 2, 3] if pt == '11' else [0, 1, 2, 3]

GROUPS = []
_off = 0
for s, st in enumerate(STAGES):
    for a, (pt, dh) in enumerate(st):
        for kp in range(4):
            GROUPS.append((s, a, pt, dh, kp, _off)); _off += 2 * len(taps(pt))
assert _off == 560
GOFF = {(pt, dh, kp): off for (s, a, pt, dh, kp, off) in GROUPS}

def V(n, c=1): return [('v', n + i) for i in range(c)]
def A(n, c=1): return [('a', n + i) for i in range(c)]
def vr(n, c): return f"v[{n}:{n+c-1}]"
def ar(n, c): return f"a[{n}:{n+c-1}]"
class I:
    __slots__ = ('t', 'k', 'rd', 'wr', 'c', 'need', 'tag', 'pos', 'dl', 'seq', 'creads')
    def __init__(s, t, k, rd=(), wr=(), need=None, tag=None, creads=()):
        s.t = t; s.k = k; s.rd = list(rd); s.wr = list(wr); s.need = need or []; s.tag = tag
        s.c = {'trans': 2, 'dsw': 2, 'salu': 0}.get(k, 1); s.pos = None; s.dl = None; s.creads = list(creads)

WA = 1; RB = 10; WL = 12; XA = 13; XBASE = 15; SB = 0
WR = 16; XF = 112; RAW = 156; NRAW = 12; PERS = 204; TMP = 212; OUT = 220; EPI = 236; ACT = 252
SX, SW, SO = 8, 12, 16
SWO = 20; SC1, SC2, SCL, SMASK = 21, 22, 23, 24
SST = 40

def gapcost(gap):
    t = 4; sawv = False
    for i in gap:
        if i.k in ('valu', 'trans'): t = max(t, 8) + (8 if i.k == 'trans' else 4); sawv = True
        elif i.k == 'dsw': t += 24 + (8 if sawv else 0)
        elif i.k in ('vload', 'dsr', 'vstore'): t += 8 + (8 if sawv else 0)
        else: t += 4
    return max(t, 16)

class Gen:
    def __init__(g, opt):
        g.o = opt; g.out = []; g.tr = {}; g.lastdsw = -99
    def mfmas(g):
        M = []; g.idx = {}
        for G, (s, a, pt, dh, kp, off) in enumerate(GROUPS):
            tp = taps(pt); st = SET[pt]
            first = (kp == 0 and dh == 0 and pt in FORK)
            for j in range(8):
                g.idx[(G, j)] = len(M)
                for h in range(2):
                    for ki, k in enumerate(tp):
                        acc = st * 64 + (j * 2 + h) * 4
                        w = WR + ((G % 3) * 8 + h * len(tp) + ki) * 4
                        x = XF + (j + k) * 4
                        if first and ki == 0:
                            if FORK[pt] is None: cs, cr = '0', []
                            else:
                                c = FORK[pt] * 64 + (j * 2 + h) * 4; cs, cr = ar(c, 4), A(c, 4)
                        else: cs, cr = ar(acc, 4), A(acc, 4)
                        M.append(I(f"v_mfma_f32_16x16x32_bf16 {ar(acc,4)}, {vr(w,4)}, {vr(x,4)}, {cs}", 'mfma',
                                   rd=V(w, 4) + V(x, 4) + cr, wr=A(acc, 4), creads=cr,
                                   need=[(('v', w), ('W', G, h, k)), (('v', x), ('X', G, j + k))]))
        g.idx[(len(GROUPS), 0)] = len(M)
        for s in range(9): M[g.idx[(8 * s, 0)]].t = f"L_st{s}:\n" + M[g.idx[(8 * s, 0)]].t
        return M
    def P(g, s, gr, j=0): return g.idx[(s * 8 + gr, j)]
    def wloads(g, G):
        s, a, pt, dh, kp, off = GROUPS[G]; tp = taps(pt); L = []
        for h in range(2):
            for ki, k in enumerate(tp):
                f = off + h * len(tp) + ki
                if f % 4 == 0 and f: L.append(I(f"s_add_u32 s{SWO}, s{SWO}, 4096" if not ('wwrap' in g.o.skip and f % 64 == 0) else f"s_add_u32 s{SWO}, s{SWO}, {hex((1<<32)-61440)}", 'salu', rd=[('s', SWO)], wr=[('s', SWO)]))
                w = WR + ((G % 3) * 8 + h * len(tp) + ki) * 4
                L.append(I(f"buffer_load_dwordx4 {vr(w,4)}, v{WL}, s[{SW}:{SW+3}], s{SWO} offen offset:{(f%4)*1024}{g.o.wflags}", 'vload',
                           rd=V(WL) + [('s', SWO)], wr=V(w, 4), tag=(('v', w), ('W', G, h, k))))
        return L
    def xread(g, G, c):
        s, a, pt, dh, kp, off = GROUPS[G]
        x = XF + c * 4; imm = 2 * kp * S2 + (c % 8) * 288 + (c // 8) * 32
        return I(f"ds_read_b128 {vr(x,4)}, v{RB+a} offset:{imm}", 'dsr', rd=V(RB + a), wr=V(x, 4), tag=(('v', x), ('X', G, c)),
                 need=[(('v', RB + a), ('RB', s))])
    def spread(g, L, p0, p1, dl=None):
        tot = sum(i.c for i in L); acc = 0
        for i in L:
            i.pos = p0 + (p1 - p0) * acc / max(tot, 1); acc += i.c
            i.dl = dl
        return L
    def production(g):
        rows = []
        progs = []
        def newrow(s, ai, imm):
            rows.append((s, ai, imm + STAGES[s][0][1] * 256)); return len(rows) - 1
        rr = lambda n: RAW + (n % NRAW) * 4
        tctr = [0]
        def tmp():
            t = TMP + tctr[0] % 8; tctr[0] += 1; return t
        octr = [0]
        def lo(dst, n, i): return I(f"v_lshlrev_b32 v{dst}, 16, v{rr(n)+i}", 'valu', rd=V(rr(n)+i), wr=V(dst), need=[(('v', rr(n)), ('R', n))], tag=('use', n))
        def hi(dst, n, i): return I(f"v_and_b32 v{dst}, s{SMASK}, v{rr(n)+i}", 'valu', rd=V(rr(n)+i), wr=V(dst), need=[(('v', rr(n)), ('R', n))], tag=('use', n))
        def sub(d, a, b): return I(f"v_sub_f32 v{d}, v{a}, v{b}", 'valu', rd=V(a) + V(b), wr=V(d))
        def cvt(d, a, b): return I(f"v_cvt_pk_bf16_f32 v{d}, v{a}, v{b}", 'valu', rd=V(a) + V(b), wr=V(d))
        def wr(s, i, arr, src): return I(f"ds_write_b128 v{WA+i}, {vr(src,4)} offset:{arr*ARR}", 'dsw', rd=V(WA + i) + V(src, 4), need=[(('v', WA + i), ('WA', s))])
        for s in range(1, 9):
            ty = PTYPE[s]; L = []
            for i in range(9):
                op = 'v_add_u32' if s % 2 else 'v_subrev_u32'
                L.append(I(f"{op} v{WA+i}, {BUF}, v{WA+i}", 'valu', rd=V(WA + i), wr=V(WA + i), tag=(('v', WA + i), ('WA', s))))
            if ty == 'C':
                n1 = newrow(s, 0, 2048)
                for d in range(4): L += [lo(PERS + 2*d, n1, d), hi(PERS + 2*d + 1, n1, d)]
            elif ty in 'DE':
                if ty == 'D': nb, na = newrow(s, 0, 2048), newrow(s, 0, 3072)
                else: na, nb = newrow(s, 0, 1024), newrow(s, 0, 2048)
                for d in range(4):
                    t0, t1 = tmp(), tmp()
                    L += [lo(PERS + 2*d, na, d), hi(PERS + 2*d + 1, na, d), lo(t0, nb, d), hi(t1, nb, d),
                          sub(PERS + 2*d, PERS + 2*d, t0), sub(PERS + 2*d + 1, PERS + 2*d + 1, t1)]
            pend = None
            for i in range(9):
                stepstart = len(L)
                o0 = OUT + (octr[0] % 2) * 8; o1 = o0 + 4; octr[0] += 1
                if ty == 'B':
                    n2, n3, n4 = newrow(s, i, 3072), newrow(s, i + 1, 0), newrow(s, i + 1, 1024)
                    for d in range(4):
                        a, b, c, e, f, h = [tmp() for _ in range(6)]
                        L += [lo(a, n3, d), hi(b, n3, d), lo(c, n4, d), hi(e, n4, d), lo(f, n2, d), hi(h, n2, d),
                              sub(c, c, a), sub(e, e, b), sub(f, f, a), sub(h, h, b), cvt(o0 + d, c, e), cvt(o1 + d, f, h)]
                elif ty == 'C':
                    n3, n5 = newrow(s, i + 1, 0), newrow(s, i + 1, 2048)
                    for d in range(4):
                        a, b, c, e = [tmp() for _ in range(4)]
                        p0, p1 = PERS + 2*d, PERS + 2*d + 1
                        L += [lo(a, n3, d), hi(b, n3, d), sub(c, p0, a), sub(e, p1, b), lo(p0, n5, d), hi(p1, n5, d), cvt(o0 + d, c, e),
                              sub(a, p0, a), sub(b, p1, b), cvt(o1 + d, a, b)]
                else:
                    if ty == 'D':
                        n3, n4, n5, n6 = [newrow(s, i + 1, 1024 * q) for q in range(4)]
                        mp, mm, np_, nm = n4, n3, n6, n5
                    else:
                        n2 = newrow(s, i, 3072); n3, n4, n5 = [newrow(s, i + 1, 1024 * q) for q in range(3)]
                        mp, mm, np_, nm = n2, n3, n4, n5
                    for d in range(4):
                        a, b, c, e = [tmp() for _ in range(4)]
                        p0, p1 = PERS + 2*d, PERS + 2*d + 1
                        L += [lo(a, mp, d), hi(b, mp, d), lo(c, mm, d), hi(e, mm, d), sub(a, a, c), sub(b, b, e),
                              sub(c, p0, a), sub(e, p1, b), lo(p0, np_, d), hi(p1, np_, d), cvt(o0 + d, c, e),
                              lo(c, nm, d), hi(e, nm, d), sub(p0, p0, c), sub(p1, p1, e), sub(a, p0, a), sub(b, p1, b), cvt(o1 + d, a, b)]
                w0, w1 = wr(s, i, 0, o0), wr(s, i, 1, o1)
                if pend is not None:
                    L.insert(stepstart + (len(L) - stepstart) // 2, pend)
                L.append(w0); pend = w1
                if i == 8:
                    pad = I("", 'pad'); pad.c = 10
                    L += [pad, w1]
            progs.append(L)
        last = {}
        for ps, L in enumerate(progs):
            for k, op in enumerate(L):
                if op.tag and op.tag[0] == 'use': last[op.tag[1]] = (ps, k); op.tag = None
        cur = {}
        def load(n):
            s, ai, imm = rows[n]; r = XA + ai % 2; L = []
            if cur.get(r) != (s, ai):
                L.append(I(f"v_add_u32 v{r}, {4096*ai}, v{XBASE}", 'valu', rd=V(XBASE), wr=V(r))); cur[r] = (s, ai)
            L.append(I(f"buffer_load_dwordx4 {vr(rr(n),4)}, v{r}, s[{SX}:{SX+3}], 0 offen offset:{imm}", 'vload', rd=V(r), wr=V(rr(n), 4), tag=(('v', rr(n)), ('R', n))))
            return L
        head = []
        for n in range(NRAW): head += load(n)
        ins = {}
        prev = (0, -1)
        for n in range(NRAW, len(rows)):
            at = max(last[n - NRAW], prev); prev = at
            ins.setdefault(at, []).extend(load(n))
        res = []
        for ps, L in enumerate(progs):
            R = []
            for k, op in enumerate(L):
                R.append(op); R += ins.get((ps, k), [])
            res.append(R)
        return head, res
    def accop(g, dst, src, sign, tiles):
        L = []; n = 0
        for t in tiles:
            for r in range(0, 4, 2):
                d = dst * 64 + t * 4 + r; s_ = src * 64 + t * 4 + r
                T = [ACT, ACT + 1, ACT + 2, ACT + 3]
                op = 'v_add_f32' if sign > 0 else 'v_sub_f32'
                L += [I(f"v_accvgpr_read_b32 v{T[0]}, a{d}", 'valu', rd=A(d), wr=V(T[0])), I(f"v_accvgpr_read_b32 v{T[1]}, a{s_}", 'valu', rd=A(s_), wr=V(T[1])),
                      I(f"v_accvgpr_read_b32 v{T[2]}, a{d+1}", 'valu', rd=A(d+1), wr=V(T[2])), I(f"v_accvgpr_read_b32 v{T[3]}, a{s_+1}", 'valu', rd=A(s_+1), wr=V(T[3])),
                      I(f"{op} v{T[0]}, v{T[0]}, v{T[1]}", 'valu', rd=V(T[0]) + V(T[1]), wr=V(T[0])), I(f"{op} v{T[2]}, v{T[2]}, v{T[3]}", 'valu', rd=V(T[2]) + V(T[3]), wr=V(T[2])),
                      I(f"v_accvgpr_write_b32 a{d}, v{T[0]}", 'valu', rd=V(T[0]), wr=A(d)), I(f"v_accvgpr_write_b32 a{d+1}, v{T[2]}", 'valu', rd=V(T[2]), wr=A(d+1))]
        return L
    def epi(g, st, banks):
        L = []; q = QOF[st]
        for j in range(8):
            F = banks[j % len(banks)]; Gq = F + 4
            f = st * 64 + j * 8; gg = f + 4
            R = range(4)
            L += [I(f"v_accvgpr_read_b32 v{F+r}, a{f+r}", 'valu', rd=A(f+r), wr=V(F+r)) for r in R]
            L += [I(f"v_accvgpr_read_b32 v{Gq+r}, a{gg+r}", 'valu', rd=A(gg+r), wr=V(Gq+r)) for r in R]
            L += [I(f"v_mul_f32 v{F+r}, s{SC1}, v{F+r}", 'valu', rd=V(F+r), wr=V(F+r)) for r in R]
            L += [I(f"v_mul_f32 v{Gq+r}, s{SC2}, v{Gq+r}", 'valu', rd=V(Gq+r), wr=V(Gq+r)) for r in R]
            L += [I(f"v_med3_f32 v{F+r}, v{F+r}, -s{SCL}, s{SCL}", 'valu', rd=V(F+r), wr=V(F+r)) for r in R]
            L += [I(f"v_exp_f32 v{Gq+r}, v{Gq+r}", 'trans', rd=V(Gq+r), wr=V(Gq+r)) for r in R]
            L += [I(f"v_exp_f32 v{F+r}, v{F+r}", 'trans', rd=V(F+r), wr=V(F+r)) for r in R]
            L += [I(f"v_add_f32 v{Gq+r}, 1.0, v{Gq+r}", 'valu', rd=V(Gq+r), wr=V(Gq+r)) for r in R]
            L += [I(f"v_fma_f32 v{Gq+r}, v{F+r}, v{Gq+r}, v{Gq+r}", 'valu', rd=V(Gq+r) + V(F+r), wr=V(Gq+r)) for r in R]
            L += [I(f"v_rcp_f32 v{Gq+r}, v{Gq+r}", 'trans', rd=V(Gq+r), wr=V(Gq+r)) for r in R]
            L += [I(f"v_fma_f32 v{F+r}, v{F+r}, v{Gq+r}, -v{Gq+r}", 'valu', rd=V(Gq+r) + V(F+r), wr=V(F+r)) for r in R]
            L += [I(f"v_add_u32 v{Gq}, {4096*j}, v{SB}", 'valu', rd=V(SB), wr=V(Gq)),
                  I(f"v_cvt_pk_bf16_f32 v{F}, v{F}, v{F+1}", 'valu', rd=V(F, 2), wr=V(F)),
                  I(f"v_cvt_pk_bf16_f32 v{F+1}, v{F+2}, v{F+3}", 'valu', rd=V(F+2, 2), wr=V(F+1)),
                  I(f"buffer_store_dwordx2 {vr(F,2)}, v{Gq}, s[{SO}:{SO+3}], 0 offen offset:{q*1024}{g.o.sflags}", 'vstore', rd=V(F, 2) + V(Gq))]
        return L
    def stamp(g, n):
        if not g.o.stamps or g.o.trace >= 0: return []
        return [I(f"s_memtime s[{SST+4*n}:{SST+4*n+1}]", 'salu'), I(f"s_memrealtime s[{SST+4*n+2}:{SST+4*n+3}]", 'salu')]
    def barrier(g, n):
        return g.stamp(n) + [I("s_waitcnt lgkmcnt(0)", 'lgkm0'), I("s_barrier", 'salu')]
    def body(g):
        M = g.mfmas(); NG = len(GROUPS); F = []
        head, prods = g.production()
        pre = []
        for i in range(9):
            r = XA + i % 2
            pre.append(I(f"v_add_u32 v{r}, {4096*(i+1)}, v{XBASE}", 'valu', rd=V(XBASE), wr=V(r)))
            for dh in range(2):
                d = RAW + (i * 2 + dh) * 4
                pre.append(I(f"buffer_load_dwordx4 {vr(d,4)}, v{r}, s[{SX}:{SX+3}], 0 offen offset:{dh*256}", 'vload', rd=V(r), wr=V(d, 4)))
        pre += g.wloads(0) + g.wloads(1)
        if g.o.pf:
            for k in range(g.o.pf):
                pre.append(I(f"buffer_load_dword v{EPI+1+k}, v{EPI}, s[28:31], s{36+k} offen", 'vload', rd=V(EPI), wr=V(EPI + 1 + k)))
        for i in range(9):
            for dh in range(2):
                d = RAW + (i * 2 + dh) * 4
                pre.append(I(f"ds_write_b128 v{WA+i}, {vr(d,4)} offset:{dh*ARR}", 'dsw', rd=V(WA + i) + V(d, 4)))
        pre += g.barrier(1)
        if g.o.spin1: pre.append(I(g.spin(g.o.spin1, 'L_sp1'), 'lgkm0'))
        pre += [g.xread(0, c) for c in range(7)]
        pre += head
        for G in range(2, NG):
            F += g.spread(g.wloads(G), g.idx[(G - 2, 0)] + 1, g.idx[(G - 1, 0)] - 2, dl=g.idx[(G - 1, 0)] + 8)
        for G in range(NG):
            s = GROUPS[G][0]; used = sorted({j + k for j in range(8) for k in taps(GROUPS[G][2])})
            lastg = (G % 8 == 7)
            for c in used:
                if c >= 7:
                    op = g.xread(G, c)
                    op.pos = g.idx[(G, 0)] + 2 * (c - 7) + 0.5 if lastg else g.idx[(G, c - 7)] + 2.5
                    op.dl = g.idx[(G, c - 3)] - 10 if not lastg else g.idx[(G, 1)] + 2; F.append(op)
                elif G > 0:
                    op = g.xread(G, c)
                    p = g.idx[(G - 1, c + 1)] + 4.5
                    if G % 8 == 0: p = max(p, g.idx[(G - 1, 2)] + 1.5 + 2 * c)
                    op.pos = p; op.dl = max(p + 1, g.idx[(G, max(0, c - 3))] - 10); F.append(op)
            if lastg and s < 8:
                L = []
                for a in range(2):
                    op = 'v_add_u32' if (s + 1) % 2 else 'v_subrev_u32'
                    L.append(I(f"{op} v{RB+a}, {BUF}, v{RB+a}", 'valu', rd=V(RB + a), wr=V(RB + a), tag=(('v', RB + a), ('RB', s + 1))))
                L[0].pos = g.idx[(G, 1)] + 4.1; L[1].pos = g.idx[(G, 1)] + 5.1
                B = g.barrier(s + 2)
                for i in B: i.pos = g.idx[(G, 2)] + 0.2; i.c = 0
                for i in L + B: i.dl = g.idx[(G, 2)] + 1
                F += L + B
        for s in range(8):
            p0 = g.P(s, 0) + (96 if s == 0 else 0); p1 = g.P(s, 7, 1)
            F += g.spread(prods[s], p0, p1, dl=g.P(s, 7, 2))
        if g.o.pf:
            for s in range(1, 7):
                a = I(f"s_mov_b32 s36, L_st{s+1}-L_pc", 'salu', wr=[('s', 36)])
                b = I(f"buffer_load_dword v{EPI+1}, v{EPI}, s[28:31], s36 offen", 'vload', rd=V(EPI) + [('s', 36)], wr=V(EPI + 1))
                a.pos = g.P(s, 0) + 20; b.pos = g.P(s, 0) + 21; F += [a, b]
        F += g.spread(g.accop(1, 0, -1, range(16)), g.P(3, 0) + 12, g.P(3, 7), dl=g.P(4, 7))
        F += g.spread(g.accop(1, 3, +1, range(0, 6)), g.P(5, 1) + 12, g.P(5, 4) - 12, dl=g.P(5, 4) - 4)
        F += g.spread(g.accop(0, 2, +1, range(0, 8)), g.P(5, 4) + 12, g.P(6, 0) - 12, dl=g.P(6, 0) - 4)
        F += g.spread(g.accop(1, 3, +1, range(6, 16)), g.P(6, 0) + 12, g.P(6, 4) - 12, dl=g.P(6, 4) - 4)
        F += g.spread(g.accop(0, 2, +1, range(8, 16)), g.P(6, 4) + 12, g.P(7, 0) - 12, dl=g.P(7, 0) - 4)
        F += g.spread(g.epi(0, [EPI, EPI + 8]), g.P(7, 0) + 4, g.P(8, 0) - 4, dl=g.P(8, 0))
        F += g.spread(g.epi(1, [EPI, EPI + 8]), g.P(8, 0) + 4, g.P(8, 4), dl=g.P(8, 4) + 12)
        F += g.spread(g.epi(2, [EPI, EPI + 8]), g.P(8, 4) + 16, len(M) - 2, dl=len(M))
        tail = g.stamp(10) + g.epi(3, [RAW, RAW + 8, RAW + 16, RAW + 24])
        F = [i for i in F if i.k != 'pad']
        if g.o.trace >= 0:
            for n in range(49):
                g.tr[g.o.trace + n * g.o.tstep] = n
        sk = g.o.skip
        if 'valu' in sk: F = [i for i in F if i.k not in ('valu', 'trans') or i.t.startswith('v_add_u32') or i.t.startswith('v_subrev_u32')]
        if 'wld' in sk: F = [i for i in F if not (i.k == 'vload' and f's[{SW}:' in i.t)]
        if 'xld' in sk: F = [i for i in F if not (i.k == 'vload' and f's[{SX}:' in i.t)]
        if 'dsr' in sk: F = [i for i in F if i.k != 'dsr']
        if 'dsw' in sk: F = [i for i in F if i.k != 'dsw']
        if 'st' in sk: F = [i for i in F if i.k != 'vstore']
        if 'bar' in sk: F = [i for i in F if i.t != 's_barrier']
        for n, i in enumerate(F): i.seq = n
        F.sort(key=lambda i: (i.pos, i.seq))
        MEM = ('vload', 'dsr', 'dsw', 'vstore')
        def indep(x, skipped):
            xr, xw = set(x.rd), set(x.wr)
            for y in skipped:
                if y.k == 'lgkm0' or y.t == 's_barrier' or x.k == 'lgkm0' or x.t == 's_barrier': return False
                if xr & set(y.wr) or xw & set(y.rd) or xw & set(y.wr): return False
            return True
        gaps = []; Q = list(F); late = 0
        for mi, m in enumerate(M):
            gap = []
            if mi in g.tr and g.tr[mi] < 48: gap.append(I(f"s_memtime s[{92+2*(g.tr[mi]%2)}:{93+2*(g.tr[mi]%2)}]", 'salu'))
            if mi - 1 in g.tr and g.tr[mi - 1] > 0: gap.append(I(f"s_mov_b32 s{SST+g.tr[mi-1]-1}, s{92+2*((g.tr[mi-1]-1)%2)}", 'salu'))
            nready = 0; backlog = 0; force = 0
            while nready < len(Q) and Q[nready].pos < mi + 1:
                backlog += Q[nready].c
                if Q[nready].dl is not None and Q[nready].dl <= mi + 1: force = nready + 1
                nready += 1
            lim = 16 + (4 if backlog > g.o.backlog else 0) + (4 if backlog > 3 * g.o.backlog else 0)
            W = min(nready, g.o.look)
            taken = set()
            def pick(pred):
                sk = []
                for k in range(W):
                    if k in taken: continue
                    if pred(Q[k]) and indep(Q[k], sk): return k
                    sk.append(Q[k])
                return None
            while True:
                k = pick(lambda x: x.k in ('salu', 'lgkm0'))
                if k is None or (gapcost(gap + [Q[k]]) > 16 and Q[k].t.startswith('s_add')): break
                gap.append(Q[k]); taken.add(k)
            k = pick(lambda x: x.k in MEM)
            if k is not None and (Q[k].k != 'dsw' or mi - g.lastdsw >= g.o.dswsep):
                gap.append(Q[k]); taken.add(k)
                if Q[k].k == 'dsw': g.lastdsw = mi
            while True:
                k = pick(lambda x: x.k in ('valu', 'trans'))
                if k is None or gapcost(gap + [Q[k]]) > lim: break
                gap.append(Q[k]); taken.add(k)
            for k in range(force):
                if k not in taken: gap.append(Q[k]); taken.add(k); late += 1
            Q = [x for k, x in enumerate(Q) if k not in taken] if taken else Q
            gaps.append(gap)
        sys.stderr.write(f"mfma {len(M)} fillers {len(F)} forced {late} leftover {len(Q)}\n")
        return pre, M, gaps, Q + tail
    def finalize(g, parts):
        pre, M, gaps, tail = parts
        segs = [list(pre)] + [list(x) for x in gaps]; segs[-1] += tail
        def linear():
            for k, sg in enumerate(segs):
                if k: yield M[k - 1]
                for i in sg: yield i
        tags = {('v', RB): ('RB', 0), ('v', RB + 1): ('RB', 0)}
        for i in linear():
            for r, t in i.need:
                assert g.o.skip or tags.get(r) == t, (i.t, r, t, tags.get(r))
            if i.tag: tags[i.tag[0]] = i.tag[1]
        vm = []; lg = []; nw = 0; floor = 0
        head = {}
        def handle(i, k, lst):
            nonlocal vm, lg, nw
            regs = set(i.rd) | set(i.wr)
            for name, q, T, Tmin, mx in (('vmcnt', vm, g.o.tvm, g.o.hvm, 63), ('lgkmcnt', lg, g.o.tlg, g.o.hlg, 15)):
                last = -1
                for n, (dst, sg) in enumerate(q):
                    if dst & regs: last = n
                if last < 0: continue
                if q[last][1] >= k or k == len(segs) - 1 or k < floor:
                    while len(q) - 1 - last > mx: last += 1
                    lst.append(I(f"s_waitcnt {name}({len(q)-1-last})", 'salu')); nw += 1
                else:
                    best = k
                    for c in range(k, max(floor - 1, k - 12, q[last][1] + Tmin - 1), -1):
                        cur = lst + rest if c == k else segs[c]
                        if c in head or gapcost([I('', 'salu')] + cur) == gapcost(cur): best = c; break
                    while last + 1 < len(q) and best - q[last + 1][1] >= T: last += 1
                    n = sum(1 for e in q[last + 1:] if e[1] < best)
                    while n > mx: last += 1; n -= 1
                    h = head.setdefault(best, {})
                    h[name] = min(n, h.get(name, 99))
                if name == 'vmcnt': vm = q[last + 1:]
                else: lg = q[last + 1:]
        for k in range(len(segs)):
            lst = []
            for n, i in enumerate(segs[k]):
                rest = segs[k][n:]
                handle(i, k, lst)
                lst.append(i)
                if i.k == 'lgkm0': lg = []; floor = k + 1
                if i.k == 'vload': vm.append((set(i.wr), k))
                if i.k == 'vstore': vm.append((set(), k))
                if i.k == 'dsr': lg.append((set(i.wr), k))
                if i.k == 'dsw': lg.append((set(), k))
            rest = []
            if k < len(M): handle(M[k], k, lst)
            segs[k] = lst
        for k, h in head.items():
            segs[k].insert(0, I("s_waitcnt " + " ".join(f"{a}({b})" for a, b in h.items()), 'salu')); nw += 1
        st = [0] * 9
        for G in range(len(GROUPS)):
            for k in range(g.idx[(G, 0)], g.idx[(G + 1, 0)]):
                if k + 1 < len(segs) - 1: st[G // 8] += gapcost(segs[k + 1])
        sys.stderr.write(f"model cycles {st} sum {sum(st)} tail {gapcost(segs[-1])}\n")
        if g.o.stall:
            for k in range(1, len(segs) - 1, g.o.stall): segs[k].append(I("s_nop 7", 'salu'))
        out = list(linear())
        res = []; nn = 0
        isv = lambda k: k in ('valu', 'trans')
        for i in out:
            req = 0; dist = 0
            for p in reversed(res[-12:]):
                w = 0
                pw, prd = set(p.wr), set(p.rd)
                if isv(p.k) and i.k == 'mfma' and pw & set(i.rd): w = 2
                if p.k == 'mfma':
                    if isv(i.k) and pw & (set(i.rd) | set(i.wr)): w = 8
                    if i.k in ('vstore', 'dsw', 'vload', 'dsr') and pw & (set(i.rd) | set(i.wr)): w = 8
                    if isv(i.k) and set(p.creads) & set(i.wr): w = max(w, 3)
                if p.k == 'trans' and i.k != 'trans' and pw & set(i.rd): w = max(w, 1)
                if p.k == 'trans' and i.k == 'trans' and pw & set(i.rd): w = max(w, 1)
                if p.k in ('vstore', 'dsw') and isv(i.k) and prd & set(i.wr): w = max(w, 2)
                req = max(req, w - dist)
                dist += (int(p.t.split()[1]) + 1) if p.t.startswith('s_nop') else 1
            if req > 0: res.append(I(f"s_nop {req-1}", 'salu')); nn += 1
            res.append(i)
        sys.stderr.write(f"waits {nw} nops {nn} total {len(res)}\n")
        return res
    def dbgstamp(g, slot, inv, back, vt=250):
        if not g.o.dbg: return ""
        t = f"s_and_b32 s96, s2, 0x38\ns_cmp_lg_u32 s96, 0\ns_cbranch_scc1 L_dbg{slot}\ns_memrealtime s[96:97]\ns_load_dwordx2 s[98:99], s[0:1], 24\ns_waitcnt lgkmcnt(0)\n"
        if not back: t += "s_add_u32 s98, s98, 512\ns_addc_u32 s99, s99, 0\n"
        if inv: t += "s_not_b32 s96, s96\n"
        t += f"v_mov_b32 v{vt}, s96\nv_mov_b32 v{vt+1}, {4*slot}\ns_mov_b64 s[94:95], exec\ns_mov_b64 exec, 1\nglobal_atomic_umax v{vt+1}, v{vt}, s[98:99]\ns_mov_b64 exec, s[94:95]\nL_dbg{slot}:"
        return t
    def spin(g, ticks, lab):
        return (f"s_load_dwordx2 s[98:99], s[0:1], 32\ns_waitcnt lgkmcnt(0)\ns_add_u32 s98, s98, {100<<20}\ns_addc_u32 s99, s99, 0\ns_load_dword s95, s[98:99], 0\ns_waitcnt lgkmcnt(0)\n"
                f"{lab}:\ns_memrealtime s[96:97]\ns_waitcnt lgkmcnt(0)\ns_sub_u32 s96, s96, s95\ns_cmp_lt_u32 s96, {ticks}\ns_cbranch_scc1 {lab}")
    def main_kernel(g):
        E = g.out.append
        E(f".globl {KN}\n.p2align 8\n.type {KN},@function\n{KN}:")
        E("s_cmp_ge_u32 s2, 256\ns_cbranch_scc1 L_end")
        E(g.dbgstamp(2, True, True)); E(g.dbgstamp(3, False, True))
        if g.o.spin0: E(g.spin(g.o.spin0, 'L_sp0'))
        if g.o.stamps: E(f"s_memtime s[{SST}:{SST+1}]\ns_memrealtime s[{SST+2}:{SST+3}]")
        E("s_load_dwordx2 s[4:5], s[0:1], 0\ns_load_dwordx2 s[6:7], s[0:1], 16\ns_load_dwordx2 s[26:27], s[0:1], 32")
        if g.o.map == 0:
            E("s_and_b32 s30, s2, 7\ns_lshr_b32 s31, s2, 3\ns_and_b32 s32, s31, 3\ns_lshr_b32 s31, s31, 2\ns_lshl_b32 s30, s30, 3\ns_add_u32 s30, s30, s31")
        elif g.o.map == 1:
            E("s_and_b32 s32, s2, 3\ns_lshr_b32 s30, s2, 2")
        else:
            E("s_and_b32 s32, s2, 1\ns_lshl_b32 s32, s32, 1\ns_bfe_u32 s31, s2, 0x10003\ns_add_u32 s32, s32, s31\ns_bfe_u32 s30, s2, 0x20001\ns_lshl_b32 s30, s30, 4\ns_lshr_b32 s31, s2, 4\ns_add_u32 s30, s30, s31")
        E("s_lshr_b32 s33, s30, 5\ns_and_b32 s34, s30, 31\ns_lshl_b32 s34, s34, 18")
        E("s_mul_i32 s33, s33, 8192000")
        E(f"v_lshlrev_b32 v{EPI}, 7, v0")
        E("v_and_b32 v20, 63, v0\nv_lshrrev_b32 v21, 6, v0")
        E("v_and_b32 v22, 15, v0")
        E("v_bfe_u32 v23, v0, 4, 1")
        E("v_lshrrev_b32 v24, 5, v0")
        E("v_mul_u32_u24 v25, 9, v24")
        E("v_lshlrev_b32 v26, 12, v25\nv_lshlrev_b32 v27, 9, v23\nv_lshlrev_b32 v28, 4, v22")
        E(f"v_add3_u32 v26, v26, v27, v28\ns_sub_u32 s35, s34, {4*4096}\nv_add_u32 v{XBASE}, s35, v26")
        E(f"v_and_b32 v26, 7, v22\nv_mul_u32_u24 v26, {S2}, v26\nv_lshrrev_b32 v27, 3, v22\nv_mul_u32_u24 v27, {S1}, v27\nv_lshlrev_b32 v28, 4, v23\nv_add3_u32 v26, v26, v27, v28")
        for i in range(9):
            E(f"v_add_u32 v27, {i}, v25\nv_and_b32 v28, 7, v27\nv_mul_u32_u24 v28, 288, v28\nv_lshrrev_b32 v27, 3, v27\nv_lshlrev_b32 v27, 5, v27\nv_add3_u32 v{WA+i}, v26, v27, v28")
        E(f"v_bfe_u32 v26, v0, 5, 1\nv_mul_u32_u24 v26, {S2}, v26\nv_mul_u32_u24 v27, {S1}, v23\nv_lshlrev_b32 v28, 4, v22\nv_add3_u32 v{RB}, v26, v27, v28\nv_add_u32 v{RB+1}, {ARR}, v{RB}")
        E(f"s_lshl_b32 s36, s32, 2\nv_add_u32 v26, s36, v21\nv_mul_u32_u24 v26, {STREAM}, v26\nv_lshlrev_b32 v27, 4, v20\nv_add_u32 v{WL}, v26, v27")
        E("v_lshrrev_b32 v26, 1, v22\nv_lshlrev_b32 v26, 15, v26\nv_and_b32 v27, 1, v22\nv_lshlrev_b32 v27, 9, v27\nv_lshlrev_b32 v28, 5, v21\nv_add3_u32 v26, v26, v27, v28")
        E(f"v_lshrrev_b32 v27, 4, v20\nv_lshlrev_b32 v27, 3, v27\ns_lshl_b32 s36, s32, 7\ns_add_u32 s36, s36, s34\nv_add3_u32 v{SB}, v26, v27, s36")
        E(f"s_mov_b32 s{SWO}, 0\ns_mov_b32 s{SC1}, {hex(fb(2*1.4426950408889634))}\ns_mov_b32 s{SC2}, {hex(fb(-1.4426950408889634))}\ns_mov_b32 s{SCL}, {hex(fb(32.0))}\ns_mov_b32 s{SMASK}, 0xffff0000")
        E("s_waitcnt lgkmcnt(0)")
        E(f"s_add_u32 s{SX}, s4, s33\ns_addc_u32 s{SX+1}, s5, 0\ns_mov_b32 s{SX+2}, 8192000\ns_mov_b32 s{SX+3}, 0x20000")
        E(f"s_mov_b32 s{SW}, s26\ns_mov_b32 s{SW+1}, s27\ns_mov_b32 s{SW+2}, {0x10000000 if g.o.stamps else 16*STREAM}\ns_mov_b32 s{SW+3}, 0x20000")
        E(f"s_add_u32 s{SO}, s6, s33\ns_addc_u32 s{SO+1}, s7, 0\ns_mov_b32 s{SO+2}, 8192000\ns_mov_b32 s{SO+3}, 0x20000")
        E(f"s_getpc_b64 s[28:29]\nL_pc:\ns_mov_b32 s30, L_end-L_pc\ns_mov_b32 s31, 0x20000\ns_mov_b32 s36, 0\ns_mov_b32 s37, 32768\ns_mov_b32 s38, 65536\ns_mov_b32 s39, 98304")
        for i in g.finalize(g.body()): E(i.t)
        if g.o.stamps:
            n = 12
            if g.o.trace < 0: E(f"s_waitcnt vmcnt(0)\ns_memtime s[{SST+44}:{SST+45}]\ns_memrealtime s[{SST+46}:{SST+47}]\ns_waitcnt lgkmcnt(0)")
            E(f"v_mbcnt_lo_u32_b32 v20, -1, 0\nv_mbcnt_hi_u32_b32 v20, -1, v20\nv_lshlrev_b32 v21, 4, v20\nv_sub_u32 v21, v{WL}, v21\ns_lshl_b32 s36, s32, 2\ns_mul_i32 s36, s36, {STREAM}\nv_subrev_u32 v21, s36, v21\nv_or_b32 v21, v21, v20")
            E("v_cmp_eq_u32 vcc, 0, v21\ns_and_saveexec_b64 s[90:91], vcc\ns_cbranch_execz L_end")
            E(f"s_mul_i32 s36, s2, {16*n}\ns_add_u32 s36, s36, {200<<20}")
            for k in range(n):
                for j in range(4): E(f"v_mov_b32 v{24+j}, s{SST+4*k+j}")
                E(f"buffer_store_dwordx4 v[24:27], v21, s[{SW}:{SW+3}], s36 offen offset:{16*k}\ns_nop 1")
        if g.o.dbg: E(g.dbgstamp(4, False, True)); E("s_waitcnt vmcnt(0)"); E(g.dbgstamp(5, False, True)); E(g.dbgstamp(6, True, True))
        if g.o.spinend: E("s_waitcnt vmcnt(0)"); E(g.spin(g.o.spinend, 'L_spe'))
        E("L_end:\ns_endpgm")
    def prep_kernel(g):
        E = g.out.append
        E(f".globl {PN}\n.p2align 8\n.type {PN},@function\n{PN}:")
        E("s_cmp_ge_u32 s2, 256\ns_cbranch_scc1 LP_end2")
        E(g.dbgstamp(0, True, False, 116))
        if g.o.spinend or g.o.spin0 or g.o.spin1:
            E(f"s_cmp_lg_u32 s2, 0\ns_cbranch_scc1 LP_ns\ns_memrealtime s[96:97]\ns_load_dwordx2 s[98:99], s[0:1], 32\ns_waitcnt lgkmcnt(0)\nv_mov_b32 v116, s96\nv_mov_b32 v117, {100<<20}\nglobal_store_dword v117, v116, s[98:99]\nLP_ns:")
        E("s_load_dwordx2 s[4:5], s[0:1], 8\ns_load_dwordx2 s[6:7], s[0:1], 32")
        E("s_and_b32 s20, s2, 1\ns_bfe_u32 s21, s2, 0x50001\ns_lshr_b32 s22, s2, 6")
        for i in range(32): E(f"v_mov_b32 v{8+i}, 0")
        E("v_lshlrev_b32 v1, 1, v0\ns_lshl_b32 s23, s20, 9\ns_lshl_b32 s24, s21, 13\ns_add_u32 s23, s23, s24\nv_add_u32 v1, s23, v1\nv_add_u32 v2, 4096, v1")
        E("s_lshl_b32 s25, s22, 20")
        E("s_waitcnt lgkmcnt(0)")
        E("s_mov_b32 s8, s4\ns_mov_b32 s9, s5\ns_mov_b32 s10, 3932160\ns_mov_b32 s11, 0x20000")
        E(f"s_mov_b32 s12, s6\ns_mov_b32 s13, s7\ns_mov_b32 s14, {16*STREAM}\ns_mov_b32 s15, 0x20000")
        def ld(r):
            for i in range(8): E(f"buffer_load_short_d16_hi v{8+8*r+i}, v{1+i//4}, s[8:11], s26 offen offset:{(i%4)*1024}")
        E("s_cmp_eq_u32 s22, 0\ns_cbranch_scc1 LP_skip0\ns_sub_u32 s26, s25, 262144")
        ld(0)
        E("LP_skip0:")
        for r in range(1, 4):
            E(f"s_add_u32 s26, s25, {(r-1)*262144}"); ld(r)
        E(f"v_lshrrev_b32 v3, 4, v0\nv_mul_u32_u24 v3, {STREAM}, v3\nv_and_b32 v4, 15, v0\nv_lshlrev_b32 v4, 4, v4\nv_add_u32 v3, v3, v4")
        E("s_lshr_b32 s27, s21, 4\ns_bfe_u32 s28, s21, 0x20001\ns_and_b32 s29, s21, 1\ns_lshl_b32 s29, s29, 1\ns_bfe_u32 s30, s21, 0x10003\ns_add_u32 s29, s29, s30\ns_lshl_b32 s29, s29, 8")
        E("v_add_u32 v3, s29, v3")
        E("s_waitcnt vmcnt(0)")
        g_ = lambda r: 8 + 8 * r
        T = {'12': 40, '32': 48, '21': 56, '23': 64, '22': 72, '11': g_(0), '13': g_(1), '31': g_(2), '33': g_(3)}
        for i in range(8):
            E(f"v_add_f32 v{40+i}, v{g_(0)+i}, v{g_(1)+i}\nv_add_f32 v{48+i}, v{g_(2)+i}, v{g_(3)+i}\nv_add_f32 v{56+i}, v{g_(0)+i}, v{g_(2)+i}\nv_add_f32 v{64+i}, v{g_(1)+i}, v{g_(3)+i}\nv_add_f32 v{72+i}, v{40+i}, v{48+i}")
        for n, pt in enumerate(['22', '23', '21', '12', '32', '13', '33', '31', '11']):
            nt = len(taps(pt)); k0 = taps(pt)[0]
            base = GOFF[(pt, 0, 0)]; dstr = GOFF[(pt, 1, 0)] - base; kstr = 2 * nt
            o = 80 + 4 * n
            if pt == '11': E("s_cmp_eq_u32 s22, 0\ns_cbranch_scc1 LP_end")
            for i in range(4): E(f"v_cvt_pk_bf16_f32 v{o+i}, v{T[pt]+2*i}, v{T[pt]+2*i+1}")
            E(f"s_mul_i32 s31, s27, {dstr}\ns_mul_i32 s32, s28, {kstr}\ns_add_u32 s31, s31, s32\ns_mul_i32 s32, s20, {nt}\ns_add_u32 s31, s31, s32\ns_add_u32 s31, s31, s22\ns_add_u32 s31, s31, {base-k0}\ns_lshl_b32 s31, s31, 10")
            E(f"buffer_store_dwordx4 v[{o}:{o+3}], v3, s[12:15], s31 offen")
        E("LP_end:")
        if g.o.dbg: E("s_waitcnt vmcnt(0)"); E(g.dbgstamp(1, False, False, 116))
        E("LP_end2:\ns_endpgm")
    def emit(g):
        E = g.out.append
        E(f"; F(4,4) nested fast-FIR (Karatsuba x2) dilated conv + gated activation; generated by gen.py")
        E(f"; @launch kernel={PN} grid=(256,1,1) block=(256,1,1) lds=0")
        E(f"; @launch kernel={KN} grid=(256,1,1) block=(256,1,1) lds={LDS_BYTES}")
        E('.amdgcn_target "amdgcn-amd-amdhsa--gfx950"\n.text')
        g.prep_kernel(); g.main_kernel()
        for n, nv, ao in ((PN, 120, 120), (KN, 512, 256)):
            E(f""".section .rodata,"a"
.p2align 6
.amdhsa_kernel {n}
  .amdhsa_next_free_vgpr {nv}
  .amdhsa_next_free_sgpr 100
  .amdhsa_accum_offset {ao}
  .amdhsa_group_segment_fixed_size 0
  .amdhsa_kernarg_size 40
  .amdhsa_user_sgpr_count 2
  .amdhsa_user_sgpr_kernarg_segment_ptr 1
  .amdhsa_system_sgpr_workgroup_id_x 1
  .amdhsa_float_denorm_mode_32 3
.end_amdhsa_kernel""")
        return "\n".join(x for x in g.out if x) + "\n"

if __name__ == '__main__':
    ap = argparse.ArgumentParser()
    ap.add_argument('-o', default='standalone__autoregressive_conv_wavernn__speech.s')
    ap.add_argument('--stamps', action='store_true'); ap.add_argument('--cap', type=int, default=2); ap.add_argument('--backlog', type=int, default=6)
    ap.add_argument('--tvm', type=int, default=64); ap.add_argument('--tlg', type=int, default=10)
    ap.add_argument('--wflags', default=''); ap.add_argument('--sflags', default='nt')
    ap.add_argument('--skip', default=''); ap.add_argument('--pf', type=int, default=1); ap.add_argument('--map', type=int, default=0); ap.add_argument('--look', type=int, default=10); ap.add_argument('--dswsep', type=int, default=6)
    ap.add_argument('--dbg', action='store_true'); ap.add_argument('--spinend', type=int, default=0); ap.add_argument('--spin0', type=int, default=0); ap.add_argument('--spin1', type=int, default=0); ap.add_argument('--stall', type=int, default=0); ap.add_argument('--hvm', type=int, default=48); ap.add_argument('--hlg', type=int, default=8); ap.add_argument('--trace', type=int, default=-1); ap.add_argument('--tstep', type=int, default=8)
    o = ap.parse_args()
    o.skip = [x for x in o.skip.split(',') if x]
    if o.wflags: o.wflags = ' ' + o.wflags
    if o.sflags: o.sflags = ' ' + o.sflags
    open(o.o, 'w').write(Gen(o).emit())
```

```python
import sys, struct, argparse
KN = "standalone__autoregressive_conv_wavernn__speech_kernel"
PN = "wprep_kernel"
fb = lambda f: struct.unpack('<I', struct.pack('<f', f))[0]

S1, S2, ARR, BUF = 2304, 4624, 36992, 73984
LDS_BYTES = 2 * BUF
STREAM = 560 * 1024

STAGES = [(('22', 0), ('22', 1)),
          (('23', 0), ('21', 0)), (('23', 1), ('21', 1)),
          (('12', 0), ('32', 0)), (('12', 1), ('32', 1)),
          (('13', 0), ('33', 0)), (('13', 1), ('33', 1)),
          (('11', 0), ('31', 0)), (('11', 1), ('31', 1))]
SET = {'22': 0, '23': 1, '21': 0, '12': 2, '32': 3, '13': 0, '33': 1, '11': 2, '31': 3}
FORK = {'22': None, '23': 0}
QOF = {0: 1, 1: 3, 2: 0, 3: 2}
PTYPE = ['A', 'B', 'B', 'C', 'C', 'D', 'D', 'E', 'E']
def taps(pt): return [1, 2, 3] if pt == '11' else [0, 1, 2, 3]

GROUPS = []
_off = 0
for s, st in enumerate(STAGES):
    for a, (pt, dh) in enumerate(st):
        for kp in range(4):
            GROUPS.append((s, a, pt, dh, kp, _off)); _off += 2 * len(taps(pt))
assert _off == 560
GOFF = {(pt, dh, kp): off for (s, a, pt, dh, kp, off) in GROUPS}

def V(n, c=1): return [('v', n + i) for i in range(c)]
def A(n, c=1): return [('a', n + i) for i in range(c)]
def vr(n, c): return f"v[{n}:{n+c-1}]"
def ar(n, c): return f"a[{n}:{n+c-1}]"
class I:
    __slots__ = ('t', 'k', 'rd', 'wr', 'c', 'need', 'tag', 'pos', 'dl', 'seq', 'creads', 'sym')
    def __init__(s, t, k, rd=(), wr=(), need=None, tag=None, creads=(), sym=None):
        s.sym = sym
        s.t = t; s.k = k; s.rd = list(rd); s.wr = list(wr); s.need = need or []; s.tag = tag
        s.c = {'trans': 2, 'dsw': 2, 'dsw32': 2, 'salu': 0, 'vstore': 2}.get(k, 1); s.pos = None; s.dl = None; s.creads = list(creads)

WA = 1; RB = 10; WL = 12; XA = 13; XBASE = 15; SB = 0
RAW = 144; NRAW = 12; PERS = 192; TMP = 200; OUT = 208; EPI = 224; ACT = 240; STG = 16; PFA = 224; PFD = 225
def R(f, n, c=1): return [(f, n + i) for i in range(c)]
def rr_(f, n, c): return f"{f}[{n}:{n+c-1}]"
def accreg(st, t): return [('v', 16), ('v', 80), ('a', 0), ('a', 64)][st][0], [16, 80, 0, 64][st] + t * 4
def wreg(slot): return 'a', 128 + slot * 4
def xreg(c): return ('a', 224 + 4 * c) if c < 8 else ('v', 244 + 4 * (c - 8))
SX, SW, SO = 8, 12, 16
SWO = 20; SC1, SC2, SCL, SMASK = 25, 22, 23, 24
SST = 40

def gapcost(gap):
    t = 4; sawv = False; pg = False
    for i in gap:
        if i.k in ('valu', 'trans'): t = max(t, 8) + (8 if i.k == 'trans' else 4) + (4 if pg and t == 12 else 0); sawv = True
        pg = i.k == 'vstore' or 's36 offen' in i.t
        if i.k in ('valu', 'trans'): pass
        elif i.k == 'dsw': t += 24 + (8 if sawv else 0)
        elif i.k == 'dsw32': t += 12 + (8 if sawv else 0)
        elif i.k in ('vload', 'dsr', 'vstore'): t += 8 + (8 if sawv else 0)
        else: t += 4
    return max(t, 16)

class Gen:
    def __init__(g, opt):
        g.o = opt; g.out = []; g.tr = {}; g.lastdsw = -99; g.lastv = -99
    def mfmas(g):
        M = []; g.idx = {}
        for G, (s, a, pt, dh, kp, off) in enumerate(GROUPS):
            tp = taps(pt); st = SET[pt]
            first = (kp == 0 and dh == 0 and pt in FORK)
            for j in range(8):
                g.idx[(G, j)] = len(M)
                for hi, h in enumerate((0, 1) if j % 2 == 0 or not g.o.snake else (1, 0)):
                    order = list(enumerate(tp))
                    if hi == 1 and g.o.snake: order.reverse()
                    for n, (ki, k) in enumerate(order):
                        af, acc = accreg(st, j * 2 + h)
                        wf, w = wreg((G % 3) * 8 + h * len(tp) + ki)
                        xf, x = xreg(j + k)
                        if first and n == 0:
                            if FORK[pt] is None: cs, cr = '0', []
                            else:
                                cf, c = accreg(FORK[pt], j * 2 + h); cs, cr = rr_(cf, c, 4), R(cf, c, 4)
                        else: cs, cr = rr_(af, acc, 4), R(af, acc, 4)
                        M.append(I(f"v_mfma_f32_16x16x32_bf16 {rr_(af,acc,4)}, {rr_(wf,w,4)}, {rr_(xf,x,4)}, {cs}", 'mfma',
                                   rd=R(wf, w, 4) + R(xf, x, 4) + cr, wr=R(af, acc, 4), creads=cr, sym=('mfma', (pt, dh, kp, k, j, h)),
                                   need=[((wf, w), ('W', G, h, k)), ((xf, x), ('X', G, j + k))]))
        g.idx[(len(GROUPS), 0)] = len(M)
        for s in range(18): M[g.idx[(4 * s, 0)]].t = f"L_h{s}:\n" + M[g.idx[(4 * s, 0)]].t
        return M
    def P(g, s, gr, j=0): return g.idx[(s * 8 + gr, j)]
    def wloads(g, G):
        s, a, pt, dh, kp, off = GROUPS[G]; tp = taps(pt); L = []
        for h in range(2):
            for ki, k in enumerate(tp):
                f = off + h * len(tp) + ki
                if f % 8 == 0 and f:
                    L.append(I(f"s_add_u32 s{SWO}, s{SWO}, 8192", 'salu', rd=[('s', SWO)], wr=[('s', SWO), ('s', 'scc')]))
                    L.append(I(f"s_addc_u32 s{SWO+1}, s{SWO+1}, 0", 'salu', rd=[('s', SWO), ('s', 'scc')], wr=[('s', SWO), ('s', 'scc')]))
                wf, w = wreg((G % 3) * 8 + h * len(tp) + ki)
                L.append(I(f"global_load_dwordx4 {rr_(wf,w,4)}, v{WL}, s[{SWO}:{SWO+1}] offset:{(f%8)*1024-4096}{g.o.wflags}", 'vload',
                           rd=V(WL) + [('s', SWO)], wr=R(wf, w, 4), tag=((wf, w), ('W', G, h, k))))
        return L
    def xread(g, G, c):
        s, a, pt, dh, kp, off = GROUPS[G]
        xf, x = xreg(c); imm = 2 * kp * S2 + (c % 8) * 288 + (c // 8) * 32
        return I(f"ds_read_b128 {rr_(xf,x,4)}, v{RB+a} offset:{imm}", 'dsr', rd=V(RB + a), wr=R(xf, x, 4), tag=((xf, x), ('X', G, c)),
                 need=[(('v', RB + a), ('RB', s))])
    def spread(g, L, p0, p1, dl=None):
        tot = sum(i.c for i in L); acc = 0
        for i in L:
            i.pos = p0 + (p1 - p0) * acc / max(tot, 1); acc += i.c
            i.dl = dl
        return L
    def account(g, L):
        for i in L:
            p = int(i.pos)
            for q in range(-3, 4):
                if 0 <= p + q < len(g.load): g.load[p + q] += i.c / 7.0
    def fill(g, L, p0, p1, dl=None):
        p0 = int(p0 + 0.999); p1 = int(p1)
        tot = sum(i.c for i in L); lo, hi = 0.0, 20.0
        for _ in range(50):
            lam = (lo + hi) / 2
            if sum(max(0.02, lam - g.load[m]) for m in range(p0, p1)) > tot: hi = lam
            else: lo = lam
        room = [max(0.02, hi - g.load[m]) for m in range(p0, p1)]
        m = 0; acc = 0; base = 0.0
        for i in L:
            while m < len(room) - 1 and base + room[m] <= acc: base += room[m]; m += 1
            i.pos = p0 + m + min(0.99, (acc - base) / room[m]); i.dl = dl; acc += i.c
        for k, r in enumerate(room): g.load[p0 + k] += r
        g.levels.append((p0, p1, round(hi, 2)))
        return L
    def production(g):
        rows = []
        progs = []
        def newrow(s, ai, imm):
            rows.append((s, ai, imm + STAGES[s][0][1] * 256)); return len(rows) - 1
        rr = lambda n: RAW + (n % NRAW) * 4
        tctr = [0]
        def tmp():
            t = TMP + tctr[0] % 8; tctr[0] += 1; return t
        octr = [0]
        def lo(dst, n, i): return I(f"v_lshlrev_b32 v{dst}, 16, v{rr(n)+i}", 'valu', rd=V(rr(n)+i), wr=V(dst), need=[(('v', rr(n)), ('R', n))], tag=('use', n))
        def hi(dst, n, i): return I(f"v_and_b32 v{dst}, s{SMASK}, v{rr(n)+i}", 'valu', rd=V(rr(n)+i), wr=V(dst), need=[(('v', rr(n)), ('R', n))], tag=('use', n))
        def sub(d, a, b): return I(f"v_sub_f32 v{d}, v{a}, v{b}", 'valu', rd=V(a) + V(b), wr=V(d))
        def cvt(d, a, b): return I(f"v_cvt_pk_bf16_f32 v{d}, v{a}, v{b}", 'valu', rd=V(a) + V(b), wr=V(d))
        def wr(s, i, arr, src): return I(f"ds_write_b128 v{WA+i}, {vr(src,4)} offset:{arr*ARR}", 'dsw', rd=V(WA + i) + V(src, 4), need=[(('v', WA + i), ('WA', s))])
        for s in range(1, 9):
            ty = PTYPE[s]; L = []
            for i in range(9):
                op = 'v_add_u32' if s % 2 else 'v_subrev_u32'
                L.append(I(f"{op} v{WA+i}, {BUF}, v{WA+i}", 'valu', rd=V(WA + i), wr=V(WA + i), tag=(('v', WA + i), ('WA', s))))
            if ty == 'C':
                n1 = newrow(s, 0, 2048)
                for d in range(4): L += [lo(PERS + 2*d, n1, d), hi(PERS + 2*d + 1, n1, d)]
            elif ty in 'DE':
                if ty == 'D': nb, na = newrow(s, 0, 2048), newrow(s, 0, 3072)
                else: na, nb = newrow(s, 0, 1024), newrow(s, 0, 2048)
                for d in range(4):
                    t0, t1 = tmp(), tmp()
                    L += [lo(PERS + 2*d, na, d), hi(PERS + 2*d + 1, na, d), lo(t0, nb, d), hi(t1, nb, d),
                          sub(PERS + 2*d, PERS + 2*d, t0), sub(PERS + 2*d + 1, PERS + 2*d + 1, t1)]
            pend = None
            for i in range(9):
                stepstart = len(L)
                o0 = OUT + (octr[0] % 2) * 8; o1 = o0 + 4; octr[0] += 1
                if ty == 'B':
                    n2, n3, n4 = newrow(s, i, 3072), newrow(s, i + 1, 0), newrow(s, i + 1, 1024)
                    for d in range(4):
                        a, b, c, e, f, h = [tmp() for _ in range(6)]
                        L += [lo(a, n3, d), hi(b, n3, d), lo(c, n4, d), hi(e, n4, d), lo(f, n2, d), hi(h, n2, d),
                              sub(c, c, a), sub(e, e, b), sub(f, f, a), sub(h, h, b), cvt(o0 + d, c, e), cvt(o1 + d, f, h)]
                elif ty == 'C':
                    n3, n5 = newrow(s, i + 1, 0), newrow(s, i + 1, 2048)
                    for d in range(4):
                        a, b, c, e = [tmp() for _ in range(4)]
                        p0, p1 = PERS + 2*d, PERS + 2*d + 1
                        L += [lo(a, n3, d), hi(b, n3, d), sub(c, p0, a), sub(e, p1, b), lo(p0, n5, d), hi(p1, n5, d), cvt(o0 + d, c, e),
                              sub(a, p0, a), sub(b, p1, b), cvt(o1 + d, a, b)]
                else:
                    if ty == 'D':
                        n3, n4, n5, n6 = [newrow(s, i + 1, 1024 * q) for q in range(4)]
                        mp, mm, np_, nm = n4, n3, n6, n5
                    else:
                        n2 = newrow(s, i, 3072); n3, n4, n5 = [newrow(s, i + 1, 1024 * q) for q in range(3)]
                        mp, mm, np_, nm = n2, n3, n4, n5
                    for d in range(4):
                        a, b, c, e = [tmp() for _ in range(4)]
                        p0, p1 = PERS + 2*d, PERS + 2*d + 1
                        L += [lo(a, mp, d), hi(b, mp, d), lo(c, mm, d), hi(e, mm, d), sub(a, a, c), sub(b, b, e),
                              sub(c, p0, a), sub(e, p1, b), lo(p0, np_, d), hi(p1, np_, d), cvt(o0 + d, c, e),
                              lo(c, nm, d), hi(e, nm, d), sub(p0, p0, c), sub(p1, p1, e), sub(a, p0, a), sub(b, p1, b), cvt(o1 + d, a, b)]
                if s <= g.o.b32:
                    body = L[stepstart:]; del L[stepstart:]
                    for op in body:
                        L.append(op)
                        if op.t.startswith('v_cvt'):
                            r = op.wr[0][1]; arr = 0 if r < o1 else 1; d = (r - o0) % 4
                            L.append(I(f"ds_write_b32 v{WA+i}, v{r} offset:{arr*ARR+4*d}", 'dsw32', rd=V(WA + i) + V(r), need=[(('v', WA + i), ('WA', s))]))
                    continue
                w0, w1 = wr(s, i, 0, o0), wr(s, i, 1, o1)
                if pend is not None:
                    L.insert(stepstart + (len(L) - stepstart) // 2, pend)
                L.append(w0); pend = w1
                if i == 8:
                    pad = I("", 'pad'); pad.c = 10
                    L += [pad, w1]
            progs.append(L)
        last = {}
        for ps, L in enumerate(progs):
            for k, op in enumerate(L):
                if op.tag and op.tag[0] == 'use': last[op.tag[1]] = (ps, k); op.tag = None
        cur = {}
        def load(n):
            s, ai, imm = rows[n]; r = XA + ai % 2; L = []
            if cur.get(r) != (s, ai):
                L.append(I(f"v_add_u32 v{r}, {4096*ai}, v{XBASE}", 'valu', rd=V(XBASE), wr=V(r))); cur[r] = (s, ai)
            L.append(I(f"buffer_load_dwordx4 {vr(rr(n),4)}, v{r}, s[{SX}:{SX+3}], 0 offen offset:{imm}", 'vload', rd=V(r), wr=V(rr(n), 4), tag=(('v', rr(n)), ('R', n))))
            return L
        head = []
        for n in range(NRAW): head += load(n)
        ins = {}
        prev = (0, -1)
        for n in range(NRAW, len(rows)):
            at = max(last[n - NRAW], prev); prev = at
            ins.setdefault(at, []).extend(load(n))
        res = []
        for ps, L in enumerate(progs):
            R = []
            for k, op in enumerate(L):
                R.append(op); R += ins.get((ps, k), [])
            res.append(R)
        return head, res
    def acc_copy(g, dst, src, tiles):
        L = []
        for t in tiles:
            for r in range(4):
                d = accreg(dst, t)[1] + r; s_ = accreg(src, t)[1] + r
                L.append(I(f"v_accvgpr_write_b32 a{d}, v{s_}", 'valu', rd=V(s_), wr=A(d), sym=('lin', ('a', d), [(('v', s_), 1)])))
        return L
    def acc_sub(g, dst, src, tiles):
        L = []
        for t in tiles:
            for r in range(4):
                d = accreg(dst, t)[1] + r; s_ = accreg(src, t)[1] + r
                L.append(I(f"v_sub_f32 v{d}, v{d}, v{s_}", 'valu', rd=V(d) + V(s_), wr=V(d), sym=('lin', ('v', d), [(('v', d), 1), (('v', s_), -1)])))
        return L
    def acc_addA(g, dst, vsrc, asrc, tiles):
        L = []
        for t in tiles:
            for r in range(4):
                s_ = accreg(asrc, t)[1] + r
                L.append(I(f"v_accvgpr_read_b32 v{ACT+r}, a{s_}", 'valu', rd=A(s_), wr=V(ACT + r), sym=('lin', ('v', ACT + r), [(('a', s_), 1)])))
            for r in range(4):
                d = accreg(dst, t)[1] + r; v_ = accreg(vsrc, t)[1] + r
                L.append(I(f"v_add_f32 v{d}, v{v_}, v{ACT+r}", 'valu', rd=V(v_) + V(ACT + r), wr=V(d), sym=('lin', ('v', d), [(('v', v_), 1), (('v', ACT + r), 1)])))
        return L
    def epi(g, st, j, F):
        L = []; q = QOF[st]; Gq = F + 4
        af, f = accreg(st, 2 * j); gg = f + 4
        R4 = range(4)
        if af == 'a':
            L += [I(f"v_accvgpr_read_b32 v{F+r}, a{f+r}", 'valu', rd=A(f+r), wr=V(F+r), sym=('use', ('a', f + r), (q, j, 0))) for r in R4]
            L += [I(f"v_accvgpr_read_b32 v{Gq+r}, a{gg+r}", 'valu', rd=A(gg+r), wr=V(Gq+r), sym=('use', ('a', gg + r), (q, j, 1))) for r in R4]
            L += [I(f"v_mul_f32 v{F+r}, s{SC1}, v{F+r}", 'valu', rd=V(F+r), wr=V(F+r)) for r in R4]
            L += [I(f"v_mul_f32 v{Gq+r}, s{SC2}, v{Gq+r}", 'valu', rd=V(Gq+r), wr=V(Gq+r)) for r in R4]
        else:
            L += [I(f"v_mul_f32 v{F+r}, s{SC1}, v{f+r}", 'valu', rd=V(f+r), wr=V(F+r), sym=('use', ('v', f + r), (q, j, 0))) for r in R4]
            L += [I(f"v_mul_f32 v{Gq+r}, s{SC2}, v{gg+r}", 'valu', rd=V(gg+r), wr=V(Gq+r), sym=('use', ('v', gg + r), (q, j, 1))) for r in R4]
        L += [I(f"v_med3_f32 v{F+r}, v{F+r}, -s{SCL}, s{SCL}", 'valu', rd=V(F+r), wr=V(F+r)) for r in R4]
        L += [I(f"v_exp_f32 v{Gq+r}, v{Gq+r}", 'trans', rd=V(Gq+r), wr=V(Gq+r)) for r in R4]
        L += [I(f"v_exp_f32 v{F+r}, v{F+r}", 'trans', rd=V(F+r), wr=V(F+r)) for r in R4]
        L += [I(f"v_add_f32 v{Gq+r}, 1.0, v{Gq+r}", 'valu', rd=V(Gq+r), wr=V(Gq+r)) for r in R4]
        L += [I(f"v_fmac_f32 v{Gq+r}, v{F+r}, v{Gq+r}", 'valu', rd=V(Gq+r) + V(F+r), wr=V(Gq+r)) for r in R4]
        L += [I(f"v_rcp_f32 v{Gq+r}, v{Gq+r}", 'trans', rd=V(Gq+r), wr=V(Gq+r)) for r in R4]
        L += [I(f"v_fma_f32 v{F+r}, v{F+r}, v{Gq+r}, -v{Gq+r}", 'valu', rd=V(Gq+r) + V(F+r), wr=V(F+r)) for r in R4]
        L += [I(f"v_add_u32 v{Gq}, {4096*j}, v{SB}", 'valu', rd=V(SB), wr=V(Gq)),
              I(f"v_cvt_pk_bf16_f32 v{F}, v{F}, v{F+1}", 'valu', rd=V(F, 2), wr=V(F)),
              I(f"v_cvt_pk_bf16_f32 v{F+1}, v{F+2}, v{F+3}", 'valu', rd=V(F+2, 2), wr=V(F+1)),
              I(f"buffer_store_dwordx2 {vr(F,2)}, v{Gq}, s[{SO}:{SO+3}], 0 offen offset:{q*1024}{g.o.sflags}", 'vstore', rd=V(F, 2) + V(Gq))]
        return L
    def stamp(g, n):
        if not g.o.stamps or g.o.trace >= 0: return []
        return [I(f"s_memtime s[{SST+4*n}:{SST+4*n+1}]", 'salu'), I(f"s_memrealtime s[{SST+4*n+2}:{SST+4*n+3}]", 'salu')]
    def barrier(g, n):
        return g.stamp(n) + [I("s_waitcnt lgkmcnt(0)", 'lgkm0'), I("s_barrier", 'salu')]
    def body(g):
        M = g.mfmas(); NG = len(GROUPS); F = []
        head, prods = g.production()
        pre = []
        def stg(i, dh): return (16 if dh == 0 else 80) + 4 * i
        def xl(dh):
            L = []
            for i in range(9):
                r = XA + i % 2
                L.append(I(f"v_add_u32 v{r}, {4096*(i+1)}, v{XBASE}", 'valu', rd=V(XBASE), wr=V(r)))
                L.append(I(f"buffer_load_dwordx4 {vr(stg(i,dh),4)}, v{r}, s[{SX}:{SX+3}], 0 offen offset:{dh*256}", 'vload', rd=V(r), wr=V(stg(i, dh), 4)))
            return L
        def xw(dh): return [I(f"ds_write_b128 v{WA+i}, {vr(stg(i,dh),4)} offset:{dh*ARR}", 'dsw', rd=V(WA + i) + V(stg(i, dh), 4), need=[(('v', WA + i), ('WA', 0))]) for i in range(9)]
        pre += xl(0) + g.wloads(0)
        if g.o.pf: pre.append(I(f"buffer_load_dword v{PFD}, v{PFA}, s[28:31], 0 offen", 'vload', rd=V(PFA), wr=V(PFD)))
        pre += xl(1) + g.wloads(1)
        pre.append(I(g.late_setup, 'valu'))
        pre += xw(0)
        pre += g.barrier(1)
        if g.o.spin1: pre.append(I(g.spin(g.o.spin1, 'L_sp1'), 'lgkm0'))
        pre += [g.xread(0, c) for c in range(7)]
        F += g.spread(head, 4, 90)
        F += g.spread(xw(1), 56, 130, dl=g.P(0, 2, 3))
        B = [I("s_waitcnt lgkmcnt(0)", 'lgkm0'), I("s_barrier", 'salu')]
        for i in B: i.pos = g.P(0, 2, 6) + 0.2; i.c = 0; i.dl = g.P(0, 2, 6) + 1
        F += B
        for G in range(2, NG):
            F += g.spread(g.wloads(G), g.idx[(G - 2, 0)] + 1, g.idx[(G - 2, g.o.wwin)] - 2, dl=g.idx[(G - 1, 0)])
        for G in range(NG):
            s = GROUPS[G][0]; used = sorted({j + k for j in range(8) for k in taps(GROUPS[G][2])})
            lastg = (G % 8 == 7)
            for c in used:
                if c >= 7:
                    op = g.xread(G, c)
                    op.pos = g.idx[(G, 0)] + 2 * (c - 7) + 0.5 if lastg else g.idx[(G, c - 7)] + 2.5
                    op.dl = g.idx[(G, c - 3)] - 10 if not lastg else g.idx[(G, 1)] + 2; F.append(op)
                elif G > 0:
                    op = g.xread(G, c)
                    p = g.idx[(G - 1, c + 1)] + 4.5
                    if G % 8 == 0: p = max(p, g.idx[(G - 1, 2)] + 1.5 + 2 * c)
                    op.pos = p; op.dl = max(p + 1, g.idx[(G, max(0, c - 3))] - 10); F.append(op)
            if lastg and s < 8:
                L = []
                for a in range(2):
                    op = 'v_add_u32' if (s + 1) % 2 else 'v_subrev_u32'
                    L.append(I(f"{op} v{RB+a}, {BUF}, v{RB+a}", 'valu', rd=V(RB + a), wr=V(RB + a), tag=(('v', RB + a), ('RB', s + 1))))
                L[0].pos = g.idx[(G, 1)] + 4.1; L[1].pos = g.idx[(G, 1)] + 5.1
                B = g.barrier(s + 2)
                for i in B: i.pos = g.idx[(G, 2)] + 0.2; i.c = 0
                for i in L + B: i.dl = g.idx[(G, 2)] + 1
                F += L + B
        if g.o.pf:
            D = g.o.pfd
            for n in range(1, 18 - D):
                a = I(f"s_mov_b32 s36, L_h{n+D}-L_pc", 'salu', wr=[('s', 36)])
                a2 = I(f"s_mov_b32 s30, {'L_h%d+128' % (n+D+1) if n + D + 1 < 18 else 'L_end'}-L_pc", 'salu', wr=[('s', 30)])
                b = I(f"buffer_load_dword v{PFD}, v{PFA}, s[28:31], s36 offen", 'vload', rd=V(PFA) + [('s', 36), ('s', 30)], wr=V(PFD))
                a.pos = g.idx[(4 * n, 6)] + 2; a2.pos = a.pos + 1; b.pos = a.pos + 2; F += [a, a2, b]
        if g.o.extra:
            kind, n = g.o.extra[0], int(g.o.extra[1:])
            for s in (1, 2):
                L = []
                for q in range(n):
                    src = 244 + (q * 5) % 12; d = EPI + 4 + q % 8
                    if kind == 'v': L.append(I([f"v_lshlrev_b32 v{d}, 16, v{src}", f"v_and_b32 v{d}, s{SMASK}, v{src}", f"v_sub_f32 v{d}, v{EPI+4+(q+6)%8}, v{EPI+4+(q+7)%8}"][q % 3], 'valu'))
                    if kind == 'a': L.append(I(f"v_accvgpr_read_b32 v{d}, a{(q*7)%128}", 'valu'))
                    if kind == 'd': L.append(I(f"ds_read_b128 v[{EPI+4+4*(q%2)}:{EPI+7+4*(q%2)}], v{RB} offset:{(q*288)%30000}", 'dsr', rd=V(RB)))
                    if kind == 'g': L.append(I(f"buffer_load_dwordx4 v[{EPI+4+4*(q%2)}:{EPI+7+4*(q%2)}], v{WL}, s[{SW}:{SW+3}], s37 offen offset:{(q%4)*1024}{g.o.xflags}\ns_add_u32 s37, s37, {g.o.xstep}", 'vload'))
                F += g.spread(L, g.P(s, 0) - 40, g.P(s, 7))
        g.load = [0.0] * (len(M) + 8); g.levels = []
        g.account(F)
        def SP(*a, **k):
            L = g.spread(*a, **k); g.account(L); return L
        PP = lambda s, gr, j: g.P(s, gr, j) if j < 8 else g.P(s + (gr + 1) // 8, (gr + 1) % 8, j - 8)
        for j in range(8):
            F += SP(g.acc_copy(2, 0, [2 * j, 2 * j + 1]), PP(2, 7, j + 1) + 6, PP(2, 7, j + 2) + 6, dl=g.P(3, 0, j) - 3)
        F += SP(g.acc_copy(3, 0, range(16)), g.P(3, 0, 2), g.P(3, 3), dl=g.P(3, 4) - 4)
        F += SP(g.acc_sub(1, 0, range(16)), g.P(3, 3), g.P(3, 7), dl=g.P(4, 0))
        a0, a1 = g.P(4, 3, 2), g.P(5, 0, 5)
        for j in range(8):
            F += SP(g.acc_addA(0, 1, 2, [2 * j, 2 * j + 1]), a0 + (a1 - a0) * j / 8, a0 + (a1 - a0) * (j + 1) / 8, dl=g.P(5, 0, j) - 4)
        F += SP(g.acc_addA(1, 1, 3, range(0, g.o.a1split)), g.P(5, 0, 6), g.P(5, 4) - 10, dl=g.P(5, 4) - 4)
        F += SP(g.acc_addA(1, 1, 3, range(g.o.a1split, 16)), g.P(6, 0) + 8, g.P(6, 4) - 10, dl=g.P(6, 4) - 4)
        nE = g.o.nearly
        tl = [(0, j) for j in range(8)] + [(1, j) for j in range(8)]
        def inplace(st, j): return accreg(st, 2 * j)[1]
        F += SP(sum((g.epi(st, j, inplace(st, j)) for st, j in tl[:nE]), []), g.P(6, 3, 2), g.P(7, 7, 2), dl=g.P(8, 0))
        for s in range(8):
            p0 = g.P(s, 0) + 134 if s == 0 else g.P(s - 1, 7, 2) + 1; p1 = g.P(s, 7, 1)
            F += g.fill(prods[s], p0, p1, dl=g.P(s, 7, 2))
        F += g.fill(sum((g.epi(st, j, inplace(st, j)) for st, j in tl[nE:]), []), g.P(7, 7, 2), g.P(8, 3, 2), dl=g.P(8, 4))
        F += g.fill(sum((g.epi(2, j, inplace(0, j)) for j in range(8)), []), g.P(8, 3, 2), g.P(8, 7, g.o.y0end), dl=len(M))
        tail = g.stamp(10)
        for j in range(8):
            L = g.epi(3, j, inplace(1, j))
            if j < g.o.y2in: F += g.spread(L, g.P(8, 7, g.o.y0end) + (len(M) - g.P(8, 7, g.o.y0end)) * j / g.o.y2in, g.P(8, 7, g.o.y0end) + (len(M) - g.P(8, 7, g.o.y0end)) * (j + 1) / g.o.y2in)
            else: tail += L
        sys.stderr.write(f"levels {g.levels}\n")
        F = [i for i in F if i.k != 'pad']
        if g.o.trace >= 0:
            for n in range(49):
                g.tr[g.o.trace + n * g.o.tstep] = n
        sk = g.o.skip
        if 'valu' in sk: F = [i for i in F if i.k not in ('valu', 'trans') or i.t.startswith('v_add_u32') or i.t.startswith('v_subrev_u32')]
        if 'wld' in sk: F = [i for i in F if not (i.k == 'vload' and 'global_load' in i.t)]
        if 'xld' in sk: F = [i for i in F if not (i.k == 'vload' and f's[{SX}:' in i.t)]
        if 'dsr' in sk: F = [i for i in F if i.k != 'dsr']
        if 'dsw' in sk: F = [i for i in F if i.k != 'dsw']
        if 'st' in sk: F = [i for i in F if i.k != 'vstore']
        if 'bar' in sk: F = [i for i in F if i.t != 's_barrier']
        for n, i in enumerate(F): i.seq = n
        F.sort(key=lambda i: (i.pos, i.seq))
        MEM = ('vload', 'dsr', 'dsw', 'dsw32', 'vstore')
        def indep(x, skipped):
            xr, xw = set(x.rd), set(x.wr)
            for y in skipped:
                if y.k == 'lgkm0' or y.t == 's_barrier' or x.k == 'lgkm0' or x.t == 's_barrier': return False
                if xr & set(y.wr) or xw & set(y.rd) or xw & set(y.wr): return False
            return True
        gaps = []; Q = list(F); late = 0
        for mi, m in enumerate(M):
            gap = []
            if mi in g.tr and g.tr[mi] < 48: gap.append(I(f"s_memtime s[{92+2*(g.tr[mi]%2)}:{93+2*(g.tr[mi]%2)}]", 'salu'))
            if mi - 1 in g.tr and g.tr[mi - 1] > 0: gap.append(I(f"s_mov_b32 s{SST+g.tr[mi-1]-1}, s{92+2*((g.tr[mi-1]-1)%2)}", 'salu'))
            nready = 0; backlog = 0; force = 0
            while nready < len(Q) and Q[nready].pos < mi + 1:
                backlog += Q[nready].c
                if Q[nready].dl is not None and Q[nready].dl <= mi + 1: force = nready + 1
                nready += 1
            lim = 16 + (4 if backlog > g.o.backlog else 0) + (4 if backlog > 3 * g.o.backlog else 0)
            W = min(nready, g.o.look)
            taken = set()
            def pick(pred):
                sk = []
                for k in range(W):
                    if k in taken: continue
                    if pred(Q[k]) and indep(Q[k], sk): return k
                    sk.append(Q[k])
                return None
            while True:
                k = pick(lambda x: x.k in ('salu', 'lgkm0'))
                if k is None or (gap and Q[k].k == 'salu' and Q[k].t != 's_barrier' and not Q[k].t.startswith('s_mem')): break
                gap.append(Q[k]); taken.add(k)
            vok = mi - g.lastv >= g.o.gsep
            k = pick(lambda x: x.k in MEM and (vok or x.k not in ('vload', 'vstore')) and (x.k != 'dsw' or mi - g.lastdsw >= g.o.dswsep))
            if gap and (backlog >= 4 or (k is not None and Q[k].k == 'dsw32')): k = None
            if k is not None and (Q[k].k != 'dsw' or mi - g.lastdsw >= g.o.dswsep):
                gap.append(Q[k]); taken.add(k)
                if Q[k].k == 'dsw': g.lastdsw = mi
                if Q[k].k in ('vload', 'vstore'): g.lastv = mi + (g.o.xsep if Q[k].k == 'vstore' else 0)
            while True:
                k = pick(lambda x: x.k in ('valu', 'trans'))
                if k is None or gapcost(gap + [Q[k]]) > lim: break
                gap.append(Q[k]); taken.add(k)
            for k in range(force):
                if k not in taken: gap.append(Q[k]); taken.add(k); late += 1
            Q = [x for k, x in enumerate(Q) if k not in taken] if taken else Q
            gaps.append(gap)
        sys.stderr.write(f"mfma {len(M)} fillers {len(F)} forced {late} leftover {len(Q)}\n")
        return pre, M, gaps, Q + tail
    def finalize(g, parts):
        pre, M, gaps, tail = parts
        segs = [list(pre)] + [list(x) for x in gaps]; segs[-1] += tail
        def linear():
            for k, sg in enumerate(segs):
                if k: yield M[k - 1]
                for i in sg: yield i
        tags = {('v', RB): ('RB', 0), ('v', RB + 1): ('RB', 0)}
        for i in range(9): tags[('v', WA + i)] = ('WA', 0)
        for i in linear():
            for r, t in i.need:
                assert g.o.skip or tags.get(r) == t, (i.t, r, t, tags.get(r))
            if i.tag: tags[i.tag[0]] = i.tag[1]
        if not g.o.skip:
            from collections import Counter
            val = {}; used = 0
            PTS = {0: ['11', '12', '21', '22'], 1: ['12', '13', '22', '23'], 2: ['21', '22', '31', '32'], 3: ['22', '23', '32', '33']}
            for i in linear():
                if not i.sym:
                    for r in i.wr: val.pop(r, None)
                    continue
                if i.sym[0] == 'mfma':
                    for n, r in enumerate(i.wr):
                        c = Counter(val[i.creads[n]]) if i.creads else Counter()
                        c[i.sym[1]] += 1; val[r] = c
                elif i.sym[0] == 'lin':
                    c = Counter()
                    for r, sg in i.sym[2]:
                        for kk, vv in val[r].items(): c[kk] += sg * vv
                    val[i.sym[1]] = c
                else:
                    q, j, h = i.sym[2]
                    want = {(pt, dh, kp, k, j, h): 1 for pt in PTS[q] for dh in range(2) for kp in range(4) for k in taps(pt)}
                    got = {kk: vv for kk, vv in val[i.sym[1]].items() if vv}
                    assert got == want, (i.t, q, j, h); used += 1
                    for r in i.wr: val.pop(r, None)
            assert used == 256
        vm = []; lg = []; nw = 0; floor = 0
        head = {}
        def handle(i, k, lst):
            nonlocal vm, lg, nw
            regs = set(i.rd) | set(i.wr)
            for name, q, T, Tmin, mx in (('vmcnt', vm, g.o.tvm, g.o.hvm, 63), ('lgkmcnt', lg, g.o.tlg, g.o.hlg, 15)):
                last = -1
                for n, (dst, sg) in enumerate(q):
                    if dst & regs: last = n
                if last < 0: continue
                if q[last][1] >= k or k == len(segs) - 1 or k < floor:
                    while len(q) - 1 - last > mx: last += 1
                    lst.append(I(f"s_waitcnt {name}({len(q)-1-last})", 'salu')); nw += 1
                else:
                    best = k
                    for c in range(k, max(floor - 1, k - 12, q[last][1] + Tmin - 1), -1):
                        cur = lst + rest if c == k else segs[c]
                        if c in head or gapcost([I('', 'salu')] + cur) == gapcost(cur): best = c; break
                    while last + 1 < len(q) and best - q[last + 1][1] >= T: last += 1
                    n = sum(1 for e in q[last + 1:] if e[1] < best)
                    while n > mx: last += 1; n -= 1
                    h = head.setdefault(best, {})
                    h[name] = min(n, h.get(name, 99))
                if name == 'vmcnt': vm = q[last + 1:]
                else: lg = q[last + 1:]
        for k in range(len(segs)):
            lst = []
            for n, i in enumerate(segs[k]):
                rest = segs[k][n:]
                handle(i, k, lst)
                lst.append(i)
                if i.k == 'lgkm0': lg = []; floor = k + 1
                if i.k == 'vload': vm.append((set(i.wr), k))
                if i.k == 'vstore': vm.append((set(), k))
                if i.k == 'dsr': lg.append((set(i.wr), k))
                if i.k in ('dsw', 'dsw32'): lg.append((set(), k))
            rest = []
            if k < len(M): handle(M[k], k, lst)
            segs[k] = lst
        for k, h in head.items():
            segs[k].insert(0, I("s_waitcnt " + " ".join(f"{a}({b})" for a, b in h.items()), 'salu')); nw += 1
        st = [0] * 9
        for G in range(len(GROUPS)):
            for k in range(g.idx[(G, 0)], g.idx[(G + 1, 0)]):
                if k + 1 < len(segs) - 1: st[G // 8] += gapcost(segs[k + 1])
        sys.stderr.write(f"model cycles {st} sum {sum(st)} tail {gapcost(segs[-1])}\n")
        if g.o.stall:
            for k in range(1, len(segs) - 1, g.o.stall): segs[k].append(I("s_nop 7", 'salu'))
        out = list(linear())
        res = []; nn = 0
        isv = lambda k: k in ('valu', 'trans')
        for i in out:
            req = 0; dist = 0
            for p in reversed(res[-12:]):
                w = 0
                pw, prd = set(p.wr), set(p.rd)
                if isv(p.k) and i.k == 'mfma' and pw & set(i.rd): w = 2
                if p.k == 'mfma':
                    if isv(i.k) and pw & (set(i.rd) | set(i.wr)): w = 8
                    if i.k in ('vstore', 'dsw', 'dsw32', 'vload', 'dsr') and pw & (set(i.rd) | set(i.wr)): w = 8
                    if isv(i.k) and set(p.creads) & set(i.wr): w = max(w, 3)
                if p.k == 'trans' and i.k != 'trans' and pw & set(i.rd): w = max(w, 1)
                if p.k == 'trans' and i.k == 'trans' and pw & set(i.rd): w = max(w, 1)
                if p.k in ('vstore', 'dsw', 'dsw32') and isv(i.k) and prd & set(i.wr): w = max(w, 2)
                req = max(req, w - dist)
                dist += (int(p.t.split()[1]) + 1) if p.t.startswith('s_nop') else 1
            if req > 0: res.append(I(f"s_nop {req-1}", 'salu')); nn += 1
            res.append(i)
        sys.stderr.write(f"waits {nw} nops {nn} total {len(res)}\n")
        return res
    def dbgstamp(g, slot, inv, back, vt=240):
        if not g.o.dbg: return ""
        t = f"s_and_b32 s96, s2, 0x38\ns_cmp_lg_u32 s96, 0\ns_cbranch_scc1 L_dbg{slot}\ns_memrealtime s[96:97]\ns_load_dwordx2 s[98:99], s[0:1], 24\ns_waitcnt lgkmcnt(0)\n"
        if not back: t += "s_add_u32 s98, s98, 512\ns_addc_u32 s99, s99, 0\n"
        if inv: t += "s_not_b32 s96, s96\n"
        t += f"v_mov_b32 v{vt}, s96\nv_mov_b32 v{vt+1}, {4*slot}\ns_mov_b64 s[94:95], exec\ns_mov_b64 exec, 1\nglobal_atomic_umax v{vt+1}, v{vt}, s[98:99]\ns_mov_b64 exec, s[94:95]\nL_dbg{slot}:"
        return t
    def spin(g, ticks, lab):
        return (f"s_load_dwordx2 s[98:99], s[0:1], 32\ns_waitcnt lgkmcnt(0)\ns_add_u32 s98, s98, {100<<20}\ns_addc_u32 s99, s99, 0\ns_load_dword s95, s[98:99], 0\ns_waitcnt lgkmcnt(0)\n"
                f"{lab}:\ns_memrealtime s[96:97]\ns_waitcnt lgkmcnt(0)\ns_sub_u32 s96, s96, s95\ns_cmp_lt_u32 s96, {ticks}\ns_cbranch_scc1 {lab}")
    def main_kernel(g):
        E = g.out.append
        E(f".globl {KN}\n.p2align 8\n.type {KN},@function\n{KN}:")
        E("s_cmp_ge_u32 s2, 256\ns_cbranch_scc1 L_end")
        E(g.dbgstamp(2, True, True)); E(g.dbgstamp(3, False, True))
        if g.o.spin0: E(g.spin(g.o.spin0, 'L_sp0'))
        if g.o.stamps: E(f"s_memtime s[{SST}:{SST+1}]\ns_memrealtime s[{SST+2}:{SST+3}]")
        E("s_load_dwordx2 s[4:5], s[0:1], 0\ns_load_dwordx2 s[6:7], s[0:1], 16\ns_load_dwordx2 s[26:27], s[0:1], 32")
        if g.o.map == 0:
            E("s_and_b32 s30, s2, 7\ns_lshr_b32 s31, s2, 3\ns_and_b32 s32, s31, 3\ns_lshr_b32 s31, s31, 2\ns_lshl_b32 s30, s30, 3\ns_add_u32 s30, s30, s31")
        elif g.o.map == 1:
            E("s_and_b32 s32, s2, 3\ns_lshr_b32 s30, s2, 2")
        else:
            E("s_and_b32 s32, s2, 1\ns_lshl_b32 s32, s32, 1\ns_bfe_u32 s31, s2, 0x10003\ns_add_u32 s32, s32, s31\ns_bfe_u32 s30, s2, 0x20001\ns_lshl_b32 s30, s30, 4\ns_lshr_b32 s31, s2, 4\ns_add_u32 s30, s30, s31")
        E("s_lshr_b32 s33, s30, 5\ns_and_b32 s34, s30, 31\ns_lshl_b32 s34, s34, 18")
        E("s_mul_i32 s33, s33, 8192000")
        E("v_and_b32 v202, 15, v0\nv_bfe_u32 v203, v0, 4, 1\nv_lshrrev_b32 v204, 5, v0\nv_mul_u32_u24 v205, 9, v204")
        E("v_lshlrev_b32 v206, 12, v205\nv_lshlrev_b32 v207, 9, v203\nv_lshlrev_b32 v208, 4, v202")
        E(f"v_add3_u32 v206, v206, v207, v208\ns_sub_u32 s35, s34, {4*4096}\nv_add_u32 v{XBASE}, s35, v206")
        E("v_and_b32 v200, 63, v0\nv_lshrrev_b32 v201, 6, v0")
        E(f"s_lshl_b32 s36, s32, 2\nv_add_u32 v206, s36, v201\nv_mul_u32_u24 v206, {STREAM}, v206\nv_lshl_add_u32 v{WL}, v200, 4, v206")
        E(f"v_lshl_add_u32 v{PFA}, v200, 2, v201\nv_lshlrev_b32 v{PFA}, 7, v{PFA}")
        E(f"s_add_u32 s{SX+2}, s34, 262144\ns_min_u32 s{SX+2}, s{SX+2}, 8192000\ns_mov_b32 s{SX+3}, 0x20000\ns_mov_b32 s{SW+2}, {0x10000000 if g.o.stamps else 16*STREAM}\ns_mov_b32 s{SW+3}, 0x20000")
        E(f"s_getpc_b64 s[28:29]\nL_pc:\ns_mov_b32 s30, L_h{g.o.pfd+1}-L_pc+128\ns_mov_b32 s31, 0x20000\ns_mov_b32 s37, 0")
        E("s_waitcnt lgkmcnt(0)")
        E(f"s_add_u32 s{SX}, s4, s33\ns_addc_u32 s{SX+1}, s5, 0\ns_mov_b32 s{SW}, s26\ns_mov_b32 s{SW+1}, s27\ns_add_u32 s{SWO}, s26, 4096\ns_addc_u32 s{SWO+1}, s27, 0")
        T = []
        T.append(f"v_and_b32 v206, 7, v202\nv_mul_u32_u24 v206, {S2}, v206\nv_lshrrev_b32 v207, 3, v202\nv_mul_u32_u24 v207, {S1}, v207\nv_lshlrev_b32 v208, 4, v203\nv_add3_u32 v206, v206, v207, v208")
        for i in range(9):
            T.append(f"v_add_u32 v207, {i}, v205\nv_and_b32 v208, 7, v207\nv_mul_u32_u24 v208, 288, v208\nv_lshrrev_b32 v207, 3, v207\nv_lshlrev_b32 v207, 5, v207\nv_add3_u32 v{WA+i}, v206, v207, v208")
        T.append(f"v_bfe_u32 v206, v0, 5, 1\nv_mul_u32_u24 v206, {S2}, v206\nv_mul_u32_u24 v207, {S1}, v203\nv_lshlrev_b32 v208, 4, v202\nv_add3_u32 v{RB}, v206, v207, v208\nv_add_u32 v{RB+1}, {ARR}, v{RB}")
        T.append("v_lshrrev_b32 v206, 1, v202\nv_lshlrev_b32 v206, 15, v206\nv_and_b32 v207, 1, v202\nv_lshlrev_b32 v207, 9, v207\nv_lshlrev_b32 v208, 5, v201\nv_add3_u32 v206, v206, v207, v208")
        T.append(f"v_lshrrev_b32 v207, 4, v200\nv_lshlrev_b32 v207, 3, v207\ns_lshl_b32 s36, s32, 7\ns_add_u32 s36, s36, s34\nv_add3_u32 v{SB}, v206, v207, s36")
        T.append(f"s_mov_b32 s{SC1}, {hex(fb(2*1.4426950408889634))}\ns_mov_b32 s{SC2}, {hex(fb(-1.4426950408889634))}\ns_mov_b32 s{SCL}, {hex(fb(32.0))}\ns_mov_b32 s{SMASK}, 0xffff0000")
        T.append(f"s_add_u32 s{SO}, s6, s33\ns_addc_u32 s{SO+1}, s7, 0\ns_mov_b32 s{SO+2}, 8192000\ns_mov_b32 s{SO+3}, 0x20000")
        g.late_setup = "\n".join(T)
        for i in g.finalize(g.body()): E(i.t)
        if g.o.stamps:
            n = 12
            if g.o.trace < 0: E(f"s_waitcnt vmcnt(0)\ns_memtime s[{SST+44}:{SST+45}]\ns_memrealtime s[{SST+46}:{SST+47}]\ns_waitcnt lgkmcnt(0)")
            E(f"v_mbcnt_lo_u32_b32 v20, -1, 0\nv_mbcnt_hi_u32_b32 v20, -1, v20\nv_lshlrev_b32 v21, 4, v20\nv_sub_u32 v21, v{WL}, v21\ns_lshl_b32 s36, s32, 2\ns_mul_i32 s36, s36, {STREAM}\nv_subrev_u32 v21, s36, v21\nv_or_b32 v21, v21, v20")
            E("v_cmp_eq_u32 vcc, 0, v21\ns_and_saveexec_b64 s[90:91], vcc\ns_cbranch_execz L_end")
            E(f"s_mul_i32 s36, s2, {16*n}\ns_add_u32 s36, s36, {200<<20}")
            for k in range(n):
                for j in range(4): E(f"v_mov_b32 v{24+j}, s{SST+4*k+j}")
                E(f"buffer_store_dwordx4 v[24:27], v21, s[{SW}:{SW+3}], s36 offen offset:{16*k}\ns_nop 1")
        if g.o.dbg: E(g.dbgstamp(4, False, True)); E("s_waitcnt vmcnt(0)"); E(g.dbgstamp(5, False, True)); E(g.dbgstamp(6, True, True))
        if g.o.spinend: E("s_waitcnt vmcnt(0)"); E(g.spin(g.o.spinend, 'L_spe'))
        E("L_end:\ns_endpgm")
    def prep_kernel(g):
        E = g.out.append
        E(f".globl {PN}\n.p2align 8\n.type {PN},@function\n{PN}:")
        E("s_cmp_ge_u32 s2, 256\ns_cbranch_scc1 LP_end2")
        E(g.dbgstamp(0, True, False, 116))
        if g.o.spinend or g.o.spin0 or g.o.spin1:
            E(f"s_cmp_lg_u32 s2, 0\ns_cbranch_scc1 LP_ns\ns_memrealtime s[96:97]\ns_load_dwordx2 s[98:99], s[0:1], 32\ns_waitcnt lgkmcnt(0)\nv_mov_b32 v116, s96\nv_mov_b32 v117, {100<<20}\nglobal_store_dword v117, v116, s[98:99]\nLP_ns:")
        ps = lambda n: E(f"s_memtime s[{60+4*n}:{61+4*n}]\ns_memrealtime s[{62+4*n}:{63+4*n}]") if g.o.pstamps else None
        ps(0)
        E("s_load_dwordx2 s[4:5], s[0:1], 8\ns_load_dwordx2 s[6:7], s[0:1], 32\ns_load_dwordx2 s[40:41], s[0:1], 0")
        E("s_and_b32 s20, s2, 1\ns_bfe_u32 s21, s2, 0x50001\ns_lshr_b32 s22, s2, 6")
        E("v_lshrrev_b32 v4, 6, v0\nv_lshlrev_b32 v1, 18, v4\nv_bfe_u32 v2, v0, 5, 1\nv_lshlrev_b32 v2, 10, v2\nv_and_b32 v3, 31, v0\nv_lshlrev_b32 v3, 4, v3\nv_add3_u32 v1, v1, v2, v3")
        E("s_lshl_b32 s23, s20, 9\ns_lshl_b32 s24, s21, 13\ns_add_u32 s23, s23, s24\ns_lshl_b32 s25, s22, 20\ns_add_u32 s23, s23, s25\ns_sub_u32 s23, s23, 262144")
        E("v_readfirstlane_b32 s26, v4\nv_add_u32 v1, s23, v1\nv_add_u32 v2, 2048, v1\nv_add_u32 v3, 4096, v1\nv_add_u32 v4, 6144, v1")
        E("s_mul_i32 s26, s26, 4352\ns_mov_b32 s10, 3932160\ns_mov_b32 s11, 0x20000\ns_mov_b32 m0, s26")
        E("s_waitcnt lgkmcnt(0)")
        ps(1)
        E("s_mov_b32 s8, s4\ns_mov_b32 s9, s5")
        for i in range(4):
            E(f"buffer_load_dwordx4 v{1+i}, s[8:11], 0 offen lds")
            if i < 3: E("s_add_u32 m0, m0, 1088\ns_nop 0")
        E(f"s_mov_b32 s12, s6\ns_mov_b32 s13, s7\ns_mov_b32 s14, {16*STREAM}\ns_mov_b32 s15, 0x20000")
        if g.o.warm:
            E(f"s_getpc_b64 s[44:45]\nLP_pc:\ns_add_u32 s44, s44, {KN}-LP_pc\ns_addc_u32 s45, s45, 0\ns_mov_b32 s46, L_h3-{KN}\ns_mov_b32 s47, 0x20000")
            E("v_lshlrev_b32 v5, 7, v0\nbuffer_load_dword v116, v5, s[44:47], 0 offen")
            E("s_and_b32 s48, s2, 7\ns_lshr_b32 s49, s2, 5\ns_lshl_b32 s48, s48, 3\ns_add_u32 s48, s48, s49")
            E("s_lshr_b32 s49, s48, 5\ns_and_b32 s48, s48, 31\ns_lshl_b32 s48, s48, 18\ns_mul_i32 s49, s49, 8192000")
            E("s_add_u32 s40, s40, s49\ns_addc_u32 s41, s41, 0\ns_add_u32 s42, s48, 262144\ns_min_u32 s42, s42, 8192000\ns_mov_b32 s43, 0x20000")
            if g.o.warm == 1:
                E("s_bfe_u32 s49, s2, 0x20003\ns_lshl_b32 s49, s49, 7\ns_add_u32 s48, s48, s49\ns_sub_u32 s48, s48, 12288")
                E("v_lshrrev_b32 v6, 1, v0\nv_lshlrev_b32 v6, 12, v6\nv_and_b32 v7, 1, v0\nv_lshlrev_b32 v7, 9, v7\nv_add3_u32 v6, v6, v7, s48")
                E("buffer_load_dword v117, v6, s[40:43], 0 offen")
            else:
                E("s_bfe_u32 s49, s2, 0x20003\ns_lshl_b32 s49, s49, 16\ns_add_u32 s48, s48, s49\nv_add_u32 v6, s48, v5\nv_add_u32 v7, 0x8000, v6")
                E("buffer_load_dword v117, v6, s[40:43], 0 offen\nbuffer_load_dword v118, v7, s[40:43], 0 offen")
        E(f"v_lshrrev_b32 v3, 4, v0\nv_mul_u32_u24 v3, {STREAM}, v3\nv_and_b32 v4, 15, v0\nv_lshlrev_b32 v4, 4, v4\nv_add_u32 v3, v3, v4")
        E("s_lshr_b32 s27, s21, 4\ns_bfe_u32 s28, s21, 0x20001\ns_and_b32 s29, s21, 1\ns_lshl_b32 s29, s29, 1\ns_bfe_u32 s30, s21, 0x10003\ns_add_u32 s29, s29, s30\ns_lshl_b32 s29, s29, 8")
        E("v_add_u32 v3, s29, v3")
        E("v_bfe_u32 v1, v0, 3, 1\nv_mul_u32_u24 v1, 1088, v1\nv_bfe_u32 v2, v0, 2, 1\nv_lshlrev_b32 v2, 9, v2\nv_lshrrev_b32 v4, 4, v0\nv_lshlrev_b32 v4, 5, v4\nv_add3_u32 v1, v1, v2, v4\nv_and_b32 v2, 3, v0\nv_lshl_add_u32 v1, v2, 3, v1")
        E("s_mov_b32 s33, 0xffff0000")
        PTS9 = ['22', '23', '21', '12', '32', '13', '33', '31', '11']
        E("s_lshl_b32 s34, s28, 3\ns_lshl_b32 s35, s20, 2\ns_add_u32 s34, s34, s35\ns_add_u32 s34, s34, s22")
        E("s_mul_i32 s36, s28, 6\ns_mul_i32 s35, s20, 3\ns_add_u32 s36, s36, s35\ns_add_u32 s36, s36, s22")
        for n, pt in enumerate(PTS9):
            base = GOFF[(pt, 0, 0)]; dstr = GOFF[(pt, 1, 0)] - base
            E(f"s_mul_i32 s{80+n}, s27, {dstr}\ns_add_u32 s{80+n}, s{80+n}, s{36 if pt == '11' else 34}\ns_add_u32 s{80+n}, s{80+n}, {base-taps(pt)[0]}\ns_lshl_b32 s{80+n}, s{80+n}, 10")
        E(f"s_cmp_eq_u32 s22, 0\ns_cselect_b32 s88, {16*STREAM}, s88")
        E(f"s_waitcnt vmcnt({[0, 2, 3][g.o.warm]})\ns_barrier")
        ps(2)
        PK = {'11': 112, '13': 100, '31': 108, '33': 104}
        rawn = ['11', '13', '31', '33']; rawp = [PK[x] for x in rawn]
        st = lambda pt, o: E(f"buffer_store_dwordx4 v[{o}:{o+3}], v3, s[12:15], s{80+PTS9.index(pt)} offen{g.o.pflags}")
        for r in range(4):
            for hf in range(2): E(f"ds_read_b64_tr_b16 v[{rawp[r]+2*hf}:{rawp[r]+2*hf+1}], v1 offset:{r*4352+hf*2176}")
        g_ = lambda r: 8 + 8 * r
        def comb(pt, dst, x, y, o):
            for i in range(8): E(f"v_add_f32 v{dst+i}, v{x+i}, v{y+i}")
            for i in range(4): E(f"v_cvt_pk_bf16_f32 v{o+i}, v{dst+2*i}, v{dst+2*i+1}")
            st(pt, o)
        for r in range(4):
            E(f"s_waitcnt lgkmcnt({6-2*r})")
            st(rawn[r], rawp[r])
            for i in range(4): E(f"v_lshlrev_b32 v{g_(r)+2*i}, 16, v{rawp[r]+i}\nv_and_b32 v{g_(r)+2*i+1}, s33, v{rawp[r]+i}")
            if r == 1: comb('12', 40, g_(0), g_(1), 80)
            if r == 2: comb('21', 56, g_(0), g_(2), 84)
        comb('32', 48, g_(2), g_(3), 88); comb('22', 72, 40, 48, 92); comb('23', 64, g_(1), g_(3), 96)
        E("LP_end:")
        if g.o.pstamps:
            ps(3); E("s_waitcnt vmcnt(0)"); ps(4)
            E(f"s_waitcnt lgkmcnt(0)\ns_mov_b32 s14, 0x10000000\ns_mul_i32 s31, s2, 80\ns_add_u32 s31, s31, {210<<20}\nv_cmp_eq_u32 vcc, 0, v0\ns_and_saveexec_b64 s[50:51], vcc\ns_cbranch_execz LP_end2\nv_mov_b32 v3, 0")
            for k in range(5):
                for j in range(4): E(f"v_mov_b32 v{24+j}, s{60+4*k+j}")
                E(f"buffer_store_dwordx4 v[24:27], v3, s[12:15], s31 offen offset:{16*k}\ns_nop 1")
        if g.o.dbg: E("s_waitcnt vmcnt(0)"); E(g.dbgstamp(1, False, False, 116))
        E("LP_end2:\ns_endpgm")
    def emit(g):
        E = g.out.append
        E(f"; F(4,4) nested fast-FIR (Karatsuba x2) dilated conv + gated activation; generated by gen.py")
        E(f"; @launch kernel={PN} grid=(256,1,1) block=(256,1,1) lds=17408")
        E(f"; @launch kernel={KN} grid=(256,1,1) block=(256,1,1) lds={LDS_BYTES}")
        E('.amdgcn_target "amdgcn-amd-amdhsa--gfx950"\n.text')
        g.prep_kernel(); g.main_kernel()
        for n, nv, ao in ((PN, 120, 120), (KN, 512, 256)):
            E(f""".section .rodata,"a"
.p2align 6
.amdhsa_kernel {n}
  .amdhsa_next_free_vgpr {nv}
  .amdhsa_next_free_sgpr 100
  .amdhsa_accum_offset {ao}
  .amdhsa_group_segment_fixed_size 0
  .amdhsa_kernarg_size 40
  .amdhsa_user_sgpr_count 2
  .amdhsa_user_sgpr_kernarg_segment_ptr 1
  .amdhsa_system_sgpr_workgroup_id_x 1
  .amdhsa_float_denorm_mode_32 3
.end_amdhsa_kernel""")
        return "\n".join(x for x in g.out if x) + "\n"

if __name__ == '__main__':
    ap = argparse.ArgumentParser()
    ap.add_argument('-o', default='standalone__autoregressive_conv_wavernn__speech.s')
    ap.add_argument('--stamps', action='store_true'); ap.add_argument('--cap', type=int, default=2); ap.add_argument('--backlog', type=int, default=10)
    ap.add_argument('--tvm', type=int, default=80); ap.add_argument('--tlg', type=int, default=10)
    ap.add_argument('--wflags', default=''); ap.add_argument('--sflags', default='nt')
    ap.add_argument('--skip', default=''); ap.add_argument('--pf', type=int, default=1); ap.add_argument('--map', type=int, default=0); ap.add_argument('--look', type=int, default=16); ap.add_argument('--dswsep', type=int, default=6)
    ap.add_argument('--pstamps', action='store_true'); ap.add_argument('--gsep', type=int, default=3); ap.add_argument('--xsep', type=int, default=0); ap.add_argument('--b32', type=int, default=0); ap.add_argument('--a1split', type=int, default=16); ap.add_argument('--warm', type=int, default=1); ap.add_argument('--pflags', default=''); ap.add_argument('--pfd', type=int, default=2); ap.add_argument('--snake', type=int, default=1); ap.add_argument('--nearly', type=int, default=9); ap.add_argument('--y0end', type=int, default=2); ap.add_argument('--y2in', type=int, default=4); ap.add_argument('--wwin', type=int, default=6); ap.add_argument('--extra', default=''); ap.add_argument('--xflags', default=''); ap.add_argument('--xstep', type=int, default=1024); ap.add_argument('--dbg', action='store_true'); ap.add_argument('--spinend', type=int, default=0); ap.add_argument('--spin0', type=int, default=0); ap.add_argument('--spin1', type=int, default=0); ap.add_argument('--stall', type=int, default=0); ap.add_argument('--hvm', type=int, default=48); ap.add_argument('--hlg', type=int, default=8); ap.add_argument('--trace', type=int, default=-1); ap.add_argument('--tstep', type=int, default=8)
    o = ap.parse_args()
    o.skip = [x for x in o.skip.split(',') if x]
    if o.wflags: o.wflags = ' ' + o.wflags
    if o.xflags: o.xflags = ' ' + o.xflags
    if o.pflags: o.pflags = ' ' + o.pflags
    if o.sflags: o.sflags = ' ' + o.sflags
    open(o.o, 'w').write(Gen(o).emit())
```

```python
import sys, struct, argparse
KN = "standalone__autoregressive_conv_wavernn__speech_kernel"
PN = "wprep_kernel"
fb = lambda f: struct.unpack('<I', struct.pack('<f', f))[0]

S1, S2, ARR, BUF = 2304, 4624, 36992, 73984
LDS_BYTES = 2 * BUF
STREAM = 560 * 1024

STAGES = [(('22', 0), ('22', 1)),
          (('23', 0), ('21', 0)), (('23', 1), ('21', 1)),
          (('12', 0), ('32', 0)), (('12', 1), ('32', 1)),
          (('13', 0), ('33', 0)), (('13', 1), ('33', 1)),
          (('11', 0), ('31', 0)), (('11', 1), ('31', 1))]
SET = {'22': 0, '23': 1, '21': 0, '12': 2, '32': 3, '13': 0, '33': 1, '11': 2, '31': 3}
FORK = {'22': None, '23': 0}
QOF = {0: 1, 1: 3, 2: 0, 3: 2}
PTYPE = ['A', 'B', 'B', 'C', 'C', 'D', 'D', 'E', 'E']
PARK0 = 16 << 20
def taps(pt): return [1, 2, 3] if pt == '11' else [0, 1, 2, 3]

GROUPS = []
_off = 0
for s, st in enumerate(STAGES):
    for a, (pt, dh) in enumerate(st):
        for kp in range(4):
            GROUPS.append((s, a, pt, dh, kp, _off)); _off += 2 * len(taps(pt))
assert _off == 560
GOFF = {(pt, dh, kp): off for (s, a, pt, dh, kp, off) in GROUPS}

def V(n, c=1): return [('v', n + i) for i in range(c)]
def A(n, c=1): return [('a', n + i) for i in range(c)]
def vr(n, c): return f"v[{n}:{n+c-1}]"
def ar(n, c): return f"a[{n}:{n+c-1}]"
class I:
    __slots__ = ('t', 'k', 'rd', 'wr', 'c', 'need', 'tag', 'pos', 'dl', 'seq', 'creads', 'sym')
    def __init__(s, t, k, rd=(), wr=(), need=None, tag=None, creads=(), sym=None):
        s.sym = sym
        s.t = t; s.k = k; s.rd = list(rd); s.wr = list(wr); s.need = need or []; s.tag = tag
        s.c = {'trans': 2, 'dsw': 2, 'dsw32': 2, 'salu': 0, 'vstore': 2, 'vstore4': 2}.get(k, 1); s.pos = None; s.dl = None; s.creads = list(creads)

WA = 1; RB = 10; WL = 12; XA = 13; XBASE = 15; SB = 0
RAW = 144; NRAW = 12; PERS = 192; TMP = 200; OUT = 208; EPI = 224; ACT = 240; STG = 16; PFA = 224; PFD = 225; PKA = 226; FLR = 228; VZ = 232; VONE = 233; VFO = 234; KA0 = 236; KB0 = 237; KPERS = [227, 235, 238, 239, 240, 241, 242, 243]
def R(f, n, c=1): return [(f, n + i) for i in range(c)]
def rr_(f, n, c): return f"{f}[{n}:{n+c-1}]"
def accreg(st, t): return [('v', 16), ('v', 80), ('a', 0), ('a', 64)][st][0], [16, 80, 0, 64][st] + t * 4
def wreg(slot): return 'a', 128 + slot * 4
def xreg(c): return ('a', 224 + 4 * c) if c < 8 else ('v', 244 + 4 * (c - 8))
SX, SW, SO = 8, 12, 16
SWO = 20; SC1, SC2, SCL, SMASK = 25, 22, 23, 24
SFL = 4
FLG0 = 15 << 20
SPK = 38
SST = 40

def gapcost(gap):
    t = 4; sawv = False; pg = False
    for i in gap:
        if i.k in ('valu', 'trans'): t = max(t, 8) + (8 if i.k == 'trans' else 4) + (4 if pg and t == 12 else 0); sawv = True
        pg = i.k == 'vstore' or 's36 offen' in i.t
        if i.k in ('valu', 'trans'): pass
        elif i.k == 'dsw': t += 24 + (8 if sawv else 0)
        elif i.k == 'vstore4': t += 24 + (8 if sawv else 0)
        elif i.k == 'dsw32': t += 12 + (8 if sawv else 0)
        elif i.k in ('vload', 'dsr', 'vstore'): t += 8 + (8 if sawv else 0)
        else: t += 4 * (1 + i.t.count('\n'))
    return max(t, 16)

class Gen:
    def __init__(g, opt):
        g.o = opt; g.out = []; g.tr = {}; g.lastdsw = -99; g.lastv = -99
    def mfmas(g):
        M = []; g.idx = {}
        for G, (s, a, pt, dh, kp, off) in enumerate(GROUPS):
            tp = taps(pt); st = SET[pt]
            first = (kp == 0 and dh == 0 and pt in FORK)
            for j in range(8):
                g.idx[(G, j)] = len(M)
                for hi, h in enumerate((0, 1) if j % 2 == 0 or not g.o.snake else (1, 0)):
                    order = list(enumerate(tp))
                    if hi == 1 and g.o.snake: order.reverse()
                    for n, (ki, k) in enumerate(order):
                        af, acc = accreg(st, j * 2 + h)
                        wf, w = wreg((G % 3) * 8 + h * len(tp) + ki)
                        xf, x = xreg(j + k)
                        if first and n == 0:
                            if FORK[pt] is None: cs, cr = '0', []
                            else:
                                cf, c = accreg(FORK[pt], j * 2 + h); cs, cr = rr_(cf, c, 4), R(cf, c, 4)
                        else: cs, cr = rr_(af, acc, 4), R(af, acc, 4)
                        M.append(I(f"v_mfma_f32_16x16x32_bf16 {rr_(af,acc,4)}, {rr_(wf,w,4)}, {rr_(xf,x,4)}, {cs}", 'mfma',
                                   rd=R(wf, w, 4) + R(xf, x, 4) + cr, wr=R(af, acc, 4), creads=cr, sym=('mfma', (pt, dh, kp, k, j, h)),
                                   need=[((wf, w), ('W', G, h, k)), ((xf, x), ('X', G, j + k))]))
        g.idx[(len(GROUPS), 0)] = len(M)
        for s in range(18): M[g.idx[(4 * s, 0)]].t = f"L_h{s}:\n" + M[g.idx[(4 * s, 0)]].t
        return M
    def P(g, s, gr, j=0): return g.idx[(s * 8 + gr, j)]
    def wloads(g, G):
        s, a, pt, dh, kp, off = GROUPS[G]; tp = taps(pt); L = []
        for h in range(2):
            for ki, k in enumerate(tp):
                f = off + h * len(tp) + ki
                if f % 8 == 0 and f:
                    L.append(I(f"s_add_u32 s{SWO}, s{SWO}, 8192", 'salu', rd=[('s', SWO)], wr=[('s', SWO), ('s', 'scc')], tag=(('s', 'scc'), ('W', f))))
                    L.append(I(f"s_addc_u32 s{SWO+1}, s{SWO+1}, 0", 'salu', rd=[('s', SWO), ('s', 'scc')], wr=[('s', SWO), ('s', 'scc')], need=[(('s', 'scc'), ('W', f))]))
                wf, w = wreg((G % 3) * 8 + h * len(tp) + ki)
                L.append(I(f"global_load_dwordx4 {rr_(wf,w,4)}, v{WL}, s[{SWO}:{SWO+1}] offset:{(f%8)*1024-4096}{g.o.wflags}", 'vload',
                           rd=V(WL) + [('s', SWO)], wr=R(wf, w, 4), tag=((wf, w), ('W', G, h, k))))
        return L
    def xread(g, G, c):
        s, a, pt, dh, kp, off = GROUPS[G]
        xf, x = xreg(c); imm = 2 * kp * S2 + (c % 8) * 288 + (c // 8) * 32
        return I(f"ds_read_b128 {rr_(xf,x,4)}, v{RB+a} offset:{imm}", 'dsr', rd=V(RB + a), wr=R(xf, x, 4), tag=((xf, x), ('X', G, c)),
                 need=[(('v', RB + a), ('RB', s))])
    def spread(g, L, p0, p1, dl=None):
        tot = sum(i.c for i in L); acc = 0
        for i in L:
            i.pos = p0 + (p1 - p0) * acc / max(tot, 1); acc += i.c
            i.dl = dl
        return L
    def account(g, L):
        for i in L:
            if i.k == 'pad': continue
            p = int(i.pos)
            for q in range(-3, 4):
                if 0 <= p + q < len(g.load): g.load[p + q] += i.c / 7.0
    def fill(g, L, p0, p1, dl=None):
        p0 = int(p0 + 0.999); p1 = int(p1)
        tot = sum(i.c for i in L); lo, hi = 0.0, 20.0
        for _ in range(50):
            lam = (lo + hi) / 2
            if sum(max(0.02, lam - g.load[m]) for m in range(p0, p1)) > tot: hi = lam
            else: lo = lam
        room = [max(0.02, hi - g.load[m]) for m in range(p0, p1)]
        m = 0; acc = 0; base = 0.0
        for i in L:
            while m < len(room) - 1 and base + room[m] <= acc: base += room[m]; m += 1
            i.pos = p0 + m + min(0.99, (acc - base) / room[m]); i.dl = dl; acc += i.c
        for k, r in enumerate(room): g.load[p0 + k] += r
        g.levels.append((p0, p1, round(hi, 2)))
        return L
    def production(g):
        rows = []
        progs = []
        def newrow(s, ai, imm):
            rows.append((s, ai, imm + STAGES[s][0][1] * 256)); return len(rows) - 1
        rr = lambda n: RAW + (n % NRAW) * 4
        tctr = [0]
        def tmp():
            t = TMP + tctr[0] % 8; tctr[0] += 1; return t
        octr = [0]
        def lo(dst, n, i): return I(f"v_lshlrev_b32 v{dst}, 16, v{rr(n)+i}", 'valu', rd=V(rr(n)+i), wr=V(dst), need=[(('v', rr(n)), ('R', n))], tag=('use', n))
        def hi(dst, n, i): return I(f"v_and_b32 v{dst}, s{SMASK}, v{rr(n)+i}", 'valu', rd=V(rr(n)+i), wr=V(dst), need=[(('v', rr(n)), ('R', n))], tag=('use', n))
        def sub(d, a, b): return I(f"v_sub_f32 v{d}, v{a}, v{b}", 'valu', rd=V(a) + V(b), wr=V(d))
        def cvt(d, a, b): return I(f"v_cvt_pk_bf16_f32 v{d}, v{a}, v{b}", 'valu', rd=V(a) + V(b), wr=V(d))
        def wr(s, i, arr, src): return I(f"ds_write_b128 v{WA+i}, {vr(src,4)} offset:{arr*ARR}", 'dsw', rd=V(WA + i) + V(src, 4), need=[(('v', WA + i), ('WA', s))])
        def krow(base, const, imm):
            rows.append(('k', base, const, imm)); return len(rows) - 1
        def toggles(s):
            op = 'v_add_u32' if s % 2 else 'v_subrev_u32'
            return [I(f"{op} v{WA+i}, {BUF}, v{WA+i}", 'valu', rd=V(WA + i), wr=V(WA + i), tag=(('v', WA + i), ('WA', s))) for i in range(9)]
        P8 = list(range(PERS, PERS + 8))
        def init2(na, nb, PP=P8):
            L = []
            for d in range(4):
                t0, t1 = tmp(), tmp(); p0, p1 = PP[2*d], PP[2*d+1]
                L += [lo(p0, na, d), hi(p1, na, d), lo(t0, nb, d), hi(t1, nb, d), sub(p0, p0, t0), sub(p1, p1, t1)]
            return L
        def corner(mp, mm, np_, nm, o0, o1, PP=P8):
            L = []
            for d in range(4):
                a, b, c, e = [tmp() for _ in range(4)]
                p0, p1 = PP[2*d], PP[2*d+1]
                L += [lo(a, mp, d), hi(b, mp, d), lo(c, mm, d), hi(e, mm, d), sub(a, a, c), sub(b, b, e),
                      sub(c, p0, a), sub(e, p1, b), lo(p0, np_, d), hi(p1, np_, d), cvt(o0 + d, c, e),
                      lo(c, nm, d), hi(e, nm, d), sub(p0, p0, c), sub(p1, p1, e), sub(a, p0, a), sub(b, p1, b), cvt(o1 + d, a, b)]
            return L
        def steps(L, s, seq):
            pend = None
            for ty, i in seq:
                if ty == 'K' and i == 0:
                    nb, na = krow(KA0, 0, 2048), krow(KB0, 2048, 0); L += init2(na, nb, KPERS)
                stepstart = len(L)
                o0 = OUT + (octr[0] % 2) * 8; o1 = o0 + 4; octr[0] += 1
                if ty == 'B':
                    n2, n3, n4 = newrow(s, i, 3072), newrow(s, i + 1, 0), newrow(s, i + 1, 1024)
                    for d in range(4):
                        a, b, c, e, f, h = [tmp() for _ in range(6)]
                        L += [lo(a, n3, d), hi(b, n3, d), lo(c, n4, d), hi(e, n4, d), lo(f, n2, d), hi(h, n2, d),
                              sub(c, c, a), sub(e, e, b), sub(f, f, a), sub(h, h, b), cvt(o0 + d, c, e), cvt(o1 + d, f, h)]
                elif ty == 'C':
                    n3, n5 = newrow(s, i + 1, 0), newrow(s, i + 1, 2048)
                    for d in range(4):
                        a, b, c, e = [tmp() for _ in range(4)]
                        p0, p1 = PERS + 2*d, PERS + 2*d + 1
                        L += [lo(a, n3, d), hi(b, n3, d), sub(c, p0, a), sub(e, p1, b), lo(p0, n5, d), hi(p1, n5, d), cvt(o0 + d, c, e),
                              sub(a, p0, a), sub(b, p1, b), cvt(o1 + d, a, b)]
                elif ty == 'D':
                    n3, n4, n5, n6 = [newrow(s, i + 1, 1024 * q) for q in range(4)]
                    L += corner(n4, n3, n6, n5, o0, o1)
                elif ty == 'E':
                    n2 = newrow(s, i, 3072); n3, n4, n5 = [newrow(s, i + 1, 1024 * q) for q in range(3)]
                    L += corner(n2, n3, n4, n5, o0, o1)
                elif ty == 'K':
                    c0 = 4096 * (i + 1)
                    mp, mm, nm, np_ = krow(KB0, c0, 0), krow(KA0, c0, 0), krow(KA0, c0, 2048), krow(KB0, c0 + 2048, 0)
                    L += corner(mp, mm, np_, nm, o0, o1, KPERS)
                if ty == 'K': w0, w1 = g.parkop(2 * i, o0, True), g.parkop(2 * i + 1, o1, True)
                else: w0, w1 = [wr(s, i, 0, o0)], [wr(s, i, 1, o1)]
                if pend is not None:
                    m = stepstart + (len(L) - stepstart) // 2; L[m:m] = pend
                L += w0; pend = w1
            if pend is not None:
                pad = I("", 'pad'); pad.c = 10
                L += [pad] + pend
        firstP = None; kctr = [0]
        for s in range(1, 9):
            ty = PTYPE[s]; L = []
            PS = {0: 99, 1: 5, 2: 7}[g.o.coop]
            if s >= PS: ty = 'P'
            if s == PS:
                pad = I("", 'pad'); pad.c = g.o.fpad; L.append(pad)
                L += g.flagcheck(); firstP = (len(progs), len(L) - 1)
                pad = I("", 'pad'); pad.c = 30; L.append(pad)
            L += toggles(s)
            if ty == 'C':
                n1 = newrow(s, 0, 2048)
                for d in range(4): L += [lo(PERS + 2*d, n1, d), hi(PERS + 2*d + 1, n1, d)]
            elif ty == 'D': nb, na = newrow(s, 0, 2048), newrow(s, 0, 3072); L += init2(na, nb)
            elif ty == 'E': na, nb = newrow(s, 0, 1024), newrow(s, 0, 2048); L += init2(na, nb)
            if ty == 'P':
                for i in range(9):
                    for arr in range(2):
                        rows.append(('park', s - PS, 2 * i + arr)); n = len(rows) - 1
                        w = wr(s, i, arr, rr(n)); w.need.append((('v', rr(n)), ('R', n))); w.tag = ('use', n)
                        pad = I("", 'pad'); pad.c = 4
                        L += [w, pad]
            else:
                pat = g.o.kpat.split(',')[s - 1] if g.o.coop and s <= 4 else '.' * 9
                seq = []; mi_ = 0
                for ch in pat:
                    if ch == 'K': seq.append(('K', kctr[0])); kctr[0] += 1
                    else: seq.append((ty, mi_)); mi_ += 1
                assert mi_ == 9
                steps(L, s, seq)
            progs.append(L)
        last = {}
        for ps, L in enumerate(progs):
            for k, op in enumerate(L):
                if op.tag and op.tag[0] == 'use': last[op.tag[1]] = (ps, k); op.tag = None
        cur = {}; nxt = [0]
        def load(n):
            if rows[n][0] == 'park':
                L = g.parkop(rows[n][2], rr(n), False, rows[n][1]); L[-1].tag = (('v', rr(n)), ('R', n)); return L
            if rows[n][0] == 'k': _, base, const, imm = rows[n]
            else: base, const, imm = XBASE, 4096 * rows[n][1], rows[n][2]
            L = []; hit = [r for r in (XA, XA + 1) if cur.get(r) == (base, const)]
            if hit: r = hit[0]
            else:
                r = XA + nxt[0]
                L.append(I(f"v_add_u32 v{r}, {const}, v{base}", 'valu', rd=V(base), wr=V(r))); cur[r] = (base, const)
            nxt[0] = 1 - (r - XA)
            L.append(I(f"buffer_load_dwordx4 {vr(rr(n),4)}, v{r}, s[{SX}:{SX+3}], 0 offen offset:{imm}" + (g.o.kxflags + " ;k" if rows[n][0] == 'k' else (g.o.xlflags if rows[n][0] <= g.o.xlmax else "")), 'vload', rd=V(r), wr=V(rr(n), 4), tag=(('v', rr(n)), ('R', n))))
            return L
        head = []
        for n in range(NRAW): head += load(n)
        ins = {}
        prev = (0, -1)
        for n in range(NRAW, len(rows)):
            at = max(last[n - NRAW], prev)
            if rows[n][0] == 'park': at = max(at, firstP)
            prev = at
            ins.setdefault(at, []).extend(load(n))
        res = []
        for ps, L in enumerate(progs):
            R = []
            for k, op in enumerate(L):
                R.append(op); R += ins.get((ps, k), [])
            res.append(R)
        return head, res
    def parkop(g, slot, reg, store, buf=0):
        L = []
        sc = [('s', SPK), ('s', 'scc')]
        if slot % 8 == 0 and slot:
            L.append(I(f"s_add_u32 s{SPK}, s{SPK}, 8192\ns_addc_u32 s{SPK+1}, s{SPK+1}, 0", 'salu', rd=sc, wr=sc, tag=(('s', 'scc'), 'park')))
        if slot == 0 and not store:
            L.append(I(f"s_add_u32 s{SPK}, s{SW}, {buf*73728+4096}\ns_addc_u32 s{SPK+1}, s{SW+1}, 0", 'salu', rd=sc, wr=sc, tag=(('s', 'scc'), 'park')))
        off = (slot % 8) * 1024 - 4096
        if store: L.append(I(f"global_store_dwordx4 v{PKA}, {vr(reg,4)}, s[{SPK}:{SPK+1}] offset:{off}{g.o.kflags}", 'vstore4', rd=V(PKA) + V(reg, 4) + [('s', SPK)], wr=[('m', 'parkord')], tag=(('m', 'parkord'), slot)))
        else: L.append(I(f"global_load_dwordx4 {vr(reg,4)}, v{PKA}, s[{SPK}:{SPK+1}] offset:{off}{g.o.lflags}", 'vload', rd=V(PKA) + [('s', SPK), ('m', 'flagok')], wr=V(reg, 4)))
        return L
    def flagload(g): return f"global_load_dwordx4 {vr(FLR,4)}, v{VZ}, s[{SFL}:{SFL+1}] sc1"
    def flagcheck(g):
        red = f"v_and_b32 v{FLR}, v{FLR}, v{FLR+1}\nv_and_b32 v{FLR+2}, v{FLR+2}, v{FLR+3}\nv_and_b32 v{FLR}, v{FLR}, v{FLR+2}\ns_nop 1\nv_readfirstlane_b32 s35, v{FLR}\ns_nop 3\ns_cmp_eq_u32 s35, 1"
        t = f"{red}\ns_cbranch_scc1 L_flok\ns_mov_b32 s33, 0\nL_flspin:\ns_add_u32 s33, s33, 1\ns_cmp_gt_u32 s33, 0x40000\ns_cbranch_scc1 L_flok\ns_sleep 8\n{g.flagload()}\ns_waitcnt vmcnt(0)\n{red}\ns_cbranch_scc0 L_flspin\nL_flok:"
        i = I(t, 'valu', rd=V(FLR, 4) + [('s', 'scc')], wr=V(FLR, 4) + [('s', 'scc'), ('m', 'flagok')], tag=(('s', 'scc'), 'flag'), need=[(('m', 'fl'), 1)])
        return [i]
    def acc_copy(g, dst, src, tiles):
        L = []
        for t in tiles:
            for r in range(4):
                d = accreg(dst, t)[1] + r; s_ = accreg(src, t)[1] + r
                L.append(I(f"v_accvgpr_write_b32 a{d}, v{s_}", 'valu', rd=V(s_), wr=A(d), sym=('lin', ('a', d), [(('v', s_), 1)])))
        return L
    def acc_sub(g, dst, src, tiles):
        L = []
        for t in tiles:
            for r in range(4):
                d = accreg(dst, t)[1] + r; s_ = accreg(src, t)[1] + r
                L.append(I(f"v_sub_f32 v{d}, v{d}, v{s_}", 'valu', rd=V(d) + V(s_), wr=V(d), sym=('lin', ('v', d), [(('v', d), 1), (('v', s_), -1)])))
        return L
    def acc_addA(g, dst, vsrc, asrc, tiles):
        L = []
        for t in tiles:
            for r in range(4):
                s_ = accreg(asrc, t)[1] + r
                L.append(I(f"v_accvgpr_read_b32 v{ACT+r}, a{s_}", 'valu', rd=A(s_), wr=V(ACT + r), sym=('lin', ('v', ACT + r), [(('a', s_), 1)])))
            for r in range(4):
                d = accreg(dst, t)[1] + r; v_ = accreg(vsrc, t)[1] + r
                L.append(I(f"v_add_f32 v{d}, v{v_}, v{ACT+r}", 'valu', rd=V(v_) + V(ACT + r), wr=V(d), sym=('lin', ('v', d), [(('v', v_), 1), (('v', ACT + r), 1)])))
        return L
    def epi(g, st, j, F):
        L = []; q = QOF[st]; Gq = F + 4
        af, f = accreg(st, 2 * j); gg = f + 4
        R4 = range(4)
        if af == 'a':
            L += [I(f"v_accvgpr_read_b32 v{F+r}, a{f+r}", 'valu', rd=A(f+r), wr=V(F+r), sym=('use', ('a', f + r), (q, j, 0))) for r in R4]
            L += [I(f"v_accvgpr_read_b32 v{Gq+r}, a{gg+r}", 'valu', rd=A(gg+r), wr=V(Gq+r), sym=('use', ('a', gg + r), (q, j, 1))) for r in R4]
            if not g.o.fold:
                L += [I(f"v_mul_f32 v{F+r}, s{SC1}, v{F+r}", 'valu', rd=V(F+r), wr=V(F+r)) for r in R4]
                L += [I(f"v_mul_f32 v{Gq+r}, s{SC2}, v{Gq+r}", 'valu', rd=V(Gq+r), wr=V(Gq+r)) for r in R4]
        elif not g.o.fold:
            L += [I(f"v_mul_f32 v{F+r}, s{SC1}, v{f+r}", 'valu', rd=V(f+r), wr=V(F+r), sym=('use', ('v', f + r), (q, j, 0))) for r in R4]
            L += [I(f"v_mul_f32 v{Gq+r}, s{SC2}, v{gg+r}", 'valu', rd=V(gg+r), wr=V(Gq+r), sym=('use', ('v', gg + r), (q, j, 1))) for r in R4]
        u = g.o.fold and af == 'v'
        if u: assert F == f
        L += [I(f"v_med3_f32 v{F+r}, v{F+r}, -s{SCL}, s{SCL}", 'valu', rd=V(F+r), wr=V(F+r), sym=('use', ('v', f + r), (q, j, 0)) if u else None) for r in R4]
        L += [I(f"v_exp_f32 v{Gq+r}, v{Gq+r}", 'trans', rd=V(Gq+r), wr=V(Gq+r), sym=('use', ('v', gg + r), (q, j, 1)) if u else None) for r in R4]
        L += [I(f"v_exp_f32 v{F+r}, v{F+r}", 'trans', rd=V(F+r), wr=V(F+r)) for r in R4]
        L += [I(f"v_add_f32 v{Gq+r}, 1.0, v{Gq+r}", 'valu', rd=V(Gq+r), wr=V(Gq+r)) for r in R4]
        L += [I(f"v_fmac_f32 v{Gq+r}, v{F+r}, v{Gq+r}", 'valu', rd=V(Gq+r) + V(F+r), wr=V(Gq+r)) for r in R4]
        L += [I(f"v_rcp_f32 v{Gq+r}, v{Gq+r}", 'trans', rd=V(Gq+r), wr=V(Gq+r)) for r in R4]
        L += [I(f"v_fma_f32 v{F+r}, v{F+r}, v{Gq+r}, -v{Gq+r}", 'valu', rd=V(Gq+r) + V(F+r), wr=V(F+r)) for r in R4]
        L += [I(f"v_add_u32 v{Gq}, {4096*j}, v{SB}", 'valu', rd=V(SB), wr=V(Gq)),
              I(f"v_cvt_pk_bf16_f32 v{F}, v{F}, v{F+1}", 'valu', rd=V(F, 2), wr=V(F)),
              I(f"v_cvt_pk_bf16_f32 v{F+1}, v{F+2}, v{F+3}", 'valu', rd=V(F+2, 2), wr=V(F+1)),
              I(f"buffer_store_dwordx2 {vr(F,2)}, v{Gq}, s[{SO}:{SO+3}], 0 offen offset:{q*1024}{g.o.sflags}", 'vstore', rd=V(F, 2) + V(Gq))]
        return L
    def stamp(g, n):
        if not g.o.stamps or g.o.trace >= 0: return []
        return [I(f"s_memtime s[{SST+4*n}:{SST+4*n+1}]", 'salu'), I(f"s_memrealtime s[{SST+4*n+2}:{SST+4*n+3}]", 'salu')]
    def barrier(g, n):
        return g.stamp(n) + [I("s_waitcnt lgkmcnt(0)", 'lgkm0'), I("s_barrier", 'salu')]
    def body(g):
        M = g.mfmas(); NG = len(GROUPS); F = []
        head, prods = g.production()
        pre = []
        def stg(i, dh): return (16 if dh == 0 else 80) + 4 * i
        def xl(dh):
            L = []
            for i in range(9):
                r = XA + i % 2
                L.append(I(f"v_add_u32 v{r}, {4096*(i+1)}, v{XBASE}", 'valu', rd=V(XBASE), wr=V(r)))
                L.append(I(f"buffer_load_dwordx4 {vr(stg(i,dh),4)}, v{r}, s[{SX}:{SX+3}], 0 offen offset:{dh*256}{g.o.xlflags}", 'vload', rd=V(r), wr=V(stg(i, dh), 4)))
            return L
        def xw(dh): return [I(f"ds_write_b128 v{WA+i}, {vr(stg(i,dh),4)} offset:{dh*ARR}", 'dsw', rd=V(WA + i) + V(stg(i, dh), 4), need=[(('v', WA + i), ('WA', 0))]) for i in range(9)]
        pre += xl(0) + g.wloads(0)
        if g.o.pf: pre.append(I(f"buffer_load_dword v{PFD}, v{PFA}, s[28:31], 0 offen", 'vload', rd=V(PFA), wr=V(PFD)))
        pre += xl(1) + g.wloads(1)
        pre.append(I(g.late_setup, 'valu'))
        pre += xw(0)
        pre += g.barrier(1)
        if g.o.spin1: pre.append(I(g.spin(g.o.spin1, 'L_sp1'), 'lgkm0'))
        pre += [g.xread(0, c) for c in range(7)]
        F += g.spread(head, 4, 90)
        F += g.spread(xw(1), 56, 130, dl=g.P(0, 2, 3))
        B = [I("s_waitcnt lgkmcnt(0)", 'lgkm0'), I("s_barrier", 'salu')]
        for i in B: i.pos = g.P(0, 2, 6) + 0.2; i.c = 0; i.dl = g.P(0, 2, 6) + 1
        F += B
        for G in range(2, NG):
            F += g.spread(g.wloads(G), g.idx[(G - 2, 0)] + 1, (g.idx[(G - 2, g.o.wwin)] if g.o.wwin < 8 else g.idx[(G - 1, 0)]) - 2, dl=g.idx[(G - 1, 0)])
        for G in range(NG):
            s = GROUPS[G][0]; used = sorted({j + k for j in range(8) for k in taps(GROUPS[G][2])})
            lastg = (G % 8 == 7)
            for c in used:
                if c >= 7:
                    op = g.xread(G, c)
                    op.pos = g.idx[(G, 0)] + 2 * (c - 7) + 0.5 if lastg else g.idx[(G, c - 7)] + 2.5
                    op.dl = g.idx[(G, c - 3)] - 10 if not lastg else g.idx[(G, 1)] + 2; F.append(op)
                elif G > 0:
                    op = g.xread(G, c)
                    p = g.idx[(G - 1, c + 1)] + 4.5
                    if G % 8 == 0: p = max(p, g.idx[(G - 1, 2)] + 1.5 + 2 * c)
                    op.pos = p; op.dl = max(p + 1, g.idx[(G, max(0, c - 3))] - 10); F.append(op)
            if lastg and s < 8:
                L = []
                for a in range(2):
                    op = 'v_add_u32' if (s + 1) % 2 else 'v_subrev_u32'
                    L.append(I(f"{op} v{RB+a}, {BUF}, v{RB+a}", 'valu', rd=V(RB + a), wr=V(RB + a), tag=(('v', RB + a), ('RB', s + 1))))
                L[0].pos = g.idx[(G, 1)] + 4.1; L[1].pos = g.idx[(G, 1)] + 5.1
                B = g.barrier(s + 2)
                for i in B: i.pos = g.idx[(G, 2)] + 0.2; i.c = 0
                for i in L + B: i.dl = g.idx[(G, 2)] + 1
                F += L + B
        if g.o.pf:
            D = g.o.pfd
            for n in range(1, 18 - D):
                a = I(f"s_mov_b32 s36, L_h{n+D}-L_pc", 'salu', wr=[('s', 36)])
                a2 = I(f"s_mov_b32 s30, {'L_h%d+128' % (n+D+1) if n + D + 1 < 18 else 'L_end'}-L_pc", 'salu', wr=[('s', 30)])
                b = I(f"buffer_load_dword v{PFD}, v{PFA}, s[28:31], s36 offen", 'vload', rd=V(PFA) + [('s', 36), ('s', 30)], wr=V(PFD))
                a.pos = g.idx[(4 * n, 6)] + 2; a2.pos = a.pos + 1; b.pos = a.pos + 2; F += [a, a2, b]
                a.tag = (('s', 36), ('C', n)); b.need = [(('s', 36), ('C', n))]
        if g.o.coop:
            pb = g.P(3, g.o.fbar) if g.o.coop == 1 else g.P(4, 2)
            B = [I("s_nop 0", 'salu', rd=[('m', 'park'), ('m', 'parkord')], need=[(('m', 'parkord'), 17 if g.o.coop == 1 else 9)]), I("s_barrier", 'salu')]
            for i in B: i.pos = pb + 0.2; i.c = 0; i.dl = pb + 1
            fs = I(f"global_store_dword v{VFO}, v{VONE}, s[{SFL}:{SFL+1}] sc1", 'vstore', rd=V(VFO) + V(VONE)); fs.pos = pb + 1.2
            fl = I(g.flagload(), 'vload', rd=V(VZ), wr=V(FLR, 4), tag=(('m', 'fl'), 1)); fl.pos = g.P(3, 7, 2) + g.o.fload if g.o.coop == 1 else g.P(5, 5)
            F += B + [fs, fl]
        if g.o.extra:
            kind, n = g.o.extra[0], int(g.o.extra[1:])
            for s in (1, 2):
                L = []
                for q in range(n):
                    src = 244 + (q * 5) % 12; d = EPI + 4 + q % 8
                    if kind == 'v': L.append(I([f"v_lshlrev_b32 v{d}, 16, v{src}", f"v_and_b32 v{d}, s{SMASK}, v{src}", f"v_sub_f32 v{d}, v{EPI+4+(q+6)%8}, v{EPI+4+(q+7)%8}"][q % 3], 'valu'))
                    if kind == 'a': L.append(I(f"v_accvgpr_read_b32 v{d}, a{(q*7)%128}", 'valu'))
                    if kind == 'd': L.append(I(f"ds_read_b128 v[{EPI+4+4*(q%2)}:{EPI+7+4*(q%2)}], v{RB} offset:{(q*288)%30000}", 'dsr', rd=V(RB)))
                    if kind == 'g': L.append(I(f"buffer_load_dwordx4 v[{EPI+4+4*(q%2)}:{EPI+7+4*(q%2)}], v{WL}, s[{SW}:{SW+3}], s37 offen offset:{(q%4)*1024}{g.o.xflags}\ns_add_u32 s37, s37, {g.o.xstep}", 'vload'))
                F += g.spread(L, g.P(s, 0) - 40, g.P(s, 7))
        g.load = [0.0] * (len(M) + 8); g.levels = []
        g.account(F)
        def SP(*a, **k):
            L = g.spread(*a, **k); g.account(L); return L
        PP = lambda s, gr, j: g.P(s, gr, j) if j < 8 else g.P(s + (gr + 1) // 8, (gr + 1) % 8, j - 8)
        for j in range(8):
            F += SP(g.acc_copy(2, 0, [2 * j, 2 * j + 1]), PP(2, 7, j + 1) + 6, PP(2, 7, j + 2) + 6, dl=g.P(3, 0, j) - 3)
        F += SP(g.acc_copy(3, 0, range(16)), g.P(3, 0, 2), g.P(3, 3), dl=g.P(3, 4) - 4)
        F += SP(g.acc_sub(1, 0, range(16)), g.P(3, 3), g.P(3, 7), dl=g.P(4, 0))
        a0, a1 = g.P(4, 3, 2), g.P(5, 0, 5)
        for j in range(8):
            F += SP(g.acc_addA(0, 1, 2, [2 * j, 2 * j + 1]), a0 + (a1 - a0) * j / 8, a0 + (a1 - a0) * (j + 1) / 8, dl=g.P(5, 0, j) - 4)
        F += SP(g.acc_addA(1, 1, 3, range(0, g.o.a1split)), g.P(5, 0, 6), g.P(5, 4) - 10, dl=g.P(5, 4) - 4)
        if g.o.a1split < 16: F += SP(g.acc_addA(1, 1, 3, range(g.o.a1split, 16)), g.P(6, 0) + 8, g.P(6, 4) - 10, dl=g.P(6, 4) - 4)
        nE = g.o.nearly
        tl = [(0, j) for j in range(8)] + [(1, j) for j in range(8)]
        def inplace(st, j): return accreg(st, 2 * j)[1]
        if not g.o.coop: F += SP(sum((g.epi(st, j, inplace(st, j)) for st, j in tl[:nE]), []), g.P(6, 3, 2), g.P(7, 7, 2), dl=g.P(8, 0))
        for s in range(8):
            p0 = g.P(s, 0) + 134 if s == 0 else g.P(s - 1, 7, 2) + 1; p1 = g.P(s, 7, 1)
            if s >= {0: 99, 1: 4, 2: 6}[g.o.coop]: F += SP(prods[s], p0, p1, dl=g.P(s, 7, 2))
            else: F += g.fill(prods[s], p0, p1, dl=g.P(s, 7, 2))
        if g.o.coop:
            F += g.fill(sum((g.epi(0, j, inplace(0, j)) for j in range(8)), []), g.P(6, 3, 2), g.P(7, 1, 0), dl=g.P(8, 0))
            F += g.fill(sum((g.epi(1, j, inplace(1, j)) for j in range(8)), []), g.P(7, 1, 0), g.P(8, 3, 2), dl=g.P(8, 4))
        else: F += g.fill(sum((g.epi(st, j, inplace(st, j)) for st, j in tl[nE:]), []), g.P(7, 7, 2), g.P(8, 3, 2), dl=g.P(8, 4))
        F += g.fill(sum((g.epi(2, j, inplace(0, j)) for j in range(8)), []), g.P(8, 3, 2), g.P(8, 7, g.o.y0end), dl=len(M))
        tail = g.stamp(10)
        for j in range(8):
            L = g.epi(3, j, inplace(1, j))
            if j < g.o.y2in: F += g.spread(L, g.P(8, 7, g.o.y0end) + (len(M) - g.P(8, 7, g.o.y0end)) * j / g.o.y2in, g.P(8, 7, g.o.y0end) + (len(M) - g.P(8, 7, g.o.y0end)) * (j + 1) / g.o.y2in)
            else: tail += L
        sys.stderr.write(f"levels {g.levels}\n")
        F = [i for i in F if i.k != 'pad']
        if g.o.trace >= 0:
            for n in range(49):
                g.tr[g.o.trace + n * g.o.tstep] = n
        sk = g.o.skip
        if 'valu' in sk: F = [i for i in F if i.k not in ('valu', 'trans') or i.t.startswith('v_add_u32') or i.t.startswith('v_subrev_u32')]
        if 'wld' in sk: F = [i for i in F if not (i.k == 'vload' and 'global_load' in i.t)]
        if 'xld' in sk: F = [i for i in F if not (i.k == 'vload' and f's[{SX}:' in i.t)]
        if 'dsr' in sk: F = [i for i in F if i.k != 'dsr']
        if 'dsw' in sk: F = [i for i in F if i.k != 'dsw']
        if 'st' in sk: F = [i for i in F if i.k != 'vstore']
        if 'kst' in sk: F = [i for i in F if i.k != 'vstore4']
        if 'kld' in sk: F = [i for i in F if not i.t.endswith(';k')]
        if 'bar' in sk: F = [i for i in F if i.t != 's_barrier']
        for n, i in enumerate(F): i.seq = n
        F.sort(key=lambda i: (i.pos, i.seq))
        MEM = ('vload', 'dsr', 'dsw', 'dsw32', 'vstore', 'vstore4')
        def indep(x, skipped):
            xr, xw = set(x.rd), set(x.wr)
            for y in skipped:
                if y.k == 'lgkm0' or y.t == 's_barrier' or x.k == 'lgkm0' or x.t == 's_barrier': return False
                if xr & set(y.wr) or xw & set(y.rd) or xw & set(y.wr): return False
            return True
        gaps = []; Q = list(F); late = 0
        for mi, m in enumerate(M):
            gap = []
            if mi in g.tr and g.tr[mi] < 48: gap.append(I(f"s_memtime s[{92+2*(g.tr[mi]%2)}:{93+2*(g.tr[mi]%2)}]", 'salu'))
            if mi - 1 in g.tr and g.tr[mi - 1] > 0: gap.append(I(f"s_mov_b32 s{SST+g.tr[mi-1]-1}, s{92+2*((g.tr[mi-1]-1)%2)}", 'salu'))
            nready = 0; backlog = 0; force = 0
            while nready < len(Q) and Q[nready].pos < mi + 1:
                backlog += Q[nready].c
                if Q[nready].dl is not None and Q[nready].dl <= mi + 1: force = nready + 1
                nready += 1
            lim = 16 + (4 if backlog > g.o.backlog else 0) + (4 if backlog > 3 * g.o.backlog else 0)
            W = min(nready, g.o.look)
            taken = set()
            def pick(pred):
                sk = []
                for k in range(W):
                    if k in taken: continue
                    if pred(Q[k]) and indep(Q[k], sk): return k
                    sk.append(Q[k])
                return None
            while True:
                k = pick(lambda x: x.k in ('salu', 'lgkm0'))
                if k is None or (gap and Q[k].k == 'salu' and Q[k].t != 's_barrier' and not Q[k].t.startswith('s_mem')): break
                gap.append(Q[k]); taken.add(k)
            vok = mi - g.lastv >= g.o.gsep
            k = pick(lambda x: x.k in MEM and (vok or x.k not in ('vload', 'vstore', 'vstore4')) and (x.k != 'dsw' or mi - g.lastdsw >= g.o.dswsep))
            if gap and (backlog >= 4 or (k is not None and Q[k].k == 'dsw32')): k = None
            if k is not None and (Q[k].k != 'dsw' or mi - g.lastdsw >= g.o.dswsep):
                gap.append(Q[k]); taken.add(k)
                if Q[k].k == 'dsw': g.lastdsw = mi
                if Q[k].k in ('vload', 'vstore', 'vstore4'): g.lastv = mi + {'vstore': g.o.xsep, 'vstore4': g.o.ysep}.get(Q[k].k, 0)
            while True:
                k = pick(lambda x: x.k in ('valu', 'trans'))
                if k is None or gapcost(gap + [Q[k]]) > lim: break
                gap.append(Q[k]); taken.add(k)
            for k in range(force):
                if k not in taken: gap.append(Q[k]); taken.add(k); late += 1
            Q = [x for k, x in enumerate(Q) if k not in taken] if taken else Q
            gaps.append(gap)
        sys.stderr.write(f"mfma {len(M)} fillers {len(F)} forced {late} leftover {len(Q)}\n")
        return pre, M, gaps, Q + tail
    def finalize(g, parts):
        pre, M, gaps, tail = parts
        segs = [list(pre)] + [list(x) for x in gaps]; segs[-1] += tail
        def linear():
            for k, sg in enumerate(segs):
                if k: yield M[k - 1]
                for i in sg: yield i
        tags = {('v', RB): ('RB', 0), ('v', RB + 1): ('RB', 0)}
        for i in range(9): tags[('v', WA + i)] = ('WA', 0)
        for i in linear():
            for r, t in i.need:
                assert g.o.skip or tags.get(r) == t, (i.t, r, t, tags.get(r))
            if i.tag: tags[i.tag[0]] = i.tag[1]
        if not g.o.skip:
            from collections import Counter
            val = {}; used = 0
            PTS = {0: ['11', '12', '21', '22'], 1: ['12', '13', '22', '23'], 2: ['21', '22', '31', '32'], 3: ['22', '23', '32', '33']}
            for i in linear():
                if not i.sym:
                    for r in i.wr: val.pop(r, None)
                    continue
                if i.sym[0] == 'mfma':
                    for n, r in enumerate(i.wr):
                        c = Counter(val[i.creads[n]]) if i.creads else Counter()
                        c[i.sym[1]] += 1; val[r] = c
                elif i.sym[0] == 'lin':
                    c = Counter()
                    for r, sg in i.sym[2]:
                        for kk, vv in val[r].items(): c[kk] += sg * vv
                    val[i.sym[1]] = c
                else:
                    q, j, h = i.sym[2]
                    want = {(pt, dh, kp, k, j, h): 1 for pt in PTS[q] for dh in range(2) for kp in range(4) for k in taps(pt)}
                    got = {kk: vv for kk, vv in val[i.sym[1]].items() if vv}
                    assert got == want, (i.t, q, j, h); used += 1
                    for r in i.wr: val.pop(r, None)
            assert used == 256
        vm = []; lg = []; nw = 0; floor = 0
        head = {}
        def handle(i, k, lst):
            nonlocal vm, lg, nw
            regs = set(i.rd) | set(i.wr)
            for name, q, T, Tmin, mx in (('vmcnt', vm, g.o.tvm, g.o.hvm, 63), ('lgkmcnt', lg, g.o.tlg, g.o.hlg, 15)):
                last = -1
                for n, (dst, sg) in enumerate(q):
                    if dst & regs: last = n
                if last < 0: continue
                if q[last][1] >= k or k == len(segs) - 1 or k < floor:
                    while len(q) - 1 - last > mx: last += 1
                    lst.append(I(f"s_waitcnt {name}({len(q)-1-last})", 'salu')); nw += 1
                else:
                    best = k
                    for c in range(k, max(floor - 1, k - 12, q[last][1] + Tmin - 1), -1):
                        cur = lst + rest if c == k else segs[c]
                        if c in head or gapcost([I('', 'salu')] + cur) == gapcost(cur): best = c; break
                    while last + 1 < len(q) and best - q[last + 1][1] >= T: last += 1
                    n = sum(1 for e in q[last + 1:] if e[1] < best)
                    while n > mx: last += 1; n -= 1
                    h = head.setdefault(best, {})
                    h[name] = min(n, h.get(name, 99))
                if name == 'vmcnt': vm = q[last + 1:]
                else: lg = q[last + 1:]
        for k in range(len(segs)):
            lst = []
            for n, i in enumerate(segs[k]):
                rest = segs[k][n:]
                handle(i, k, lst)
                lst.append(i)
                if i.k == 'lgkm0': lg = []; floor = k + 1
                if i.k == 'vload': vm.append((set(i.wr), k))
                if i.k in ('vstore', 'vstore4'): vm.append(({('m', 'park')} if i.k == 'vstore4' else set(), k))
                if i.k == 'dsr': lg.append((set(i.wr), k))
                if i.k in ('dsw', 'dsw32'): lg.append((set(), k))
            rest = []
            if k < len(M): handle(M[k], k, lst)
            segs[k] = lst
        for k, h in head.items():
            segs[k].insert(0, I("s_waitcnt " + " ".join(f"{a}({b})" for a, b in h.items()), 'salu')); nw += 1
        st = [0] * 9
        for G in range(len(GROUPS)):
            for k in range(g.idx[(G, 0)], g.idx[(G + 1, 0)]):
                if k + 1 < len(segs) - 1: st[G // 8] += gapcost(segs[k + 1])
        sys.stderr.write(f"model cycles {st} sum {sum(st)} tail {gapcost(segs[-1])}\n")
        if g.o.stall:
            for k in range(1, len(segs) - 1, g.o.stall): segs[k].append(I("s_nop 7", 'salu'))
        out = list(linear())
        res = []; nn = 0
        isv = lambda k: k in ('valu', 'trans')
        for i in out:
            req = 0; dist = 0
            for p in reversed(res[-12:]):
                w = 0
                pw, prd = set(p.wr), set(p.rd)
                if isv(p.k) and i.k == 'mfma' and pw & set(i.rd): w = 2
                if p.k == 'mfma':
                    if isv(i.k) and pw & (set(i.rd) | set(i.wr)): w = 8
                    if i.k in ('vstore', 'vstore4', 'dsw', 'dsw32', 'vload', 'dsr') and pw & (set(i.rd) | set(i.wr)): w = 8
                    if isv(i.k) and set(p.creads) & set(i.wr): w = max(w, 3)
                if p.k == 'trans' and i.k != 'trans' and pw & set(i.rd): w = max(w, 1)
                if p.k == 'trans' and i.k == 'trans' and pw & set(i.rd): w = max(w, 1)
                if p.k in ('vstore', 'vstore4', 'dsw', 'dsw32') and isv(i.k) and prd & set(i.wr): w = max(w, 2)
                req = max(req, w - dist)
                dist += (int(p.t.split()[1]) + 1) if p.t.startswith('s_nop') else 1
            if req > 0: res.append(I(f"s_nop {req-1}", 'salu')); nn += 1
            res.append(i)
        sys.stderr.write(f"waits {nw} nops {nn} total {len(res)}\n")
        return res
    def dbgstamp(g, slot, inv, back, vt=240):
        if not g.o.dbg: return ""
        t = f"s_and_b32 s96, s2, 0x38\ns_cmp_lg_u32 s96, 0\ns_cbranch_scc1 L_dbg{slot}\ns_memrealtime s[96:97]\ns_load_dwordx2 s[98:99], s[0:1], 24\ns_waitcnt lgkmcnt(0)\n"
        if not back: t += "s_add_u32 s98, s98, 512\ns_addc_u32 s99, s99, 0\n"
        if inv: t += "s_not_b32 s96, s96\n"
        t += f"v_mov_b32 v{vt}, s96\nv_mov_b32 v{vt+1}, {4*slot}\ns_mov_b64 s[94:95], exec\ns_mov_b64 exec, 1\nglobal_atomic_umax v{vt+1}, v{vt}, s[98:99]\ns_mov_b64 exec, s[94:95]\nL_dbg{slot}:"
        return t
    def spin(g, ticks, lab):
        return (f"s_load_dwordx2 s[98:99], s[0:1], 32\ns_waitcnt lgkmcnt(0)\ns_add_u32 s98, s98, {100<<20}\ns_addc_u32 s99, s99, 0\ns_load_dword s95, s[98:99], 0\ns_waitcnt lgkmcnt(0)\n"
                f"{lab}:\ns_memrealtime s[96:97]\ns_waitcnt lgkmcnt(0)\ns_sub_u32 s96, s96, s95\ns_cmp_lt_u32 s96, {ticks}\ns_cbranch_scc1 {lab}")
    def main_kernel(g):
        E = g.out.append
        E(f".globl {KN}\n.p2align 8\n.type {KN},@function\n{KN}:")
        E("s_cmp_ge_u32 s2, 256\ns_cbranch_scc1 L_end")
        E(g.dbgstamp(2, True, True)); E(g.dbgstamp(3, False, True))
        if g.o.spin0: E(g.spin(g.o.spin0, 'L_sp0'))
        if g.o.stamps: E(f"s_memtime s[{SST}:{SST+1}]\ns_memrealtime s[{SST+2}:{SST+3}]")
        E("s_load_dwordx2 s[4:5], s[0:1], 0\ns_load_dwordx2 s[6:7], s[0:1], 16\ns_load_dwordx2 s[26:27], s[0:1], 32")
        if g.o.map == 0:
            E("s_and_b32 s30, s2, 7\ns_lshr_b32 s31, s2, 3\ns_and_b32 s32, s31, 3\ns_lshr_b32 s31, s31, 2\ns_lshl_b32 s30, s30, 3\ns_add_u32 s30, s30, s31")
        elif g.o.map == 3: E("s_and_b32 s31, s2, 7\ns_lshr_b32 s33, s2, 3\ns_mul_i32 s30, s31, 31\ns_add_u32 s30, s30, s33\ns_and_b32 s32, s30, 3\ns_lshr_b32 s30, s30, 2\ns_cmp_ge_u32 s30, 31\ns_addc_u32 s30, s30, 0\ns_cmp_eq_u32 s33, 31\ns_cbranch_scc0 L_map\ns_and_b32 s32, s31, 3\ns_lshr_b32 s30, s31, 2\ns_lshl_b32 s30, s30, 5\ns_add_u32 s30, s30, 31\nL_map:")
        elif g.o.map == 1:
            E("s_and_b32 s32, s2, 3\ns_lshr_b32 s30, s2, 2")
        else:
            E("s_and_b32 s32, s2, 1\ns_lshl_b32 s32, s32, 1\ns_bfe_u32 s31, s2, 0x10003\ns_add_u32 s32, s32, s31\ns_bfe_u32 s30, s2, 0x20001\ns_lshl_b32 s30, s30, 4\ns_lshr_b32 s31, s2, 4\ns_add_u32 s30, s30, s31")
        E("s_mov_b32 s3, s30\ns_lshr_b32 s33, s30, 5\ns_and_b32 s34, s30, 31\ns_lshl_b32 s34, s34, 18")
        E("s_mul_i32 s33, s33, 8192000")
        E("v_and_b32 v202, 15, v0\nv_bfe_u32 v203, v0, 4, 1\nv_lshrrev_b32 v204, 5, v0\nv_mul_u32_u24 v205, 9, v204")
        E("v_lshlrev_b32 v206, 12, v205\nv_lshlrev_b32 v207, 9, v203\nv_lshlrev_b32 v208, 4, v202")
        E(f"v_add3_u32 v206, v206, v207, v208\ns_sub_u32 s35, s34, {4*4096}\nv_add_u32 v{XBASE}, s35, v206")
        E("v_and_b32 v200, 63, v0\nv_lshrrev_b32 v201, 6, v0")
        E(f"s_lshl_b32 s36, s32, 2\nv_add_u32 v206, s36, v201\nv_mul_u32_u24 v206, {STREAM}, v206\nv_lshl_add_u32 v{WL}, v200, 4, v206")
        E(f"v_lshl_add_u32 v{PFA}, v200, 2, v201\nv_lshlrev_b32 v{PFA}, 7, v{PFA}")
        E(f"s_add_u32 s{SX+2}, s34, 262144\ns_min_u32 s{SX+2}, s{SX+2}, 8192000\ns_mov_b32 s{SX+3}, 0x20000\ns_mov_b32 s{SW+2}, {0x10000000 if g.o.stamps else 16*STREAM}\ns_mov_b32 s{SW+3}, 0x20000")
        E(f"s_getpc_b64 s[28:29]\nL_pc:\ns_mov_b32 s30, L_h{g.o.pfd+1}-L_pc+128\ns_mov_b32 s31, 0x20000\ns_mov_b32 s37, 0")
        E("s_waitcnt lgkmcnt(0)")
        E(f"s_add_u32 s{SX}, s4, s33\ns_addc_u32 s{SX+1}, s5, 0\ns_mov_b32 s{SW}, s26\ns_mov_b32 s{SW+1}, s27\ns_add_u32 s{SWO}, s26, 4096\ns_addc_u32 s{SWO+1}, s27, 0")
        T = []
        T.append(f"v_and_b32 v206, 7, v202\nv_mul_u32_u24 v206, {S2}, v206\nv_lshrrev_b32 v207, 3, v202\nv_mul_u32_u24 v207, {S1}, v207\nv_lshlrev_b32 v208, 4, v203\nv_add3_u32 v206, v206, v207, v208")
        for i in range(9):
            T.append(f"v_add_u32 v207, {i}, v205\nv_and_b32 v208, 7, v207\nv_mul_u32_u24 v208, 288, v208\nv_lshrrev_b32 v207, 3, v207\nv_lshlrev_b32 v207, 5, v207\nv_add3_u32 v{WA+i}, v206, v207, v208")
        T.append(f"v_bfe_u32 v206, v0, 5, 1\nv_mul_u32_u24 v206, {S2}, v206\nv_mul_u32_u24 v207, {S1}, v203\nv_lshlrev_b32 v208, 4, v202\nv_add3_u32 v{RB}, v206, v207, v208\nv_add_u32 v{RB+1}, {ARR}, v{RB}")
        T.append("v_lshrrev_b32 v206, 1, v202\nv_lshlrev_b32 v206, 15, v206\nv_and_b32 v207, 1, v202\nv_lshlrev_b32 v207, 9, v207\nv_lshlrev_b32 v208, 5, v201\nv_add3_u32 v206, v206, v207, v208")
        T.append(f"v_lshrrev_b32 v207, 4, v200\nv_lshlrev_b32 v207, 3, v207\ns_lshl_b32 s36, s32, 7\ns_add_u32 s36, s36, s34\nv_add3_u32 v{SB}, v206, v207, s36")
        T.append(f"s_mov_b32 s{SC1}, {hex(fb(2*1.4426950408889634))}\ns_mov_b32 s{SC2}, {hex(fb(-1.4426950408889634))}\ns_mov_b32 s{SCL}, {hex(fb(32.0))}\ns_mov_b32 s{SMASK}, 0xffff0000")
        T.append(f"s_add_u32 s{SO}, s6, s33\ns_addc_u32 s{SO+1}, s7, 0\ns_mov_b32 s{SO+2}, 8192000\ns_mov_b32 s{SO+3}, 0x20000")
        T.append(f"v_mul_u32_u24 v206, 18432, v201\nv_lshl_add_u32 v{PKA}, v200, 4, v206\ns_mul_i32 s36, s3, {4*73728}\ns_add_u32 s36, s36, {g.o.park0 << 20}\ns_add_u32 s{SW}, s26, s36\ns_addc_u32 s{SW+1}, s27, 0")
        if g.o.coop == 2: T.append(f"s_and_b32 s36, s32, 1\ns_mul_i32 s36, s36, 73728\ns_lshr_b32 s35, s32, 1\ns_lshl_b32 s35, s35, 13\ns_add_u32 s36, s36, s35\ns_add_u32 s36, s36, 4096\ns_add_u32 s{SPK}, s{SW}, s36\ns_addc_u32 s{SPK+1}, s{SW+1}, 0")
        else: T.append(f"s_mul_i32 s36, s32, 73728\ns_add_u32 s36, s36, 4096\ns_add_u32 s{SPK}, s{SW}, s36\ns_addc_u32 s{SPK+1}, s{SW+1}, 0")
        T.append(f"s_lshl_b32 s36, s3, 7\ns_add_u32 s36, s36, {FLG0}\ns_add_u32 s{SFL}, s26, s36\ns_addc_u32 s{SFL+1}, s27, 0\nv_mov_b32 v{VZ}, 0\nv_mov_b32 v{VONE}, 1\ns_lshl_b32 s36, s32, 2\nv_mov_b32 v{VFO}, s36")
        if g.o.coop == 2: T.append(f"s_and_b32 s36, s32, 1\ns_lshl_b32 s36, s36, 8\ns_lshr_b32 s35, s32, 1\ns_lshl_b32 s35, s35, 14\ns_add_u32 s36, s36, s35\nv_add_u32 v{KA0}, s36, v{XBASE}\nv_subrev_u32 v{KB0}, 1024, v{KA0}")
        else: T.append(f"s_and_b32 s36, s32, 1\ns_lshl_b32 s36, s36, 8\nv_add_u32 v{KA0}, s36, v{XBASE}\ns_movk_i32 s35, -1024\ns_cmp_lt_u32 s32, 2\ns_cselect_b32 s36, 1024, s35\nv_add_u32 v{KB0}, s36, v{KA0}")
        g.late_setup = "\n".join(T)
        for i in g.finalize(g.body()): E(i.t)
        if g.o.stamps:
            n = 12
            E(f"s_mov_b32 s{SW}, s26\ns_mov_b32 s{SW+1}, s27\ns_mov_b32 s{SW+2}, 0x10000000")
            if g.o.trace < 0: E(f"s_waitcnt vmcnt(0)\ns_memtime s[{SST+44}:{SST+45}]\ns_memrealtime s[{SST+46}:{SST+47}]\ns_waitcnt lgkmcnt(0)")
            E(f"v_mbcnt_lo_u32_b32 v20, -1, 0\nv_mbcnt_hi_u32_b32 v20, -1, v20\nv_lshlrev_b32 v21, 4, v20\nv_sub_u32 v21, v{WL}, v21\ns_lshl_b32 s36, s32, 2\ns_mul_i32 s36, s36, {STREAM}\nv_subrev_u32 v21, s36, v21\nv_or_b32 v21, v21, v20")
            E("v_cmp_eq_u32 vcc, 0, v21\ns_and_saveexec_b64 s[90:91], vcc\ns_cbranch_execz L_end")
            E(f"s_mul_i32 s36, s2, {16*n}\ns_add_u32 s36, s36, {200<<20}")
            for k in range(n):
                for j in range(4): E(f"v_mov_b32 v{24+j}, s{SST+4*k+j}")
                E(f"buffer_store_dwordx4 v[24:27], v21, s[{SW}:{SW+3}], s36 offen offset:{16*k}\ns_nop 1")
        if g.o.dbg: E(g.dbgstamp(4, False, True)); E("s_waitcnt vmcnt(0)"); E(g.dbgstamp(5, False, True)); E(g.dbgstamp(6, True, True))
        if g.o.spinend: E("s_waitcnt vmcnt(0)"); E(g.spin(g.o.spinend, 'L_spe'))
        E("L_end:\ns_endpgm")
    def prep_kernel(g):
        E = g.out.append
        E(f".globl {PN}\n.p2align 8\n.type {PN},@function\n{PN}:")
        E("s_cmp_ge_u32 s2, 256\ns_cbranch_scc1 LP_end2")
        E(g.dbgstamp(0, True, False, 116))
        if g.o.spinend or g.o.spin0 or g.o.spin1:
            E(f"s_cmp_lg_u32 s2, 0\ns_cbranch_scc1 LP_ns\ns_memrealtime s[96:97]\ns_load_dwordx2 s[98:99], s[0:1], 32\ns_waitcnt lgkmcnt(0)\nv_mov_b32 v116, s96\nv_mov_b32 v117, {100<<20}\nglobal_store_dword v117, v116, s[98:99]\nLP_ns:")
        ps = lambda n: E(f"s_memtime s[{60+4*n}:{61+4*n}]\ns_memrealtime s[{62+4*n}:{63+4*n}]") if g.o.pstamps else None
        ps(0)
        E("s_load_dwordx2 s[4:5], s[0:1], 8\ns_load_dwordx2 s[6:7], s[0:1], 32\ns_load_dwordx2 s[40:41], s[0:1], 0")
        E("s_and_b32 s20, s2, 1\ns_bfe_u32 s21, s2, 0x50001\ns_lshr_b32 s22, s2, 6")
        E("v_lshrrev_b32 v4, 6, v0\nv_lshlrev_b32 v1, 18, v4\nv_bfe_u32 v2, v0, 5, 1\nv_lshlrev_b32 v2, 10, v2\nv_and_b32 v3, 31, v0\nv_lshlrev_b32 v3, 4, v3\nv_add3_u32 v1, v1, v2, v3")
        E("s_lshl_b32 s23, s20, 9\ns_lshl_b32 s24, s21, 13\ns_add_u32 s23, s23, s24\ns_lshl_b32 s25, s22, 20\ns_add_u32 s23, s23, s25\ns_sub_u32 s23, s23, 262144")
        E("v_readfirstlane_b32 s26, v4\nv_add_u32 v1, s23, v1\nv_add_u32 v2, 2048, v1\nv_add_u32 v3, 4096, v1\nv_add_u32 v4, 6144, v1")
        E("s_mul_i32 s26, s26, 4352\ns_mov_b32 s10, 3932160\ns_mov_b32 s11, 0x20000\ns_mov_b32 m0, s26")
        E("s_waitcnt lgkmcnt(0)")
        ps(1)
        E("s_mov_b32 s8, s4\ns_mov_b32 s9, s5")
        for i in range(4):
            E(f"buffer_load_dwordx4 v{1+i}, s[8:11], 0 offen lds")
            if i < 3: E("s_add_u32 m0, m0, 1088\ns_nop 0")
        E(f"s_mov_b32 s12, s6\ns_mov_b32 s13, s7\ns_mov_b32 s14, {16*STREAM}\ns_mov_b32 s15, 0x20000")
        if g.o.warm:
            E(f"s_getpc_b64 s[44:45]\nLP_pc:\ns_add_u32 s44, s44, {KN}-LP_pc\ns_addc_u32 s45, s45, 0\ns_mov_b32 s46, L_h3-{KN}\ns_mov_b32 s47, 0x20000")
            E("v_lshlrev_b32 v5, 7, v0\nbuffer_load_dword v116, v5, s[44:47], 0 offen")
            if g.o.map == 3: E("s_and_b32 s49, s2, 7\ns_lshr_b32 s50, s2, 3\ns_mul_i32 s48, s49, 31\ns_add_u32 s48, s48, s50\ns_and_b32 s52, s48, 3\ns_lshr_b32 s48, s48, 2\ns_cmp_ge_u32 s48, 31\ns_addc_u32 s48, s48, 0\ns_cmp_eq_u32 s50, 31\ns_cbranch_scc0 LP_map\ns_and_b32 s52, s49, 3\ns_lshr_b32 s48, s49, 2\ns_lshl_b32 s48, s48, 5\ns_add_u32 s48, s48, 31\nLP_map:")
            else: E("s_and_b32 s48, s2, 7\ns_lshr_b32 s49, s2, 5\ns_lshl_b32 s48, s48, 3\ns_add_u32 s48, s48, s49\ns_bfe_u32 s52, s2, 0x20003")
            E("s_lshr_b32 s49, s48, 5\ns_and_b32 s48, s48, 31\ns_lshl_b32 s48, s48, 18\ns_mul_i32 s49, s49, 8192000")
            E("s_add_u32 s40, s40, s49\ns_addc_u32 s41, s41, 0\ns_add_u32 s42, s48, 262144\ns_min_u32 s42, s42, 8192000\ns_mov_b32 s43, 0x20000")
            if g.o.warm == 1:
                E("s_lshl_b32 s49, s52, 7\ns_add_u32 s48, s48, s49\ns_sub_u32 s48, s48, 12288")
                E("v_lshrrev_b32 v6, 1, v0\nv_lshlrev_b32 v6, 12, v6\nv_and_b32 v7, 1, v0\nv_lshlrev_b32 v7, 9, v7\nv_add3_u32 v6, v6, v7, s48")
                E(f"buffer_load_dword v117, v6, s[40:43], 0 offen{g.o.wmflags}")
                for ch in g.o.wph: E(f"buffer_load_dword v117, v6, s[40:43], 0 offen offset:{1024*(int(ch)+1)}{g.o.wmflags}")
            else:
                E("s_lshl_b32 s49, s52, 16\ns_add_u32 s48, s48, s49\nv_add_u32 v6, s48, v5\nv_add_u32 v7, 0x8000, v6")
                if g.o.warm in (2, 4): E(f"buffer_load_dword v117, v6, s[40:43], 0 offen{g.o.wmflags}\nbuffer_load_dword v117, v7, s[40:43], 0 offen{g.o.wmflags}")
        E(f"v_lshrrev_b32 v3, 4, v0\nv_mul_u32_u24 v3, {STREAM}, v3\nv_and_b32 v4, 15, v0\nv_lshlrev_b32 v4, 4, v4\nv_add_u32 v3, v3, v4")
        E("s_lshr_b32 s27, s21, 4\ns_bfe_u32 s28, s21, 0x20001\ns_and_b32 s29, s21, 1\ns_lshl_b32 s29, s29, 1\ns_bfe_u32 s30, s21, 0x10003\ns_add_u32 s29, s29, s30\ns_lshl_b32 s29, s29, 8")
        E("v_add_u32 v3, s29, v3")
        E("v_bfe_u32 v1, v0, 3, 1\nv_mul_u32_u24 v1, 1088, v1\nv_bfe_u32 v2, v0, 2, 1\nv_lshlrev_b32 v2, 9, v2\nv_lshrrev_b32 v4, 4, v0\nv_lshlrev_b32 v4, 5, v4\nv_add3_u32 v1, v1, v2, v4\nv_and_b32 v2, 3, v0\nv_lshl_add_u32 v1, v2, 3, v1")
        E("s_mov_b32 s33, 0xffff0000")
        if g.o.coop: E(f"s_lshr_b32 s34, s2, 2\ns_lshl_b32 s34, s34, 7\ns_and_b32 s35, s2, 3\ns_lshl_b32 s35, s35, 2\ns_add_u32 s34, s34, s35\ns_add_u32 s34, s34, {FLG0}\nv_mov_b32 v118, s34\nv_mov_b32 v119, 0")
        E(f"s_mov_b32 s37, {hex(fb(2*1.4426950408889634))}\ns_cmp_eq_u32 s20, 0\ns_cselect_b32 s37, s37, {hex(fb(-1.4426950408889634))}")
        PTS9 = ['22', '23', '21', '12', '32', '13', '33', '31', '11']
        E("s_lshl_b32 s34, s28, 3\ns_lshl_b32 s35, s20, 2\ns_add_u32 s34, s34, s35\ns_add_u32 s34, s34, s22")
        E("s_mul_i32 s36, s28, 6\ns_mul_i32 s35, s20, 3\ns_add_u32 s36, s36, s35\ns_add_u32 s36, s36, s22")
        for n, pt in enumerate(PTS9):
            base = GOFF[(pt, 0, 0)]; dstr = GOFF[(pt, 1, 0)] - base
            E(f"s_mul_i32 s{80+n}, s27, {dstr}\ns_add_u32 s{80+n}, s{80+n}, s{36 if pt == '11' else 34}\ns_add_u32 s{80+n}, s{80+n}, {base-taps(pt)[0]}\ns_lshl_b32 s{80+n}, s{80+n}, 10")
        E(f"s_cmp_eq_u32 s22, 0\ns_cselect_b32 s88, {16*STREAM}, s88")
        E(f"s_waitcnt vmcnt({[0, 2 + len(g.o.wph), 3, 1, 3][g.o.warm]})\ns_barrier")
        ps(2)
        PK = {'11': 112, '13': 100, '31': 108, '33': 104}
        rawn = ['11', '13', '31', '33']; rawp = [PK[x] for x in rawn]
        st = lambda pt, o: E(f"buffer_store_dwordx4 v[{o}:{o+3}], v3, s[12:15], s{80+PTS9.index(pt)} offen{g.o.pflags}")
        for r in range(4):
            for hf in range(2): E(f"ds_read_b64_tr_b16 v[{rawp[r]+2*hf}:{rawp[r]+2*hf+1}], v1 offset:{r*4352+hf*2176}")
        g_ = lambda r: 8 + 8 * r
        def comb(pt, dst, x, y, o):
            for i in range(8): E(f"v_add_f32 v{dst+i}, v{x+i}, v{y+i}")
            for i in range(4): E(f"v_cvt_pk_bf16_f32 v{o+i}, v{dst+2*i}, v{dst+2*i+1}")
            st(pt, o)
        for r in range(4):
            E(f"s_waitcnt lgkmcnt({6-2*r})")
            if not g.o.fold: st(rawn[r], rawp[r])
            for i in range(4): E(f"v_lshlrev_b32 v{g_(r)+2*i}, 16, v{rawp[r]+i}\nv_and_b32 v{g_(r)+2*i+1}, s33, v{rawp[r]+i}")
            if g.o.fold:
                for i in range(8): E(f"v_mul_f32 v{g_(r)+i}, s37, v{g_(r)+i}")
                for i in range(4): E(f"v_cvt_pk_bf16_f32 v{rawp[r]+i}, v{g_(r)+2*i}, v{g_(r)+2*i+1}")
                st(rawn[r], rawp[r])
            if r == 1: comb('12', 40, g_(0), g_(1), 80)
            if r == 2: comb('21', 56, g_(0), g_(2), 84)
        if g.o.coop: E("global_store_dword v118, v119, s[6:7]")
        comb('32', 48, g_(2), g_(3), 88); comb('22', 72, 40, 48, 92); comb('23', 64, g_(1), g_(3), 96)
        if g.o.warm == 3: E(f"buffer_load_dword v117, v6, s[40:43], 0 offen{g.o.wmflags}\nbuffer_load_dword v117, v7, s[40:43], 0 offen{g.o.wmflags}")
        if g.o.warm == 4: E(f"s_waitcnt vmcnt({10 if g.o.coop else 9})\nbuffer_load_dword v117, v6, s[40:43], 0 offen sc1\nbuffer_load_dword v117, v7, s[40:43], 0 offen sc1")
        E("LP_end:")
        if g.o.pstamps:
            ps(3); E("s_waitcnt vmcnt(0)"); ps(4)
            E(f"s_waitcnt lgkmcnt(0)\ns_mov_b32 s14, 0x10000000\ns_mul_i32 s31, s2, 80\ns_add_u32 s31, s31, {210<<20}\nv_cmp_eq_u32 vcc, 0, v0\ns_and_saveexec_b64 s[50:51], vcc\ns_cbranch_execz LP_end2\nv_mov_b32 v3, 0")
            for k in range(5):
                for j in range(4): E(f"v_mov_b32 v{24+j}, s{60+4*k+j}")
                E(f"buffer_store_dwordx4 v[24:27], v3, s[12:15], s31 offen offset:{16*k}\ns_nop 1")
        if g.o.dbg: E("s_waitcnt vmcnt(0)"); E(g.dbgstamp(1, False, False, 116))
        E("LP_end2:\ns_endpgm")
    def emit(g):
        E = g.out.append
        E(f"; F(4,4) nested fast-FIR (Karatsuba x2) dilated conv + gated activation; generated by gen.py")
        E(f"; @launch kernel={PN} grid=(256,1,1) block=(256,1,1) lds=17408")
        E(f"; @launch kernel={KN} grid=(256,1,1) block=(256,1,1) lds={LDS_BYTES}")
        E('.amdgcn_target "amdgcn-amd-amdhsa--gfx950"\n.text')
        g.prep_kernel(); g.main_kernel()
        for n, nv, ao in ((PN, 120, 120), (KN, 512, 256)):
            E(f""".section .rodata,"a"
.p2align 6
.amdhsa_kernel {n}
  .amdhsa_next_free_vgpr {nv}
  .amdhsa_next_free_sgpr 100
  .amdhsa_accum_offset {ao}
  .amdhsa_group_segment_fixed_size 0
  .amdhsa_kernarg_size 40
  .amdhsa_user_sgpr_count 2
  .amdhsa_user_sgpr_kernarg_segment_ptr 1
  .amdhsa_system_sgpr_workgroup_id_x 1
  .amdhsa_float_denorm_mode_32 3
.end_amdhsa_kernel""")
        return "\n".join(x for x in g.out if x) + "\n"

if __name__ == '__main__':
    ap = argparse.ArgumentParser()
    ap.add_argument('-o', default='standalone__autoregressive_conv_wavernn__speech.s')
    ap.add_argument('--stamps', action='store_true'); ap.add_argument('--cap', type=int, default=2); ap.add_argument('--backlog', type=int, default=10)
    ap.add_argument('--tvm', type=int, default=80); ap.add_argument('--tlg', type=int, default=10)
    ap.add_argument('--wflags', default=''); ap.add_argument('--sflags', default='nt')
    ap.add_argument('--skip', default=''); ap.add_argument('--pf', type=int, default=1); ap.add_argument('--map', type=int, default=3); ap.add_argument('--look', type=int, default=16); ap.add_argument('--dswsep', type=int, default=6)
    ap.add_argument('--wph', default=''); ap.add_argument('--fold', type=int, default=1); ap.add_argument('--coop', type=int, default=0); ap.add_argument('--kpat', default='.........,..K...K...K.,K..K..K...K..,K..K.......'); ap.add_argument('--wmflags', default=''); ap.add_argument('--xlflags', default=''); ap.add_argument('--xlmax', type=int, default=9); ap.add_argument('--park0', type=int, default=16); ap.add_argument('--kxflags', default=''); ap.add_argument('--fbar', type=int, default=5); ap.add_argument('--fload', type=int, default=20); ap.add_argument('--fpad', type=int, default=50); ap.add_argument('--kflags', default='sc1'); ap.add_argument('--lflags', default='sc1'); ap.add_argument('--pstamps', action='store_true'); ap.add_argument('--gsep', type=int, default=3); ap.add_argument('--xsep', type=int, default=0); ap.add_argument('--ysep', type=int, default=0); ap.add_argument('--b32', type=int, default=0); ap.add_argument('--a1split', type=int, default=16); ap.add_argument('--warm', type=int, default=1, choices=[0, 1, 2, 3, 4]); ap.add_argument('--pflags', default=''); ap.add_argument('--pfd', type=int, default=2); ap.add_argument('--snake', type=int, default=1); ap.add_argument('--nearly', type=int, default=9); ap.add_argument('--y0end', type=int, default=2); ap.add_argument('--y2in', type=int, default=4); ap.add_argument('--wwin', type=int, default=6); ap.add_argument('--extra', default=''); ap.add_argument('--xflags', default=''); ap.add_argument('--xstep', type=int, default=1024); ap.add_argument('--dbg', action='store_true'); ap.add_argument('--spinend', type=int, default=0); ap.add_argument('--spin0', type=int, default=0); ap.add_argument('--spin1', type=int, default=0); ap.add_argument('--stall', type=int, default=0); ap.add_argument('--hvm', type=int, default=48); ap.add_argument('--hlg', type=int, default=8); ap.add_argument('--trace', type=int, default=-1); ap.add_argument('--tstep', type=int, default=8)
    o = ap.parse_args()
    o.skip = [x for x in o.skip.split(',') if x]
    if o.coop == 2 and o.kpat.count('K') == 9: o.kpat = '.........,.........,..K..K...K..,..K...K....'; o.fpad = 2; o.a1split = 4
    if o.wflags: o.wflags = ' ' + o.wflags
    if o.xflags: o.xflags = ' ' + o.xflags
    if o.pflags: o.pflags = ' ' + o.pflags
    if o.kflags: o.kflags = ' ' + o.kflags
    if o.lflags: o.lflags = ' ' + o.lflags
    if o.kxflags: o.kxflags = ' ' + o.kxflags
    if o.xlflags: o.xlflags = ' ' + o.xlflags
    if o.wmflags: o.wmflags = ' ' + o.wmflags
    if o.sflags: o.sflags = ' ' + o.sflags
    open(o.o, 'w').write(Gen(o).emit())
```

```python
import sys, struct, argparse
KN = "standalone__autoregressive_conv_wavernn__speech_kernel"
PN = "wprep_kernel"
fb = lambda f: struct.unpack('<I', struct.pack('<f', f))[0]

S1, S2, ARR, BUF = 2304, 4624, 36992, 73984
LDS_BYTES = 2 * BUF
STREAM = 560 * 1024

STAGES = [(('22', 0), ('22', 1)),
          (('23', 0), ('21', 0)), (('23', 1), ('21', 1)),
          (('12', 0), ('32', 0)), (('12', 1), ('32', 1)),
          (('13', 0), ('33', 0)), (('13', 1), ('33', 1)),
          (('11', 0), ('31', 0)), (('11', 1), ('31', 1))]
SET = {'22': 0, '23': 1, '21': 0, '12': 2, '32': 3, '13': 0, '33': 1, '11': 2, '31': 3}
FORK = {'22': None, '23': 0}
QOF = {0: 1, 1: 3, 2: 0, 3: 2}
PTYPE = ['A', 'B', 'B', 'C', 'C', 'D', 'D', 'E', 'E']
PARK0 = 16 << 20
def taps(pt): return [1, 2, 3] if pt == '11' else [0, 1, 2, 3]

GROUPS = []
_off = 0
for s, st in enumerate(STAGES):
    for a, (pt, dh) in enumerate(st):
        for kp in range(4):
            GROUPS.append((s, a, pt, dh, kp, _off)); _off += 2 * len(taps(pt))
assert _off == 560
GOFF = {(pt, dh, kp): off for (s, a, pt, dh, kp, off) in GROUPS}

def V(n, c=1): return [('v', n + i) for i in range(c)]
def A(n, c=1): return [('a', n + i) for i in range(c)]
def vr(n, c): return f"v[{n}:{n+c-1}]"
def ar(n, c): return f"a[{n}:{n+c-1}]"
class I:
    __slots__ = ('t', 'k', 'rd', 'wr', 'c', 'need', 'tag', 'pos', 'dl', 'seq', 'creads', 'sym')
    def __init__(s, t, k, rd=(), wr=(), need=None, tag=None, creads=(), sym=None):
        s.sym = sym
        s.t = t; s.k = k; s.rd = list(rd); s.wr = list(wr); s.need = need or []; s.tag = tag
        s.c = {'trans': 2, 'dsw': 2, 'dsw32': 2, 'salu': 0, 'vstore': 2, 'vstore4': 2}.get(k, 1); s.pos = None; s.dl = None; s.creads = list(creads)

WA = 1; RB = 10; WL = 12; XA = 13; XBASE = 15; SB = 0
RAW = 144; NRAW = 12; PERS = 192; TMP = 200; OUT = 208; EPI = 224; ACT = 240; STG = 16; PFA = 224; PFD = 225; PKA = 226; FLR = 240; VFO = 227; KA0 = 236; KB0 = 237; KPERS = list(range(228, 236))
def R(f, n, c=1): return [(f, n + i) for i in range(c)]
def rr_(f, n, c): return f"{f}[{n}:{n+c-1}]"
def accreg(st, t): return [('v', 16), ('v', 80), ('a', 0), ('a', 64)][st][0], [16, 80, 0, 64][st] + t * 4
def wreg(slot): return 'a', 128 + slot * 4
def xreg(c): return ('a', 224 + 4 * c) if c < 8 else ('v', 244 + 4 * (c - 8))
SX, SW, SO = 8, 12, 16
SWO = 20; SC1, SC2, SCL, SMASK = 25, 22, 23, 24
SFL = 4; SPS = 6
FLG0 = 15 << 20
SPK = 38
SST = 40

def gapcost(gap):
    t = 4; sawv = False; pg = False
    for i in gap:
        if i.k == 'mark': continue
        if i.k in ('valu', 'trans'): t = max(t, 8) + (8 if i.k == 'trans' else 4) + (4 if pg and t == 12 else 0); sawv = True
        pg = i.k == 'vstore' or 's36 offen' in i.t
        if i.k in ('valu', 'trans'): pass
        elif i.k == 'dsw': t += 24 + (8 if sawv else 0)
        elif i.k == 'vstore4': t += 24 + (8 if sawv else 0)
        elif i.k == 'dsw32': t += 12 + (8 if sawv else 0)
        elif i.k in ('vload', 'dsr', 'vstore'): t += 8 + (8 if sawv else 0)
        else: t += 4 * (1 + i.t.count('\n'))
    return max(t, 16)

class Gen:
    def __init__(g, opt):
        g.o = opt; g.out = []; g.tr = {}; g.lastdsw = -99; g.lastv = -99
    def mfmas(g):
        M = []; g.idx = {}
        for G, (s, a, pt, dh, kp, off) in enumerate(GROUPS):
            tp = taps(pt); st = SET[pt]
            first = (kp == 0 and dh == 0 and pt in FORK)
            for j in range(8):
                g.idx[(G, j)] = len(M)
                for hi, h in enumerate((0, 1) if j % 2 == 0 or not g.o.snake else (1, 0)):
                    order = list(enumerate(tp))
                    if hi == 1 and g.o.snake: order.reverse()
                    for n, (ki, k) in enumerate(order):
                        af, acc = accreg(st, j * 2 + h)
                        wf, w = wreg((G % 3) * 8 + h * len(tp) + ki)
                        xf, x = xreg(j + k)
                        if first and n == 0:
                            if FORK[pt] is None: cs, cr = '0', []
                            else:
                                cf, c = accreg(FORK[pt], j * 2 + h); cs, cr = rr_(cf, c, 4), R(cf, c, 4)
                        else: cs, cr = rr_(af, acc, 4), R(af, acc, 4)
                        M.append(I(f"v_mfma_f32_16x16x32_bf16 {rr_(af,acc,4)}, {rr_(wf,w,4)}, {rr_(xf,x,4)}, {cs}", 'mfma',
                                   rd=R(wf, w, 4) + R(xf, x, 4) + cr, wr=R(af, acc, 4), creads=cr, sym=('mfma', (pt, dh, kp, k, j, h)),
                                   need=[((wf, w), ('W', G, h, k)), ((xf, x), ('X', G, j + k))]))
        g.idx[(len(GROUPS), 0)] = len(M)
        for s in range(18): M[g.idx[(4 * s, 0)]].t = f"L_h{s}:\n" + M[g.idx[(4 * s, 0)]].t
        return M
    def P(g, s, gr, j=0): return g.idx[(s * 8 + gr, j)]
    def wloads(g, G):
        s, a, pt, dh, kp, off = GROUPS[G]; tp = taps(pt); L = []
        for h in range(2):
            for ki, k in enumerate(tp):
                f = off + h * len(tp) + ki
                if f % 8 == 0 and f:
                    L.append(I(f"s_add_u32 s{SWO}, s{SWO}, 8192", 'salu', rd=[('s', SWO)], wr=[('s', SWO), ('s', 'scc')], tag=(('s', 'scc'), ('W', f))))
                    L.append(I(f"s_addc_u32 s{SWO+1}, s{SWO+1}, 0", 'salu', rd=[('s', SWO), ('s', 'scc')], wr=[('s', SWO), ('s', 'scc')], need=[(('s', 'scc'), ('W', f))]))
                wf, w = wreg((G % 3) * 8 + h * len(tp) + ki)
                L.append(I(f"global_load_dwordx4 {rr_(wf,w,4)}, v{WL}, s[{SWO}:{SWO+1}] offset:{(f%8)*1024-4096}{g.o.wflags}", 'vload',
                           rd=V(WL) + [('s', SWO)], wr=R(wf, w, 4), tag=((wf, w), ('W', G, h, k))))
        return L
    def xread(g, G, c):
        s, a, pt, dh, kp, off = GROUPS[G]
        xf, x = xreg(c); imm = 2 * kp * S2 + (c % 8) * 288 + (c // 8) * 32
        return I(f"ds_read_b128 {rr_(xf,x,4)}, v{RB+a} offset:{imm}", 'dsr', rd=V(RB + a), wr=R(xf, x, 4), tag=((xf, x), ('X', G, c)),
                 need=[(('v', RB + a), ('RB', s))])
    def spread(g, L, p0, p1, dl=None):
        tot = sum(i.c for i in L); acc = 0
        for i in L:
            i.pos = p0 + (p1 - p0) * acc / max(tot, 1); acc += i.c
            i.dl = dl
        return L
    def account(g, L):
        for i in L:
            if i.k == 'pad': continue
            p = int(i.pos)
            for q in range(-3, 4):
                if 0 <= p + q < len(g.load): g.load[p + q] += i.c / 7.0
    def fill(g, L, p0, p1, dl=None):
        p0 = int(p0 + 0.999); p1 = int(p1)
        tot = sum(i.c for i in L); lo, hi = 0.0, 20.0
        for _ in range(50):
            lam = (lo + hi) / 2
            if sum(max(0.02, lam - g.load[m]) for m in range(p0, p1)) > tot: hi = lam
            else: lo = lam
        room = [max(0.02, hi - g.load[m]) for m in range(p0, p1)]
        m = 0; acc = 0; base = 0.0
        for i in L:
            while m < len(room) - 1 and base + room[m] <= acc: base += room[m]; m += 1
            i.pos = p0 + m + min(0.99, (acc - base) / room[m]); i.dl = dl; acc += i.c
        for k, r in enumerate(room): g.load[p0 + k] += r
        g.levels.append((p0, p1, round(hi, 2)))
        return L
    def production(g):
        rows = []
        progs = []
        def newrow(s, ai, imm):
            rows.append((s, ai, imm + STAGES[s][0][1] * 256)); return len(rows) - 1
        rr = lambda n: RAW + (n % NRAW) * 4
        tctr = [0]
        def tmp():
            t = TMP + tctr[0] % 8; tctr[0] += 1; return t
        octr = [0]
        def lo(dst, n, i): return I(f"v_lshlrev_b32 v{dst}, 16, v{rr(n)+i}", 'valu', rd=V(rr(n)+i), wr=V(dst), need=[(('v', rr(n)), ('R', n))], tag=('use', n))
        def hi(dst, n, i): return I(f"v_and_b32 v{dst}, s{SMASK}, v{rr(n)+i}", 'valu', rd=V(rr(n)+i), wr=V(dst), need=[(('v', rr(n)), ('R', n))], tag=('use', n))
        def sub(d, a, b): return I(f"v_sub_f32 v{d}, v{a}, v{b}", 'valu', rd=V(a) + V(b), wr=V(d))
        def cvt(d, a, b): return I(f"v_cvt_pk_bf16_f32 v{d}, v{a}, v{b}", 'valu', rd=V(a) + V(b), wr=V(d))
        def wr(s, i, arr, src): return I(f"ds_write_b128 v{WA+i}, {vr(src,4)} offset:{arr*ARR}", 'dsw', rd=V(WA + i) + V(src, 4), need=[(('v', WA + i), ('WA', s))])
        def krow(base, const, imm):
            rows.append(('k', base, const, imm)); return len(rows) - 1
        def toggles(s):
            op = 'v_add_u32' if s % 2 else 'v_subrev_u32'
            return [I(f"{op} v{WA+i}, {BUF}, v{WA+i}", 'valu', rd=V(WA + i), wr=V(WA + i), tag=(('v', WA + i), ('WA', s))) for i in range(9)]
        P8 = list(range(PERS, PERS + 8))
        def init2(na, nb, PP=P8):
            L = []
            for d in range(4):
                t0, t1 = tmp(), tmp(); p0, p1 = PP[2*d], PP[2*d+1]
                L += [lo(p0, na, d), hi(p1, na, d), lo(t0, nb, d), hi(t1, nb, d), sub(p0, p0, t0), sub(p1, p1, t1)]
            return L
        def corner(mp, mm, np_, nm, o0, o1, PP=P8):
            L = []
            for d in range(4):
                a, b, c, e = [tmp() for _ in range(4)]
                p0, p1 = PP[2*d], PP[2*d+1]
                L += [lo(a, mp, d), hi(b, mp, d), lo(c, mm, d), hi(e, mm, d), sub(a, a, c), sub(b, b, e),
                      sub(c, p0, a), sub(e, p1, b), lo(p0, np_, d), hi(p1, np_, d), cvt(o0 + d, c, e),
                      lo(c, nm, d), hi(e, nm, d), sub(p0, p0, c), sub(p1, p1, e), sub(a, p0, a), sub(b, p1, b), cvt(o1 + d, a, b)]
            return L
        def steps(L, s, seq):
            pend = None
            for ty, i in seq:
                if ty == 'K' and i == 5 and g.o.coop == 3:
                    sc = [('s', SPS), ('s', 'scc')]
                    if pend is not None: L += pend; pend = None
                    L.append(I(f"s_add_u32 s{SPS}, s{SPS}, {2*73728-8192}\ns_addc_u32 s{SPS+1}, s{SPS+1}, 0", 'salu', rd=sc, wr=sc, tag=(('s', 'scc'), 'park')))
                KB, kd = (KB0, 0) if g.o.coop == 1 else (KA0, -1024)
                if g.o.coop == 3 and ty == 'K':
                    if i < 5: kd = 1024
                    run = i // 5; i = i % 5
                else: run = 0
                if ty == 'P':
                    for arr in range(2):
                        rows.append(('park', s - 5, 2 * i + arr)); n = len(rows) - 1
                        w = wr(s, i, arr, rr(n)); w.need.append((('v', rr(n)), ('R', n))); w.tag = ('use', n)
                        pad = I("", 'pad'); pad.c = 6
                        L += [w, pad]
                        if pend is not None: L += pend; pend = None
                    continue
                if ty == 'K' and i == 0:
                    nb, na = krow(KA0, 0, 2048), krow(KB, 2048 + kd, 0); L += init2(na, nb, KPERS)
                stepstart = len(L)
                o0 = OUT + (octr[0] % 2) * 8; o1 = o0 + 4; octr[0] += 1
                if ty == 'B':
                    n2, n3, n4 = newrow(s, i, 3072), newrow(s, i + 1, 0), newrow(s, i + 1, 1024)
                    for d in range(4):
                        a, b, c, e, f, h = [tmp() for _ in range(6)]
                        L += [lo(a, n3, d), hi(b, n3, d), lo(c, n4, d), hi(e, n4, d), lo(f, n2, d), hi(h, n2, d),
                              sub(c, c, a), sub(e, e, b), sub(f, f, a), sub(h, h, b), cvt(o0 + d, c, e), cvt(o1 + d, f, h)]
                elif ty == 'C':
                    n3, n5 = newrow(s, i + 1, 0), newrow(s, i + 1, 2048)
                    for d in range(4):
                        a, b, c, e = [tmp() for _ in range(4)]
                        p0, p1 = PERS + 2*d, PERS + 2*d + 1
                        L += [lo(a, n3, d), hi(b, n3, d), sub(c, p0, a), sub(e, p1, b), lo(p0, n5, d), hi(p1, n5, d), cvt(o0 + d, c, e),
                              sub(a, p0, a), sub(b, p1, b), cvt(o1 + d, a, b)]
                elif ty == 'D':
                    n3, n4, n5, n6 = [newrow(s, i + 1, 1024 * q) for q in range(4)]
                    L += corner(n4, n3, n6, n5, o0, o1)
                elif ty == 'E':
                    n2 = newrow(s, i, 3072); n3, n4, n5 = [newrow(s, i + 1, 1024 * q) for q in range(3)]
                    L += corner(n2, n3, n4, n5, o0, o1)
                elif ty == 'K':
                    c0 = 4096 * (i + 1)
                    mp, mm, nm, np_ = krow(KB, c0 + kd, 0), krow(KA0, c0, 0), krow(KA0, c0, 2048), krow(KB, c0 + 2048 + kd, 0)
                    L += corner(mp, mm, np_, nm, o0, o1, KPERS)
                if ty == 'K': w0, w1 = g.parkop(2 * i, o0, True, run), g.parkop(2 * i + 1, o1, True, run)
                else: w0, w1 = [wr(s, i, 0, o0)], [wr(s, i, 1, o1)]
                if pend is not None:
                    m = stepstart + (len(L) - stepstart) // 2; L[m:m] = pend
                L += w0; pend = w1
            if pend is not None:
                pad = I("", 'pad'); pad.c = 10
                L += [pad] + pend
        firstP = {}; kctr = [0]
        for s in range(1, 9):
            ty = PTYPE[s]; L = []
            PS = {0: 99, 1: 5, 2: 7, 3: 5}[g.o.coop]
            if s >= PS: ty = 'P'
            if s == PS or (g.o.coop == 3 and s == 7):
                pad = I("", 'pad'); pad.c = g.o.fpad; L.append(pad)
                L += g.flagcheck(0 if s == PS else 1); firstP[0 if s == PS else 2] = (len(progs), len(L) - 1)
                pad = I("", 'pad'); pad.c = 30; L.append(pad)
            L += toggles(s)
            if ty == 'C':
                n1 = newrow(s, 0, 2048)
                for d in range(4): L += [lo(PERS + 2*d, n1, d), hi(PERS + 2*d + 1, n1, d)]
            elif ty == 'D': nb, na = newrow(s, 0, 2048), newrow(s, 0, 3072); L += init2(na, nb)
            elif ty == 'E': na, nb = newrow(s, 0, 1024), newrow(s, 0, 2048); L += init2(na, nb)
            if ty == 'P' and g.o.coop < 3:
                for i in range(9):
                    for arr in range(2):
                        rows.append(('park', s - PS, 2 * i + arr)); n = len(rows) - 1
                        w = wr(s, i, arr, rr(n)); w.need.append((('v', rr(n)), ('R', n))); w.tag = ('use', n)
                        pad = I("", 'pad'); pad.c = 4
                        L += [w, pad]
            else:
                pat = g.o.kpat.split(',')[s - 1] if g.o.coop and s <= len(g.o.kpat.split(',')) else '.' * 9
                seq = []; mi_ = 0
                for ch in pat:
                    if ch == 'K': seq.append(('K', kctr[0])); kctr[0] += 1
                    else: seq.append((ty, mi_)); mi_ += 1
                assert mi_ == 9
                steps(L, s, seq)
            progs.append(L)
        last = {}
        for ps, L in enumerate(progs):
            for k, op in enumerate(L):
                if op.tag and op.tag[0] == 'use': last[op.tag[1]] = (ps, k); op.tag = None
        cur = {}; nxt = [0]
        def load(n):
            if rows[n][0] == 'park':
                L = g.parkop(rows[n][2], rr(n), False, rows[n][1]); L[-1].tag = (('v', rr(n)), ('R', n)); return L
            if rows[n][0] == 'k': _, base, const, imm = rows[n]
            else: base, const, imm = XBASE, 4096 * rows[n][1], rows[n][2]
            L = []; hit = [r for r in (XA, XA + 1) if cur.get(r) == (base, const)]
            if hit: r = hit[0]
            else:
                r = XA + nxt[0]
                L.append(I(f"v_add_u32 v{r}, {const}, v{base}", 'valu', rd=V(base), wr=V(r))); cur[r] = (base, const)
            nxt[0] = 1 - (r - XA)
            L.append(I(f"buffer_load_dwordx4 {vr(rr(n),4)}, v{r}, s[{SX}:{SX+3}], 0 offen offset:{imm}" + (g.o.kxflags + " ;k" if rows[n][0] == 'k' else (g.o.xlflags if rows[n][0] <= g.o.xlmax else "")), 'vload', rd=V(r), wr=V(rr(n), 4), tag=(('v', rr(n)), ('R', n))))
            return L
        head = []
        for n in range(NRAW): head += load(n)
        ins = {}
        prev = (0, -1)
        for n in range(NRAW, len(rows)):
            at = max(last[n - NRAW], prev)
            if rows[n][0] == 'park' and rows[n][1] in firstP: at = max(at, firstP[rows[n][1]])
            prev = at
            ins.setdefault(at, []).extend(load(n))
        res = []
        for ps, L in enumerate(progs):
            R = []
            for k, op in enumerate(L):
                R.append(op); R += ins.get((ps, k), [])
            res.append(R)
        return head, res
    def parkop(g, slot, reg, store, buf=0):
        L = []; B = SPS if store else SPK
        sc = [('s', B), ('s', 'scc')]
        if slot % 8 == 0 and slot:
            L.append(I(f"s_add_u32 s{B}, s{B}, 8192\ns_addc_u32 s{B+1}, s{B+1}, 0", 'salu', rd=sc, wr=sc, tag=(('s', 'scc'), 'park')))
        if slot == 0 and not store:
            L.append(I(f"s_add_u32 s{B}, s{SW}, {buf*73728+4096}\ns_addc_u32 s{B+1}, s{SW+1}, 0", 'salu', rd=sc, wr=sc, tag=(('s', 'scc'), 'park')))
        off = (slot % 8) * 1024 - 4096
        if store: L.append(I(f"global_store_dwordx4 v{PKA}, {vr(reg,4)}, s[{B}:{B+1}] offset:{off}{g.o.kflags}", 'vstore4', rd=V(PKA) + V(reg, 4) + [('s', B)], wr=[('m', 'parkord')], tag=(('m', 'parkord', buf), slot)))
        else: L.append(I(f"global_load_dwordx4 {vr(reg,4)}, v{PKA}, s[{B}:{B+1}] offset:{off}{g.o.lflags}", 'vload', rd=V(PKA) + [('s', B), ('m', 'flagok')], wr=V(reg, 4), need=[(('m', 'ok', buf // 2 if g.o.coop == 3 else 0), 1)]))
        return L
    def flagload(g, n): return f"v_mov_b32 v{FLR}, 64\nglobal_load_dwordx4 {vr(FLR,4)}, v{FLR}, s[{SFL}:{SFL+1}] offset:{16*n} sc1"
    def flagcheck(g, n):
        red = f"v_and_b32 v{FLR}, v{FLR}, v{FLR+1}\nv_and_b32 v{FLR+2}, v{FLR+2}, v{FLR+3}\nv_and_b32 v{FLR}, v{FLR}, v{FLR+2}\ns_nop 1\nv_readfirstlane_b32 s35, v{FLR}\ns_nop 3\ns_cmp_eq_u32 s35, 64"
        t = f"{red}\ns_cbranch_scc1 L_flok{n}\ns_mov_b32 s33, 0\nL_flspin{n}:\ns_add_u32 s33, s33, 1\ns_cmp_gt_u32 s33, 0x40000\ns_cbranch_scc1 L_flok{n}\ns_sleep 8\n{g.flagload(n)}\ns_waitcnt vmcnt(0)\n{red}\ns_cbranch_scc0 L_flspin{n}\nL_flok{n}:"
        i = I(t, 'valu', rd=V(FLR, 4) + [('s', 'scc')], wr=V(FLR, 4) + [('s', 'scc'), ('m', 'flagok')], tag=(('s', 'scc'), 'flag'), need=[(('m', 'fl'), n)])
        j = I("", 'mark', rd=[('m', 'flagok')], wr=[('m', 'flagok')], tag=(('m', 'ok', n), 1)); j.c = 0
        return [i, j]
    def acc_copy(g, dst, src, tiles):
        L = []
        for t in tiles:
            for r in range(4):
                d = accreg(dst, t)[1] + r; s_ = accreg(src, t)[1] + r
                L.append(I(f"v_accvgpr_write_b32 a{d}, v{s_}", 'valu', rd=V(s_), wr=A(d), sym=('lin', ('a', d), [(('v', s_), 1)])))
        return L
    def acc_sub(g, dst, src, tiles):
        L = []
        for t in tiles:
            for r in range(4):
                d = accreg(dst, t)[1] + r; s_ = accreg(src, t)[1] + r
                L.append(I(f"v_sub_f32 v{d}, v{d}, v{s_}", 'valu', rd=V(d) + V(s_), wr=V(d), sym=('lin', ('v', d), [(('v', d), 1), (('v', s_), -1)])))
        return L
    def acc_addA(g, dst, vsrc, asrc, tiles):
        L = []
        for t in tiles:
            for r in range(4):
                s_ = accreg(asrc, t)[1] + r
                L.append(I(f"v_accvgpr_read_b32 v{ACT+r}, a{s_}", 'valu', rd=A(s_), wr=V(ACT + r), sym=('lin', ('v', ACT + r), [(('a', s_), 1)]), tag=(('m', 'fl'), None)))
            for r in range(4):
                d = accreg(dst, t)[1] + r; v_ = accreg(vsrc, t)[1] + r
                L.append(I(f"v_add_f32 v{d}, v{v_}, v{ACT+r}", 'valu', rd=V(v_) + V(ACT + r), wr=V(d), sym=('lin', ('v', d), [(('v', v_), 1), (('v', ACT + r), 1)])))
        return L
    def epi(g, st, j, F):
        L = []; q = QOF[st]; Gq = F + 4
        af, f = accreg(st, 2 * j); gg = f + 4
        R4 = range(4)
        if af == 'a':
            L += [I(f"v_accvgpr_read_b32 v{F+r}, a{f+r}", 'valu', rd=A(f+r), wr=V(F+r), sym=('use', ('a', f + r), (q, j, 0))) for r in R4]
            L += [I(f"v_accvgpr_read_b32 v{Gq+r}, a{gg+r}", 'valu', rd=A(gg+r), wr=V(Gq+r), sym=('use', ('a', gg + r), (q, j, 1))) for r in R4]
            if not g.o.fold:
                L += [I(f"v_mul_f32 v{F+r}, s{SC1}, v{F+r}", 'valu', rd=V(F+r), wr=V(F+r)) for r in R4]
                L += [I(f"v_mul_f32 v{Gq+r}, s{SC2}, v{Gq+r}", 'valu', rd=V(Gq+r), wr=V(Gq+r)) for r in R4]
        elif not g.o.fold:
            L += [I(f"v_mul_f32 v{F+r}, s{SC1}, v{f+r}", 'valu', rd=V(f+r), wr=V(F+r), sym=('use', ('v', f + r), (q, j, 0))) for r in R4]
            L += [I(f"v_mul_f32 v{Gq+r}, s{SC2}, v{gg+r}", 'valu', rd=V(gg+r), wr=V(Gq+r), sym=('use', ('v', gg + r), (q, j, 1))) for r in R4]
        u = g.o.fold and af == 'v'
        if u: assert F == f
        L += [I(f"v_med3_f32 v{F+r}, v{F+r}, -s{SCL}, s{SCL}", 'valu', rd=V(F+r), wr=V(F+r), sym=('use', ('v', f + r), (q, j, 0)) if u else None) for r in R4]
        L += [I(f"v_exp_f32 v{Gq+r}, v{Gq+r}", 'trans', rd=V(Gq+r), wr=V(Gq+r), sym=('use', ('v', gg + r), (q, j, 1)) if u else None) for r in R4]
        L += [I(f"v_exp_f32 v{F+r}, v{F+r}", 'trans', rd=V(F+r), wr=V(F+r)) for r in R4]
        L += [I(f"v_add_f32 v{Gq+r}, 1.0, v{Gq+r}", 'valu', rd=V(Gq+r), wr=V(Gq+r)) for r in R4]
        L += [I(f"v_fmac_f32 v{Gq+r}, v{F+r}, v{Gq+r}", 'valu', rd=V(Gq+r) + V(F+r), wr=V(Gq+r)) for r in R4]
        L += [I(f"v_rcp_f32 v{Gq+r}, v{Gq+r}", 'trans', rd=V(Gq+r), wr=V(Gq+r)) for r in R4]
        L += [I(f"v_fma_f32 v{F+r}, v{F+r}, v{Gq+r}, -v{Gq+r}", 'valu', rd=V(Gq+r) + V(F+r), wr=V(F+r)) for r in R4]
        L += [I(f"v_add_u32 v{Gq}, {4096*j}, v{SB}", 'valu', rd=V(SB), wr=V(Gq)),
              I(f"v_cvt_pk_bf16_f32 v{F}, v{F}, v{F+1}", 'valu', rd=V(F, 2), wr=V(F)),
              I(f"v_cvt_pk_bf16_f32 v{F+1}, v{F+2}, v{F+3}", 'valu', rd=V(F+2, 2), wr=V(F+1)),
              I(f"buffer_store_dwordx2 {vr(F,2)}, v{Gq}, s[{SO}:{SO+3}], 0 offen offset:{q*1024}{g.o.sflags}", 'vstore', rd=V(F, 2) + V(Gq))]
        return L
    def stamp(g, n):
        if not g.o.stamps or g.o.trace >= 0: return []
        return [I(f"s_memtime s[{SST+4*n}:{SST+4*n+1}]", 'salu'), I(f"s_memrealtime s[{SST+4*n+2}:{SST+4*n+3}]", 'salu')]
    def barrier(g, n):
        return g.stamp(n) + [I("s_waitcnt lgkmcnt(0)", 'lgkm0'), I("s_barrier", 'salu')]
    def body(g):
        M = g.mfmas(); NG = len(GROUPS); F = []
        head, prods = g.production()
        pre = []
        def stg(i, dh): return (16 if dh == 0 else 80) + 4 * i
        def xl(dh):
            L = []
            for i in range(9):
                r = XA + i % 2
                L.append(I(f"v_add_u32 v{r}, {4096*(i+1)}, v{XBASE}", 'valu', rd=V(XBASE), wr=V(r)))
                L.append(I(f"buffer_load_dwordx4 {vr(stg(i,dh),4)}, v{r}, s[{SX}:{SX+3}], 0 offen offset:{dh*256}{g.o.xlflags}", 'vload', rd=V(r), wr=V(stg(i, dh), 4)))
            return L
        def xw(dh): return [I(f"ds_write_b128 v{WA+i}, {vr(stg(i,dh),4)} offset:{dh*ARR}", 'dsw', rd=V(WA + i) + V(stg(i, dh), 4), need=[(('v', WA + i), ('WA', 0))]) for i in range(9)]
        pre += xl(0) + g.wloads(0)
        if g.o.pf: pre.append(I(f"buffer_load_dword v{PFD}, v{PFA}, s[28:31], 0 offen", 'vload', rd=V(PFA), wr=V(PFD)))
        pre += xl(1) + g.wloads(1)
        pre.append(I(g.late_setup, 'valu'))
        pre += xw(0)
        pre += g.barrier(1)
        if g.o.spin1: pre.append(I(g.spin(g.o.spin1, 'L_sp1'), 'lgkm0'))
        pre += [g.xread(0, c) for c in range(7)]
        F += g.spread(head, 4, 90)
        F += g.spread(xw(1), 56, 130, dl=g.P(0, 2, 3))
        B = [I("s_waitcnt lgkmcnt(0)", 'lgkm0'), I("s_barrier", 'salu')]
        for i in B: i.pos = g.P(0, 2, 6) + 0.2; i.c = 0; i.dl = g.P(0, 2, 6) + 1
        F += B
        for G in range(2, NG):
            F += g.spread(g.wloads(G), g.idx[(G - 2, 0)] + 1, (g.idx[(G - 2, g.o.wwin)] if g.o.wwin < 8 else g.idx[(G - 1, 0)]) - 2, dl=g.idx[(G - 1, 0)])
        for G in range(NG):
            s = GROUPS[G][0]; used = sorted({j + k for j in range(8) for k in taps(GROUPS[G][2])})
            lastg = (G % 8 == 7)
            for c in used:
                if c >= 7:
                    op = g.xread(G, c)
                    op.pos = g.idx[(G, 0)] + 2 * (c - 7) + 0.5 if lastg else g.idx[(G, c - 7)] + 2.5
                    op.dl = g.idx[(G, c - 3)] - 10 if not lastg else g.idx[(G, 1)] + 2; F.append(op)
                elif G > 0:
                    op = g.xread(G, c)
                    p = g.idx[(G - 1, c + 1)] + 4.5
                    if G % 8 == 0: p = max(p, g.idx[(G - 1, 2)] + 1.5 + 2 * c)
                    op.pos = p; op.dl = max(p + 1, g.idx[(G, max(0, c - 3))] - 10); F.append(op)
            if lastg and s < 8:
                L = []
                for a in range(2):
                    op = 'v_add_u32' if (s + 1) % 2 else 'v_subrev_u32'
                    L.append(I(f"{op} v{RB+a}, {BUF}, v{RB+a}", 'valu', rd=V(RB + a), wr=V(RB + a), tag=(('v', RB + a), ('RB', s + 1))))
                L[0].pos = g.idx[(G, 1)] + 4.1; L[1].pos = g.idx[(G, 1)] + 5.1
                B = g.barrier(s + 2)
                for i in B: i.pos = g.idx[(G, 2)] + 0.2; i.c = 0
                for i in L + B: i.dl = g.idx[(G, 2)] + 1
                F += L + B
        if g.o.pf:
            D = g.o.pfd
            for n in range(1, 18 - D):
                a = I(f"s_mov_b32 s36, L_h{n+D}-L_pc", 'salu', wr=[('s', 36)])
                a2 = I(f"s_mov_b32 s30, {'L_h%d+128' % (n+D+1) if n + D + 1 < 18 else 'L_end'}-L_pc", 'salu', wr=[('s', 30)])
                b = I(f"buffer_load_dword v{PFD}, v{PFA}, s[28:31], s36 offen", 'vload', rd=V(PFA) + [('s', 36), ('s', 30)], wr=V(PFD))
                a.pos = g.idx[(4 * n, 6)] + 2; a2.pos = a.pos + 1; b.pos = a.pos + 2; F += [a, a2, b]
                a.tag = (('s', 36), ('C', n)); b.need = [(('s', 36), ('C', n))]
        if g.o.coop:
            if g.o.coop == 1: FL = [(0, 17, g.P(3, g.o.fbar), True, g.P(3, 7, 2) + g.o.fload)]
            elif g.o.coop == 2: FL = [(0, 9, g.P(4, 7, 2), False, g.P(5, 5))]
            else: FL = [(0, 9, g.P(g.o.fb1 // 8, g.o.fb1 % 8, 2), g.o.fb1 % 8 != 7, g.P(3, 5, 4)), (1, 9, g.P(g.o.fb2 // 8, g.o.fb2 % 8, 2), g.o.fb2 % 8 != 7, g.P(5, 5, 4))]
            for run, lastslot, pb, own, pl in FL:
                B = [I("s_nop 0", 'salu', rd=[('m', 'park'), ('m', 'parkord')], need=[(('m', 'parkord', run), lastslot)])]
                if own: B.append(I("s_barrier", 'salu'))
                for i in B: i.pos = pb + 0.1; i.c = 0; i.dl = pb + 1
                fs = I(f"global_store_dword v{VFO}, v{VFO}, s[{SFL}:{SFL+1}] offset:{16*run} sc1", 'vstore', rd=V(VFO)); fs.pos = pb + 1.2
                fl = I(g.flagload(run), 'vload', rd=V(FLR), wr=V(FLR, 4), tag=(('m', 'fl'), run)); fl.pos = pl
                F += B + [fs, fl]
        if g.o.extra:
            kind, n = g.o.extra[0], int(g.o.extra[1:])
            for s in (1, 2):
                L = []
                for q in range(n):
                    src = 244 + (q * 5) % 12; d = EPI + 4 + q % 8
                    if kind == 'v': L.append(I([f"v_lshlrev_b32 v{d}, 16, v{src}", f"v_and_b32 v{d}, s{SMASK}, v{src}", f"v_sub_f32 v{d}, v{EPI+4+(q+6)%8}, v{EPI+4+(q+7)%8}"][q % 3], 'valu'))
                    if kind == 'a': L.append(I(f"v_accvgpr_read_b32 v{d}, a{(q*7)%128}", 'valu'))
                    if kind == 'd': L.append(I(f"ds_read_b128 v[{EPI+4+4*(q%2)}:{EPI+7+4*(q%2)}], v{RB} offset:{(q*288)%30000}", 'dsr', rd=V(RB)))
                    if kind == 'g': L.append(I(f"buffer_load_dwordx4 v[{EPI+4+4*(q%2)}:{EPI+7+4*(q%2)}], v{WL}, s[{SW}:{SW+3}], s37 offen offset:{(q%4)*1024}{g.o.xflags}\ns_add_u32 s37, s37, {g.o.xstep}", 'vload'))
                F += g.spread(L, g.P(s, 0) - 40, g.P(s, 7))
        g.load = [0.0] * (len(M) + 8); g.levels = []
        g.account(F)
        def SP(*a, **k):
            L = g.spread(*a, **k); g.account(L); return L
        PP = lambda s, gr, j: g.P(s, gr, j) if j < 8 else g.P(s + (gr + 1) // 8, (gr + 1) % 8, j - 8)
        for j in range(8):
            F += SP(g.acc_copy(2, 0, [2 * j, 2 * j + 1]), PP(2, 7, j + 1) + 6, PP(2, 7, j + 2) + 6, dl=g.P(3, 0, j) - 3)
        F += SP(g.acc_copy(3, 0, range(16)), g.P(3, 0, 2), g.P(3, 3), dl=g.P(3, 4) - 4)
        F += SP(g.acc_sub(1, 0, range(16)), g.P(3, 3), g.P(3, 7), dl=g.P(4, 0))
        a0, a1 = g.P(4, 3, 2), g.P(5, 0, 5)
        for j in range(8):
            F += SP(g.acc_addA(0, 1, 2, [2 * j, 2 * j + 1]), a0 + (a1 - a0) * j / 8, a0 + (a1 - a0) * (j + 1) / 8, dl=g.P(5, 0, j) - 4)
        F += SP(g.acc_addA(1, 1, 3, range(0, g.o.a1split)), g.P(5, 0, 6), g.P(5, 4) - 10, dl=g.P(5, 4) - 4)
        if g.o.a1split < 16: F += SP(g.acc_addA(1, 1, 3, range(g.o.a1split, 16)), g.P(6, 0) + 8, g.P(6, 4) - 10, dl=g.P(6, 4) - 4)
        nE = g.o.nearly
        tl = [(0, j) for j in range(8)] + [(1, j) for j in range(8)]
        def inplace(st, j): return accreg(st, 2 * j)[1]
        if not g.o.coop: F += SP(sum((g.epi(st, j, inplace(st, j)) for st, j in tl[:nE]), []), g.P(6, 3, 2), g.P(7, 7, 2), dl=g.P(8, 0))
        for s in range(8):
            p0 = g.P(s, 0) + 134 if s == 0 else g.P(s - 1, 7, 2) + 1; p1 = g.P(s, 7, 1)
            if s >= {0: 99, 1: 4, 2: 6, 3: g.o.spfrom}[g.o.coop]: F += SP(prods[s], p0, p1, dl=g.P(s, 7, 2))
            else: F += g.fill(prods[s], p0, p1, dl=g.P(s, 7, 2))
        if g.o.coop:
            F += g.fill(sum((g.epi(0, j, inplace(0, j)) for j in range(8)), []), g.P(6, 3, 2), g.P(7, 1, 0), dl=g.P(8, 0))
            F += g.fill(sum((g.epi(1, j, inplace(1, j)) for j in range(8)), []), g.P(7, 1, 0), g.P(8, 3, 2), dl=g.P(8, 4))
        else: F += g.fill(sum((g.epi(st, j, inplace(st, j)) for st, j in tl[nE:]), []), g.P(7, 7, 2), g.P(8, 3, 2), dl=g.P(8, 4))
        F += g.fill(sum((g.epi(2, j, inplace(0, j)) for j in range(8)), []), g.P(8, 3, 2), g.P(8, 7, g.o.y0end), dl=len(M))
        tail = g.stamp(10)
        for j in range(8):
            L = g.epi(3, j, inplace(1, j))
            if j < g.o.y2in: F += g.spread(L, g.P(8, 7, g.o.y0end) + (len(M) - g.P(8, 7, g.o.y0end)) * j / g.o.y2in, g.P(8, 7, g.o.y0end) + (len(M) - g.P(8, 7, g.o.y0end)) * (j + 1) / g.o.y2in)
            else: tail += L
        sys.stderr.write(f"levels {g.levels}\n")
        F = [i for i in F if i.k != 'pad']
        if g.o.trace >= 0:
            for n in range(49):
                g.tr[g.o.trace + n * g.o.tstep] = n
        sk = g.o.skip
        if 'valu' in sk: F = [i for i in F if i.k not in ('valu', 'trans') or i.t.startswith('v_add_u32') or i.t.startswith('v_subrev_u32')]
        if 'wld' in sk: F = [i for i in F if not (i.k == 'vload' and 'global_load' in i.t)]
        if 'xld' in sk: F = [i for i in F if not (i.k == 'vload' and f's[{SX}:' in i.t)]
        if 'dsr' in sk: F = [i for i in F if i.k != 'dsr']
        if 'dsw' in sk: F = [i for i in F if i.k != 'dsw']
        if 'st' in sk: F = [i for i in F if i.k != 'vstore']
        if 'kst' in sk: F = [i for i in F if i.k != 'vstore4']
        if 'kld' in sk: F = [i for i in F if not i.t.endswith(';k')]
        if 'bar' in sk: F = [i for i in F if i.t != 's_barrier']
        for n, i in enumerate(F): i.seq = n
        F.sort(key=lambda i: (i.pos, i.seq))
        MEM = ('vload', 'dsr', 'dsw', 'dsw32', 'vstore', 'vstore4')
        def indep(x, skipped):
            xr, xw = set(x.rd), set(x.wr)
            for y in skipped:
                if y.k == 'lgkm0' or y.t == 's_barrier' or x.k == 'lgkm0' or x.t == 's_barrier': return False
                if xr & set(y.wr) or xw & set(y.rd) or xw & set(y.wr): return False
            return True
        gaps = []; Q = list(F); late = 0
        for mi, m in enumerate(M):
            gap = []
            if mi in g.tr and g.tr[mi] < 48: gap.append(I(f"s_memtime s[{92+2*(g.tr[mi]%2)}:{93+2*(g.tr[mi]%2)}]", 'salu'))
            if mi - 1 in g.tr and g.tr[mi - 1] > 0: gap.append(I(f"s_mov_b32 s{SST+g.tr[mi-1]-1}, s{92+2*((g.tr[mi-1]-1)%2)}", 'salu'))
            nready = 0; backlog = 0; force = 0
            while nready < len(Q) and Q[nready].pos < mi + 1:
                backlog += Q[nready].c
                if Q[nready].dl is not None and Q[nready].dl <= mi + 1: force = nready + 1
                nready += 1
            lim = 16 + (4 if backlog > g.o.backlog else 0) + (4 if backlog > 3 * g.o.backlog else 0)
            W = min(nready, g.o.look)
            taken = set()
            def pick(pred):
                sk = []
                for k in range(W):
                    if k in taken: continue
                    if pred(Q[k]) and indep(Q[k], sk): return k
                    sk.append(Q[k])
                return None
            while True:
                k = pick(lambda x: x.k in ('salu', 'lgkm0', 'mark'))
                if k is None or (gap and Q[k].k == 'salu' and Q[k].t != 's_barrier' and not Q[k].t.startswith('s_mem')): break
                gap.append(Q[k]); taken.add(k)
            vok = mi - g.lastv >= g.o.gsep
            k = pick(lambda x: x.k in MEM and (vok or x.k not in ('vload', 'vstore', 'vstore4')) and (x.k != 'dsw' or mi - g.lastdsw >= g.o.dswsep))
            if gap and (backlog >= 4 or (k is not None and Q[k].k == 'dsw32')): k = None
            if k is not None and (Q[k].k != 'dsw' or mi - g.lastdsw >= g.o.dswsep):
                gap.append(Q[k]); taken.add(k)
                if Q[k].k == 'dsw': g.lastdsw = mi
                if Q[k].k in ('vload', 'vstore', 'vstore4'): g.lastv = mi + {'vstore': g.o.xsep, 'vstore4': g.o.ysep}.get(Q[k].k, 0)
            while True:
                k = pick(lambda x: x.k in ('valu', 'trans'))
                if k is None or gapcost(gap + [Q[k]]) > lim: break
                gap.append(Q[k]); taken.add(k)
            for k in range(force):
                if k not in taken: gap.append(Q[k]); taken.add(k); late += 1
            Q = [x for k, x in enumerate(Q) if k not in taken] if taken else Q
            gaps.append(gap)
        sys.stderr.write(f"mfma {len(M)} fillers {len(F)} forced {late} leftover {len(Q)}\n")
        return pre, M, gaps, Q + tail
    def finalize(g, parts):
        pre, M, gaps, tail = parts
        segs = [list(pre)] + [list(x) for x in gaps]; segs[-1] += tail
        def linear():
            for k, sg in enumerate(segs):
                if k: yield M[k - 1]
                for i in sg: yield i
        tags = {('v', RB): ('RB', 0), ('v', RB + 1): ('RB', 0)}
        for i in range(9): tags[('v', WA + i)] = ('WA', 0)
        for i in linear():
            for r, t in i.need:
                assert g.o.skip or tags.get(r) == t, (i.t, r, t, tags.get(r))
            if i.tag: tags[i.tag[0]] = i.tag[1]
        if not g.o.skip:
            from collections import Counter
            val = {}; used = 0
            PTS = {0: ['11', '12', '21', '22'], 1: ['12', '13', '22', '23'], 2: ['21', '22', '31', '32'], 3: ['22', '23', '32', '33']}
            for i in linear():
                if not i.sym:
                    for r in i.wr: val.pop(r, None)
                    continue
                if i.sym[0] == 'mfma':
                    for n, r in enumerate(i.wr):
                        c = Counter(val[i.creads[n]]) if i.creads else Counter()
                        c[i.sym[1]] += 1; val[r] = c
                elif i.sym[0] == 'lin':
                    c = Counter()
                    for r, sg in i.sym[2]:
                        for kk, vv in val[r].items(): c[kk] += sg * vv
                    val[i.sym[1]] = c
                else:
                    q, j, h = i.sym[2]
                    want = {(pt, dh, kp, k, j, h): 1 for pt in PTS[q] for dh in range(2) for kp in range(4) for k in taps(pt)}
                    got = {kk: vv for kk, vv in val[i.sym[1]].items() if vv}
                    assert got == want, (i.t, q, j, h); used += 1
                    for r in i.wr: val.pop(r, None)
            assert used == 256
        vm = []; lg = []; nw = 0; floor = 0
        head = {}
        def handle(i, k, lst):
            nonlocal vm, lg, nw
            regs = set(i.rd) | set(i.wr)
            for name, q, T, Tmin, mx in (('vmcnt', vm, g.o.tvm, g.o.hvm, 63), ('lgkmcnt', lg, g.o.tlg, g.o.hlg, 15)):
                last = -1
                for n, (dst, sg) in enumerate(q):
                    if dst & regs: last = n
                if last < 0: continue
                if q[last][1] >= k or k == len(segs) - 1 or k < floor:
                    while len(q) - 1 - last > mx: last += 1
                    lst.append(I(f"s_waitcnt {name}({len(q)-1-last})", 'salu')); nw += 1
                else:
                    best = k
                    for c in range(k, max(floor - 1, k - 12, q[last][1] + Tmin - 1), -1):
                        cur = lst + rest if c == k else segs[c]
                        if c in head or gapcost([I('', 'salu')] + cur) == gapcost(cur): best = c; break
                    while last + 1 < len(q) and best - q[last + 1][1] >= T: last += 1
                    n = sum(1 for e in q[last + 1:] if e[1] < best)
                    while n > mx: last += 1; n -= 1
                    h = head.setdefault(best, {})
                    h[name] = min(n, h.get(name, 99))
                if name == 'vmcnt': vm = q[last + 1:]
                else: lg = q[last + 1:]
        for k in range(len(segs)):
            lst = []
            for n, i in enumerate(segs[k]):
                rest = segs[k][n:]
                handle(i, k, lst)
                lst.append(i)
                if i.k == 'lgkm0': lg = []; floor = k + 1
                if i.k == 'vload': vm.append((set(i.wr), k))
                if i.k in ('vstore', 'vstore4'): vm.append(({('m', 'park')} if i.k == 'vstore4' else set(), k))
                if i.k == 'dsr': lg.append((set(i.wr), k))
                if i.k in ('dsw', 'dsw32'): lg.append((set(), k))
            rest = []
            if k < len(M): handle(M[k], k, lst)
            segs[k] = lst
        for k, h in head.items():
            segs[k].insert(0, I("s_waitcnt " + " ".join(f"{a}({b})" for a, b in h.items()), 'salu')); nw += 1
        st = [0] * 9
        for G in range(len(GROUPS)):
            for k in range(g.idx[(G, 0)], g.idx[(G + 1, 0)]):
                if k + 1 < len(segs) - 1: st[G // 8] += gapcost(segs[k + 1])
        sys.stderr.write(f"model cycles {st} sum {sum(st)} tail {gapcost(segs[-1])}\n")
        if g.o.stall:
            for k in range(1, len(segs) - 1, g.o.stall): segs[k].append(I("s_nop 7", 'salu'))
        out = [i for i in linear() if i.k != 'mark']
        res = []; nn = 0
        isv = lambda k: k in ('valu', 'trans')
        for i in out:
            req = 0; dist = 0
            for p in reversed(res[-12:]):
                w = 0
                pw, prd = set(p.wr), set(p.rd)
                if isv(p.k) and i.k == 'mfma' and pw & set(i.rd): w = 2
                if p.k == 'mfma':
                    if isv(i.k) and pw & (set(i.rd) | set(i.wr)): w = 8
                    if i.k in ('vstore', 'vstore4', 'dsw', 'dsw32', 'vload', 'dsr') and pw & (set(i.rd) | set(i.wr)): w = 8
                    if isv(i.k) and set(p.creads) & set(i.wr): w = max(w, 3)
                if p.k == 'trans' and i.k != 'trans' and pw & set(i.rd): w = max(w, 1)
                if p.k == 'trans' and i.k == 'trans' and pw & set(i.rd): w = max(w, 1)
                if p.k in ('vstore', 'vstore4', 'dsw', 'dsw32') and isv(i.k) and prd & set(i.wr): w = max(w, 2)
                req = max(req, w - dist)
                dist += (int(p.t.split()[1]) + 1) if p.t.startswith('s_nop') else 1
            if req > 0: res.append(I(f"s_nop {req-1}", 'salu')); nn += 1
            res.append(i)
        sys.stderr.write(f"waits {nw} nops {nn} total {len(res)}\n")
        return res
    def dbgstamp(g, slot, inv, back, vt=240):
        if not g.o.dbg: return ""
        t = f"s_and_b32 s96, s2, 0x38\ns_cmp_lg_u32 s96, 0\ns_cbranch_scc1 L_dbg{slot}\ns_memrealtime s[96:97]\ns_load_dwordx2 s[98:99], s[0:1], 24\ns_waitcnt lgkmcnt(0)\n"
        if not back: t += "s_add_u32 s98, s98, 512\ns_addc_u32 s99, s99, 0\n"
        if inv: t += "s_not_b32 s96, s96\n"
        t += f"v_mov_b32 v{vt}, s96\nv_mov_b32 v{vt+1}, {4*slot}\ns_mov_b64 s[94:95], exec\ns_mov_b64 exec, 1\nglobal_atomic_umax v{vt+1}, v{vt}, s[98:99]\ns_mov_b64 exec, s[94:95]\nL_dbg{slot}:"
        return t
    def spin(g, ticks, lab):
        return (f"s_load_dwordx2 s[98:99], s[0:1], 32\ns_waitcnt lgkmcnt(0)\ns_add_u32 s98, s98, {100<<20}\ns_addc_u32 s99, s99, 0\ns_load_dword s95, s[98:99], 0\ns_waitcnt lgkmcnt(0)\n"
                f"{lab}:\ns_memrealtime s[96:97]\ns_waitcnt lgkmcnt(0)\ns_sub_u32 s96, s96, s95\ns_cmp_lt_u32 s96, {ticks}\ns_cbranch_scc1 {lab}")
    def main_kernel(g):
        E = g.out.append
        E(f".globl {KN}\n.p2align 8\n.type {KN},@function\n{KN}:")
        E("s_cmp_ge_u32 s2, 256\ns_cbranch_scc1 L_end")
        E(g.dbgstamp(2, True, True)); E(g.dbgstamp(3, False, True))
        if g.o.spin0: E(g.spin(g.o.spin0, 'L_sp0'))
        if g.o.stamps: E(f"s_memtime s[{SST}:{SST+1}]\ns_memrealtime s[{SST+2}:{SST+3}]")
        E("s_load_dwordx2 s[4:5], s[0:1], 0\ns_load_dwordx2 s[6:7], s[0:1], 16\ns_load_dwordx2 s[26:27], s[0:1], 32")
        if g.o.map == 0:
            E("s_and_b32 s30, s2, 7\ns_lshr_b32 s31, s2, 3\ns_and_b32 s32, s31, 3\ns_lshr_b32 s31, s31, 2\ns_lshl_b32 s30, s30, 3\ns_add_u32 s30, s30, s31")
        elif g.o.map == 3: E("s_and_b32 s31, s2, 7\ns_lshr_b32 s33, s2, 3\ns_mul_i32 s30, s31, 31\ns_add_u32 s30, s30, s33\ns_and_b32 s32, s30, 3\ns_lshr_b32 s30, s30, 2\ns_cmp_ge_u32 s30, 31\ns_addc_u32 s30, s30, 0\ns_cmp_eq_u32 s33, 31\ns_cbranch_scc0 L_map\ns_and_b32 s32, s31, 3\ns_lshr_b32 s30, s31, 2\ns_lshl_b32 s30, s30, 5\ns_add_u32 s30, s30, 31\nL_map:")
        elif g.o.map == 1:
            E("s_and_b32 s32, s2, 3\ns_lshr_b32 s30, s2, 2")
        else:
            E("s_and_b32 s32, s2, 1\ns_lshl_b32 s32, s32, 1\ns_bfe_u32 s31, s2, 0x10003\ns_add_u32 s32, s32, s31\ns_bfe_u32 s30, s2, 0x20001\ns_lshl_b32 s30, s30, 4\ns_lshr_b32 s31, s2, 4\ns_add_u32 s30, s30, s31")
        E("s_mov_b32 s3, s30\ns_lshr_b32 s33, s30, 5\ns_and_b32 s34, s30, 31\ns_lshl_b32 s34, s34, 18")
        E("s_mul_i32 s33, s33, 8192000")
        E("v_and_b32 v202, 15, v0\nv_bfe_u32 v203, v0, 4, 1\nv_lshrrev_b32 v204, 5, v0\nv_mul_u32_u24 v205, 9, v204")
        E("v_lshlrev_b32 v206, 12, v205\nv_lshlrev_b32 v207, 9, v203\nv_lshlrev_b32 v208, 4, v202")
        E(f"v_add3_u32 v206, v206, v207, v208\ns_sub_u32 s35, s34, {4*4096}\nv_add_u32 v{XBASE}, s35, v206")
        E("v_and_b32 v200, 63, v0\nv_lshrrev_b32 v201, 6, v0")
        E(f"s_lshl_b32 s36, s32, 2\nv_add_u32 v206, s36, v201\nv_mul_u32_u24 v206, {STREAM}, v206\nv_lshl_add_u32 v{WL}, v200, 4, v206")
        E(f"v_lshl_add_u32 v{PFA}, v200, 2, v201\nv_lshlrev_b32 v{PFA}, 7, v{PFA}")
        E(f"s_add_u32 s{SX+2}, s34, 262144\ns_min_u32 s{SX+2}, s{SX+2}, 8192000\ns_mov_b32 s{SX+3}, 0x20000\ns_mov_b32 s{SW+2}, {0x10000000 if g.o.stamps else 16*STREAM}\ns_mov_b32 s{SW+3}, 0x20000")
        E(f"s_getpc_b64 s[28:29]\nL_pc:\ns_mov_b32 s30, L_h{g.o.pfd+1}-L_pc+128\ns_mov_b32 s31, 0x20000\ns_mov_b32 s37, 0")
        E("s_waitcnt lgkmcnt(0)")
        E(f"s_add_u32 s{SX}, s4, s33\ns_addc_u32 s{SX+1}, s5, 0\ns_mov_b32 s{SW}, s26\ns_mov_b32 s{SW+1}, s27\ns_add_u32 s{SWO}, s26, 4096\ns_addc_u32 s{SWO+1}, s27, 0")
        T = []
        T.append(f"v_and_b32 v206, 7, v202\nv_mul_u32_u24 v206, {S2}, v206\nv_lshrrev_b32 v207, 3, v202\nv_mul_u32_u24 v207, {S1}, v207\nv_lshlrev_b32 v208, 4, v203\nv_add3_u32 v206, v206, v207, v208")
        for i in range(9):
            T.append(f"v_add_u32 v207, {i}, v205\nv_and_b32 v208, 7, v207\nv_mul_u32_u24 v208, 288, v208\nv_lshrrev_b32 v207, 3, v207\nv_lshlrev_b32 v207, 5, v207\nv_add3_u32 v{WA+i}, v206, v207, v208")
        T.append(f"v_bfe_u32 v206, v0, 5, 1\nv_mul_u32_u24 v206, {S2}, v206\nv_mul_u32_u24 v207, {S1}, v203\nv_lshlrev_b32 v208, 4, v202\nv_add3_u32 v{RB}, v206, v207, v208\nv_add_u32 v{RB+1}, {ARR}, v{RB}")
        T.append("v_lshrrev_b32 v206, 1, v202\nv_lshlrev_b32 v206, 15, v206\nv_and_b32 v207, 1, v202\nv_lshlrev_b32 v207, 9, v207\nv_lshlrev_b32 v208, 5, v201\nv_add3_u32 v206, v206, v207, v208")
        T.append(f"v_lshrrev_b32 v207, 4, v200\nv_lshlrev_b32 v207, 3, v207\ns_lshl_b32 s36, s32, 7\ns_add_u32 s36, s36, s34\nv_add3_u32 v{SB}, v206, v207, s36")
        T.append(f"s_mov_b32 s{SC1}, {hex(fb(2*1.4426950408889634))}\ns_mov_b32 s{SC2}, {hex(fb(-1.4426950408889634))}\ns_mov_b32 s{SCL}, {hex(fb(32.0))}\ns_mov_b32 s{SMASK}, 0xffff0000")
        T.append(f"s_add_u32 s{SO}, s6, s33\ns_addc_u32 s{SO+1}, s7, 0\ns_mov_b32 s{SO+2}, 8192000\ns_mov_b32 s{SO+3}, 0x20000")
        T.append(f"v_mul_u32_u24 v206, 18432, v201\nv_lshl_add_u32 v{PKA}, v200, 4, v206\ns_mul_i32 s36, s3, {4*73728}\ns_add_u32 s36, s36, {g.o.park0 << 20}\ns_add_u32 s{SW}, s26, s36\ns_addc_u32 s{SW+1}, s27, 0")
        if g.o.coop >= 2: T.append(f"s_and_b32 s36, s32, 1\ns_mul_i32 s36, s36, 73728\ns_lshr_b32 s35, s32, 1\ns_lshl_b32 s35, s35, 13\ns_add_u32 s36, s36, s35\ns_add_u32 s36, s36, 4096\ns_add_u32 s{SPS}, s{SW}, s36\ns_addc_u32 s{SPS+1}, s{SW+1}, 0")
        else: T.append(f"s_mul_i32 s36, s32, 73728\ns_add_u32 s36, s36, 4096\ns_add_u32 s{SPS}, s{SW}, s36\ns_addc_u32 s{SPS+1}, s{SW+1}, 0")
        T.append(f"s_lshl_b32 s36, s3, 7\ns_add_u32 s36, s36, {FLG0-64}\ns_add_u32 s{SFL}, s26, s36\ns_addc_u32 s{SFL+1}, s27, 0\ns_lshl_b32 s36, s32, 2\ns_add_u32 s36, s36, 64\nv_mov_b32 v{VFO}, s36")
        if g.o.coop >= 2: T.append(f"s_and_b32 s36, s32, 1\ns_lshl_b32 s36, s36, 8\ns_lshr_b32 s35, s32, 1\ns_lshl_b32 s35, s35, 14\ns_add_u32 s36, s36, s35\nv_add_u32 v{KA0}, s36, v{XBASE}")
        else: T.append(f"s_and_b32 s36, s32, 1\ns_lshl_b32 s36, s36, 8\nv_add_u32 v{KA0}, s36, v{XBASE}\ns_movk_i32 s35, -1024\ns_cmp_lt_u32 s32, 2\ns_cselect_b32 s36, 1024, s35\nv_add_u32 v{KB0}, s36, v{KA0}")
        g.late_setup = "\n".join(T)
        for i in g.finalize(g.body()): E(i.t)
        if g.o.stamps:
            n = 12
            E(f"s_mov_b32 s{SW}, s26\ns_mov_b32 s{SW+1}, s27\ns_mov_b32 s{SW+2}, 0x10000000")
            if g.o.trace < 0: E(f"s_waitcnt vmcnt(0)\ns_memtime s[{SST+44}:{SST+45}]\ns_memrealtime s[{SST+46}:{SST+47}]\ns_waitcnt lgkmcnt(0)")
            E(f"v_mbcnt_lo_u32_b32 v20, -1, 0\nv_mbcnt_hi_u32_b32 v20, -1, v20\nv_lshlrev_b32 v21, 4, v20\nv_sub_u32 v21, v{WL}, v21\ns_lshl_b32 s36, s32, 2\ns_mul_i32 s36, s36, {STREAM}\nv_subrev_u32 v21, s36, v21\nv_or_b32 v21, v21, v20")
            E("v_cmp_eq_u32 vcc, 0, v21\ns_and_saveexec_b64 s[90:91], vcc\ns_cbranch_execz L_end")
            E(f"s_mul_i32 s36, s2, {16*n}\ns_add_u32 s36, s36, {200<<20}")
            for k in range(n):
                for j in range(4): E(f"v_mov_b32 v{24+j}, s{SST+4*k+j}")
                E(f"buffer_store_dwordx4 v[24:27], v21, s[{SW}:{SW+3}], s36 offen offset:{16*k}\ns_nop 1")
        if g.o.dbg: E(g.dbgstamp(4, False, True)); E("s_waitcnt vmcnt(0)"); E(g.dbgstamp(5, False, True)); E(g.dbgstamp(6, True, True))
        if g.o.spinend: E("s_waitcnt vmcnt(0)"); E(g.spin(g.o.spinend, 'L_spe'))
        E("L_end:\ns_endpgm")
    def prep_kernel(g):
        E = g.out.append
        E(f".globl {PN}\n.p2align 8\n.type {PN},@function\n{PN}:")
        E("s_cmp_ge_u32 s2, 256\ns_cbranch_scc1 LP_end2")
        E(g.dbgstamp(0, True, False, 116))
        if g.o.spinend or g.o.spin0 or g.o.spin1:
            E(f"s_cmp_lg_u32 s2, 0\ns_cbranch_scc1 LP_ns\ns_memrealtime s[96:97]\ns_load_dwordx2 s[98:99], s[0:1], 32\ns_waitcnt lgkmcnt(0)\nv_mov_b32 v116, s96\nv_mov_b32 v117, {100<<20}\nglobal_store_dword v117, v116, s[98:99]\nLP_ns:")
        ps = lambda n: E(f"s_memtime s[{60+4*n}:{61+4*n}]\ns_memrealtime s[{62+4*n}:{63+4*n}]") if g.o.pstamps else None
        ps(0)
        E("s_load_dwordx2 s[4:5], s[0:1], 8\ns_load_dwordx2 s[6:7], s[0:1], 32\ns_load_dwordx2 s[40:41], s[0:1], 0")
        E("s_and_b32 s20, s2, 1\ns_bfe_u32 s21, s2, 0x50001\ns_lshr_b32 s22, s2, 6")
        E("v_lshrrev_b32 v4, 6, v0\nv_lshlrev_b32 v1, 18, v4\nv_bfe_u32 v2, v0, 5, 1\nv_lshlrev_b32 v2, 10, v2\nv_and_b32 v3, 31, v0\nv_lshlrev_b32 v3, 4, v3\nv_add3_u32 v1, v1, v2, v3")
        E("s_lshl_b32 s23, s20, 9\ns_lshl_b32 s24, s21, 13\ns_add_u32 s23, s23, s24\ns_lshl_b32 s25, s22, 20\ns_add_u32 s23, s23, s25\ns_sub_u32 s23, s23, 262144")
        E("v_readfirstlane_b32 s26, v4\nv_add_u32 v1, s23, v1\nv_add_u32 v2, 2048, v1\nv_add_u32 v3, 4096, v1\nv_add_u32 v4, 6144, v1")
        E("s_mul_i32 s26, s26, 4352\ns_mov_b32 s10, 3932160\ns_mov_b32 s11, 0x20000\ns_mov_b32 m0, s26")
        E("s_waitcnt lgkmcnt(0)")
        ps(1)
        E("s_mov_b32 s8, s4\ns_mov_b32 s9, s5")
        for i in range(4):
            E(f"buffer_load_dwordx4 v{1+i}, s[8:11], 0 offen lds")
            if i < 3: E("s_add_u32 m0, m0, 1088\ns_nop 0")
        E(f"s_mov_b32 s12, s6\ns_mov_b32 s13, s7\ns_mov_b32 s14, {16*STREAM}\ns_mov_b32 s15, 0x20000")
        if g.o.warm:
            E(f"s_getpc_b64 s[44:45]\nLP_pc:\ns_add_u32 s44, s44, {KN}-LP_pc\ns_addc_u32 s45, s45, 0\ns_mov_b32 s46, L_h3-{KN}\ns_mov_b32 s47, 0x20000")
            E("v_lshlrev_b32 v5, 7, v0\nbuffer_load_dword v116, v5, s[44:47], 0 offen")
            if g.o.map == 3: E("s_and_b32 s49, s2, 7\ns_lshr_b32 s50, s2, 3\ns_mul_i32 s48, s49, 31\ns_add_u32 s48, s48, s50\ns_and_b32 s52, s48, 3\ns_lshr_b32 s48, s48, 2\ns_cmp_ge_u32 s48, 31\ns_addc_u32 s48, s48, 0\ns_cmp_eq_u32 s50, 31\ns_cbranch_scc0 LP_map\ns_and_b32 s52, s49, 3\ns_lshr_b32 s48, s49, 2\ns_lshl_b32 s48, s48, 5\ns_add_u32 s48, s48, 31\nLP_map:")
            else: E("s_and_b32 s48, s2, 7\ns_lshr_b32 s49, s2, 5\ns_lshl_b32 s48, s48, 3\ns_add_u32 s48, s48, s49\ns_bfe_u32 s52, s2, 0x20003")
            E("s_lshr_b32 s49, s48, 5\ns_and_b32 s48, s48, 31\ns_lshl_b32 s48, s48, 18\ns_mul_i32 s49, s49, 8192000")
            E("s_add_u32 s40, s40, s49\ns_addc_u32 s41, s41, 0\ns_add_u32 s42, s48, 262144\ns_min_u32 s42, s42, 8192000\ns_mov_b32 s43, 0x20000")
            if g.o.warm == 1:
                E("s_lshl_b32 s49, s52, 7\ns_add_u32 s48, s48, s49\ns_sub_u32 s48, s48, 12288")
                E("v_lshrrev_b32 v6, 1, v0\nv_lshlrev_b32 v6, 12, v6\nv_and_b32 v7, 1, v0\nv_lshlrev_b32 v7, 9, v7\nv_add3_u32 v6, v6, v7, s48")
                E(f"buffer_load_dword v117, v6, s[40:43], 0 offen{g.o.wmflags}")
                for ch in g.o.wph: E(f"buffer_load_dword v117, v6, s[40:43], 0 offen offset:{1024*(int(ch)+1)}{g.o.wmflags}")
            else:
                E("s_lshl_b32 s49, s52, 16\ns_add_u32 s48, s48, s49\nv_add_u32 v6, s48, v5\nv_add_u32 v7, 0x8000, v6")
                if g.o.warm in (2, 4): E(f"buffer_load_dword v117, v6, s[40:43], 0 offen{g.o.wmflags}\nbuffer_load_dword v117, v7, s[40:43], 0 offen{g.o.wmflags}")
        E(f"v_lshrrev_b32 v3, 4, v0\nv_mul_u32_u24 v3, {STREAM}, v3\nv_and_b32 v4, 15, v0\nv_lshlrev_b32 v4, 4, v4\nv_add_u32 v3, v3, v4")
        E("s_lshr_b32 s27, s21, 4\ns_bfe_u32 s28, s21, 0x20001\ns_and_b32 s29, s21, 1\ns_lshl_b32 s29, s29, 1\ns_bfe_u32 s30, s21, 0x10003\ns_add_u32 s29, s29, s30\ns_lshl_b32 s29, s29, 8")
        E("v_add_u32 v3, s29, v3")
        E("v_bfe_u32 v1, v0, 3, 1\nv_mul_u32_u24 v1, 1088, v1\nv_bfe_u32 v2, v0, 2, 1\nv_lshlrev_b32 v2, 9, v2\nv_lshrrev_b32 v4, 4, v0\nv_lshlrev_b32 v4, 5, v4\nv_add3_u32 v1, v1, v2, v4\nv_and_b32 v2, 3, v0\nv_lshl_add_u32 v1, v2, 3, v1")
        E("s_mov_b32 s33, 0xffff0000")
        if g.o.coop: E(f"s_lshr_b32 s34, s2, 2\ns_lshl_b32 s34, s34, 7\ns_and_b32 s35, s2, 3\ns_lshl_b32 s35, s35, 2\ns_add_u32 s34, s34, s35\ns_add_u32 s34, s34, {FLG0}\nv_mov_b32 v118, s34\nv_mov_b32 v119, 0")
        E(f"s_mov_b32 s37, {hex(fb(2*1.4426950408889634))}\ns_cmp_eq_u32 s20, 0\ns_cselect_b32 s37, s37, {hex(fb(-1.4426950408889634))}")
        PTS9 = ['22', '23', '21', '12', '32', '13', '33', '31', '11']
        E("s_lshl_b32 s34, s28, 3\ns_lshl_b32 s35, s20, 2\ns_add_u32 s34, s34, s35\ns_add_u32 s34, s34, s22")
        E("s_mul_i32 s36, s28, 6\ns_mul_i32 s35, s20, 3\ns_add_u32 s36, s36, s35\ns_add_u32 s36, s36, s22")
        for n, pt in enumerate(PTS9):
            base = GOFF[(pt, 0, 0)]; dstr = GOFF[(pt, 1, 0)] - base
            E(f"s_mul_i32 s{80+n}, s27, {dstr}\ns_add_u32 s{80+n}, s{80+n}, s{36 if pt == '11' else 34}\ns_add_u32 s{80+n}, s{80+n}, {base-taps(pt)[0]}\ns_lshl_b32 s{80+n}, s{80+n}, 10")
        E(f"s_cmp_eq_u32 s22, 0\ns_cselect_b32 s88, {16*STREAM}, s88")
        E(f"s_waitcnt vmcnt({[0, 2 + len(g.o.wph), 3, 1, 3][g.o.warm]})\ns_barrier")
        ps(2)
        PK = {'11': 112, '13': 100, '31': 108, '33': 104}
        rawn = ['11', '13', '31', '33']; rawp = [PK[x] for x in rawn]
        st = lambda pt, o: E(f"buffer_store_dwordx4 v[{o}:{o+3}], v3, s[12:15], s{80+PTS9.index(pt)} offen{g.o.pflags}")
        for r in range(4):
            for hf in range(2): E(f"ds_read_b64_tr_b16 v[{rawp[r]+2*hf}:{rawp[r]+2*hf+1}], v1 offset:{r*4352+hf*2176}")
        g_ = lambda r: 8 + 8 * r
        def comb(pt, dst, x, y, o):
            for i in range(8): E(f"v_add_f32 v{dst+i}, v{x+i}, v{y+i}")
            for i in range(4): E(f"v_cvt_pk_bf16_f32 v{o+i}, v{dst+2*i}, v{dst+2*i+1}")
            st(pt, o)
        for r in range(4):
            E(f"s_waitcnt lgkmcnt({6-2*r})")
            if not g.o.fold: st(rawn[r], rawp[r])
            for i in range(4): E(f"v_lshlrev_b32 v{g_(r)+2*i}, 16, v{rawp[r]+i}\nv_and_b32 v{g_(r)+2*i+1}, s33, v{rawp[r]+i}")
            if g.o.fold:
                for i in range(8): E(f"v_mul_f32 v{g_(r)+i}, s37, v{g_(r)+i}")
                for i in range(4): E(f"v_cvt_pk_bf16_f32 v{rawp[r]+i}, v{g_(r)+2*i}, v{g_(r)+2*i+1}")
                st(rawn[r], rawp[r])
            if r == 1: comb('12', 40, g_(0), g_(1), 80)
            if r == 2: comb('21', 56, g_(0), g_(2), 84)
        if g.o.coop: E("global_store_dword v118, v119, s[6:7]\nglobal_store_dword v118, v119, s[6:7] offset:16")
        comb('32', 48, g_(2), g_(3), 88); comb('22', 72, 40, 48, 92); comb('23', 64, g_(1), g_(3), 96)
        if g.o.warm == 3: E(f"buffer_load_dword v117, v6, s[40:43], 0 offen{g.o.wmflags}\nbuffer_load_dword v117, v7, s[40:43], 0 offen{g.o.wmflags}")
        if g.o.warm == 4: E(f"s_waitcnt vmcnt({10 if g.o.coop else 9})\nbuffer_load_dword v117, v6, s[40:43], 0 offen sc1\nbuffer_load_dword v117, v7, s[40:43], 0 offen sc1")
        E("LP_end:")
        if g.o.pstamps:
            ps(3); E("s_waitcnt vmcnt(0)"); ps(4)
            E(f"s_waitcnt lgkmcnt(0)\ns_mov_b32 s14, 0x10000000\ns_mul_i32 s31, s2, 80\ns_add_u32 s31, s31, {210<<20}\nv_cmp_eq_u32 vcc, 0, v0\ns_and_saveexec_b64 s[50:51], vcc\ns_cbranch_execz LP_end2\nv_mov_b32 v3, 0")
            for k in range(5):
                for j in range(4): E(f"v_mov_b32 v{24+j}, s{60+4*k+j}")
                E(f"buffer_store_dwordx4 v[24:27], v3, s[12:15], s31 offen offset:{16*k}\ns_nop 1")
        if g.o.dbg: E("s_waitcnt vmcnt(0)"); E(g.dbgstamp(1, False, False, 116))
        E("LP_end2:\ns_endpgm")
    def emit(g):
        E = g.out.append
        E(f"; F(4,4) nested fast-FIR (Karatsuba x2) dilated conv + gated activation; generated by gen.py")
        E(f"; @launch kernel={PN} grid=(256,1,1) block=(256,1,1) lds=17408")
        E(f"; @launch kernel={KN} grid=(256,1,1) block=(256,1,1) lds={LDS_BYTES}")
        E('.amdgcn_target "amdgcn-amd-amdhsa--gfx950"\n.text')
        g.prep_kernel(); g.main_kernel()
        for n, nv, ao in ((PN, 120, 120), (KN, 512, 256)):
            E(f""".section .rodata,"a"
.p2align 6
.amdhsa_kernel {n}
  .amdhsa_next_free_vgpr {nv}
  .amdhsa_next_free_sgpr 100
  .amdhsa_accum_offset {ao}
  .amdhsa_group_segment_fixed_size 0
  .amdhsa_kernarg_size 40
  .amdhsa_user_sgpr_count 2
  .amdhsa_user_sgpr_kernarg_segment_ptr 1
  .amdhsa_system_sgpr_workgroup_id_x 1
  .amdhsa_float_denorm_mode_32 3
.end_amdhsa_kernel""")
        return "\n".join(x for x in g.out if x) + "\n"

if __name__ == '__main__':
    ap = argparse.ArgumentParser()
    ap.add_argument('-o', default='standalone__autoregressive_conv_wavernn__speech.s')
    ap.add_argument('--stamps', action='store_true'); ap.add_argument('--cap', type=int, default=2); ap.add_argument('--backlog', type=int, default=10)
    ap.add_argument('--tvm', type=int, default=80); ap.add_argument('--tlg', type=int, default=10)
    ap.add_argument('--wflags', default=''); ap.add_argument('--sflags', default='nt')
    ap.add_argument('--skip', default=''); ap.add_argument('--pf', type=int, default=1); ap.add_argument('--map', type=int, default=3); ap.add_argument('--look', type=int, default=16); ap.add_argument('--dswsep', type=int, default=6)
    ap.add_argument('--spfrom', type=int, default=5); ap.add_argument('--fb1', type=int, default=23); ap.add_argument('--fb2', type=int, default=39); ap.add_argument('--wph', default=''); ap.add_argument('--fold', type=int, default=1); ap.add_argument('--coop', type=int, default=0); ap.add_argument('--kpat', default='.........,..K...K...K.,K..K..K...K..,K..K.......'); ap.add_argument('--wmflags', default=''); ap.add_argument('--xlflags', default=''); ap.add_argument('--xlmax', type=int, default=9); ap.add_argument('--park0', type=int, default=16); ap.add_argument('--kxflags', default=''); ap.add_argument('--fbar', type=int, default=5); ap.add_argument('--fload', type=int, default=20); ap.add_argument('--fpad', type=int, default=50); ap.add_argument('--kflags', default='sc1'); ap.add_argument('--lflags', default='sc1'); ap.add_argument('--pstamps', action='store_true'); ap.add_argument('--gsep', type=int, default=3); ap.add_argument('--xsep', type=int, default=0); ap.add_argument('--ysep', type=int, default=0); ap.add_argument('--b32', type=int, default=0); ap.add_argument('--a1split', type=int, default=16); ap.add_argument('--warm', type=int, default=1, choices=[0, 1, 2, 3, 4]); ap.add_argument('--pflags', default=''); ap.add_argument('--pfd', type=int, default=2); ap.add_argument('--snake', type=int, default=1); ap.add_argument('--nearly', type=int, default=9); ap.add_argument('--y0end', type=int, default=2); ap.add_argument('--y2in', type=int, default=4); ap.add_argument('--wwin', type=int, default=6); ap.add_argument('--extra', default=''); ap.add_argument('--xflags', default=''); ap.add_argument('--xstep', type=int, default=1024); ap.add_argument('--dbg', action='store_true'); ap.add_argument('--spinend', type=int, default=0); ap.add_argument('--spin0', type=int, default=0); ap.add_argument('--spin1', type=int, default=0); ap.add_argument('--stall', type=int, default=0); ap.add_argument('--hvm', type=int, default=48); ap.add_argument('--hlg', type=int, default=8); ap.add_argument('--trace', type=int, default=-1); ap.add_argument('--tstep', type=int, default=8)
    o = ap.parse_args()
    o.skip = [x for x in o.skip.split(',') if x]
    if o.coop == 3 and o.kpat.count('K') == 9: o.kpat = '.........,.........,K.K..K..K.K...,...K...K...,..K..K..K...'; o.fpad = 2
    if o.coop == 2 and o.kpat.count('K') == 9: o.kpat = '.........,.........,..K..K...K..,..K...K....'; o.fpad = 2; o.a1split = 4
    if o.wflags: o.wflags = ' ' + o.wflags
    if o.xflags: o.xflags = ' ' + o.xflags
    if o.pflags: o.pflags = ' ' + o.pflags
    if o.kflags: o.kflags = ' ' + o.kflags
    if o.lflags: o.lflags = ' ' + o.lflags
    if o.kxflags: o.kxflags = ' ' + o.kxflags
    if o.xlflags: o.xlflags = ' ' + o.xlflags
    if o.wmflags: o.wmflags = ' ' + o.wmflags
    if o.sflags: o.sflags = ' ' + o.sflags
    open(o.o, 'w').write(Gen(o).emit())
```

```python
import sys, struct, argparse
KN = "standalone__autoregressive_conv_wavernn__speech_kernel"
PN = "wprep_kernel"
fb = lambda f: struct.unpack('<I', struct.pack('<f', f))[0]

S1, S2, ARR, BUF = 2304, 4624, 36992, 73984
LDS_BYTES = 2 * BUF
STREAM = 560 * 1024

STAGES = [(('22', 0), ('22', 1)),
          (('23', 0), ('21', 0)), (('23', 1), ('21', 1)),
          (('12', 0), ('32', 0)), (('12', 1), ('32', 1)),
          (('13', 0), ('33', 0)), (('13', 1), ('33', 1)),
          (('11', 0), ('31', 0)), (('11', 1), ('31', 1))]
SET = {'22': 0, '23': 1, '21': 0, '12': 2, '32': 3, '13': 0, '33': 1, '11': 2, '31': 3}
FORK = {'22': None, '23': 0}
QOF = {0: 1, 1: 3, 2: 0, 3: 2}
PTYPE = ['A', 'B', 'B', 'C', 'C', 'D', 'D', 'E', 'E']
PARK0 = 16 << 20
def taps(pt): return [1, 2, 3] if pt == '11' else [0, 1, 2, 3]

GROUPS = []
GOFF = {}
def build_tables(pm):
    if pm: STAGES[7] = (('11', 0), ('11', 1)); STAGES[8] = (('31', 0), ('31', 1))
    off = 0
    for s, st in enumerate(STAGES):
        for a, (pt, dh) in enumerate(st):
            for kp in range(4):
                GROUPS.append((s, a, pt, dh, kp, off)); GOFF[(pt, dh, kp)] = off; off += 2 * len(taps(pt))
    assert off == 560

def V(n, c=1): return [('v', n + i) for i in range(c)]
def A(n, c=1): return [('a', n + i) for i in range(c)]
def vr(n, c): return f"v[{n}:{n+c-1}]"
def ar(n, c): return f"a[{n}:{n+c-1}]"
class I:
    __slots__ = ('t', 'k', 'rd', 'wr', 'c', 'need', 'tag', 'pos', 'dl', 'seq', 'creads', 'sym')
    def __init__(s, t, k, rd=(), wr=(), need=None, tag=None, creads=(), sym=None):
        s.sym = sym
        s.t = t; s.k = k; s.rd = list(rd); s.wr = list(wr); s.need = need or []; s.tag = tag
        s.c = {'trans': 2, 'dsw': 2, 'dsw32': 2, 'salu': 0, 'vstore': 2, 'vstore4': 2}.get(k, 1); s.pos = None; s.dl = None; s.creads = list(creads)

WA = 1; RB = 10; WL = 12; XA = 13; XBASE = 15; SB = 0
RAW = 144; NRAW = 12; PERS = 192; TMP = 200; OUT = 208; EPI = 224; ACT = 240; STG = 16; PFA = 224; PFD = 225; PKA = 226; FLR = 240; VFO = 227; KA0 = 236; KB0 = 237; KPERS = list(range(228, 236))
def R(f, n, c=1): return [(f, n + i) for i in range(c)]
def rr_(f, n, c): return f"{f}[{n}:{n+c-1}]"
def accreg(st, t): return [('v', 16), ('v', 80), ('a', 0), ('a', 64)][st][0], [16, 80, 0, 64][st] + t * 4
def wreg(slot): return 'a', 128 + slot * 4
def xreg(c): return ('a', 224 + 4 * c) if c < 8 else ('v', 244 + 4 * (c - 8))
SX, SW, SO = 8, 12, 16
SWO = 20; SC1, SC2, SCL, SMASK = 25, 22, 23, 24
SFL = 4; SPS = 6
FLG0 = 15 << 20
SPK = 38
SST = 40

def gapcost(gap):
    t = 4; sawv = False; pg = False
    for i in gap:
        if i.k == 'mark': continue
        if i.k in ('valu', 'trans'): t = max(t, 8) + (8 if i.k == 'trans' else 4) + (4 if pg and t == 12 else 0); sawv = True
        pg = i.k == 'vstore' or 's36 offen' in i.t
        if i.k in ('valu', 'trans'): pass
        elif i.k == 'dsw': t += 24 + (8 if sawv else 0)
        elif i.k == 'vstore4': t += 24 + (8 if sawv else 0)
        elif i.k == 'dsw32': t += 12 + (8 if sawv else 0)
        elif i.k in ('vload', 'dsr', 'vstore'): t += 8 + (8 if sawv else 0)
        else: t += 4 * (1 + i.t.count('\n'))
    return max(t, 16)

class Gen:
    def __init__(g, opt):
        g.o = opt; g.out = []; g.tr = {}; g.lastdsw = -99; g.lastv = -99; g.pkbase = None
    def wr_(g, G, n):
        if g.o.pm and G == 70: return 'v', 144 + 4 * n
        if g.o.pm and G == 71: return 'v', 16 + 4 * n
        return wreg((G % 3) * 8 + n)
    def xr_(g, G, c):
        if g.o.pm and G >= 70: return 'v', 176 + (G - 70) * 24 + (c % 6) * 4
        return xreg(c)
    def mfmas(g):
        M = []; g.idx = {}
        units = [[G] for G in range(len(GROUPS))]
        if g.o.pm: units = units[:69] + [[69, 70, 71]]
        for U in units:
            s, a, pt, dh, kp, off = GROUPS[U[0]]
            tp = taps(pt); st = SET[pt]
            first = (kp == 0 and dh == 0 and pt in FORK)
            for j in range(8):
                for G in U: g.idx[(G, j)] = len(M)
                for hi, h in enumerate((0, 1) if j % 2 == 0 or not g.o.snake else (1, 0)):
                    order = [(G, ki, k) for G in U for ki, k in enumerate(tp)]
                    if hi == 1 and g.o.snake: order.reverse()
                    for n, (G, ki, k) in enumerate(order):
                        af, acc = accreg(st, j * 2 + h)
                        wf, w = g.wr_(G, h * len(tp) + ki)
                        xf, x = g.xr_(G, j + k)
                        if first and n == 0:
                            if FORK[pt] is None: cs, cr = '0', []
                            else:
                                cf, c = accreg(FORK[pt], j * 2 + h); cs, cr = rr_(cf, c, 4), R(cf, c, 4)
                        else: cs, cr = rr_(af, acc, 4), R(af, acc, 4)
                        M.append(I(f"v_mfma_f32_16x16x32_bf16 {rr_(af,acc,4)}, {rr_(wf,w,4)}, {rr_(xf,x,4)}, {cs}", 'mfma',
                                   rd=R(wf, w, 4) + R(xf, x, 4) + cr, wr=R(af, acc, 4), creads=cr, sym=('mfma', (pt, GROUPS[G][3], GROUPS[G][4], k, j, h)),
                                   need=[((wf, w), ('W', G, h, k)), ((xf, x), ('X', G, j + k))]))
        g.idx[(len(GROUPS), 0)] = len(M)
        for s in range(18): M[g.idx[(4 * s, 0)]].t = f"L_h{s}:\n" + M[g.idx[(4 * s, 0)]].t
        return M
    def P(g, s, gr, j=0): return g.idx[(s * 8 + gr, j)]
    def wloads(g, G):
        s, a, pt, dh, kp, off = GROUPS[G]; tp = taps(pt); L = []
        for h in range(2):
            for ki, k in enumerate(tp):
                f = off + h * len(tp) + ki
                if f % 8 == 0 and f:
                    L.append(I(f"s_add_u32 s{SWO}, s{SWO}, 8192", 'salu', rd=[('s', SWO)], wr=[('s', SWO), ('s', 'scc')], tag=(('s', 'scc'), ('W', f))))
                    L.append(I(f"s_addc_u32 s{SWO+1}, s{SWO+1}, 0", 'salu', rd=[('s', SWO), ('s', 'scc')], wr=[('s', SWO), ('s', 'scc')], need=[(('s', 'scc'), ('W', f))]))
                wf, w = g.wr_(G, h * len(tp) + ki)
                L.append(I(f"global_load_dwordx4 {rr_(wf,w,4)}, v{WL}, s[{SWO}:{SWO+1}] offset:{(f%8)*1024-4096}{g.o.wflags}", 'vload',
                           rd=V(WL) + [('s', SWO)], wr=R(wf, w, 4), tag=((wf, w), ('W', G, h, k))))
        return L
    def xread(g, G, c):
        s, a, pt, dh, kp, off = GROUPS[G]
        xf, x = g.xr_(G, c); imm = 2 * kp * S2 + (c % 8) * 288 + (c // 8) * 32
        return I(f"ds_read_b128 {rr_(xf,x,4)}, v{RB+a} offset:{imm}", 'dsr', rd=V(RB + a), wr=R(xf, x, 4), tag=((xf, x), ('X', G, c)),
                 need=[(('v', RB + a), ('RB', s))])
    def spread(g, L, p0, p1, dl=None):
        tot = sum(i.c for i in L); acc = 0
        for i in L:
            i.pos = p0 + (p1 - p0) * acc / max(tot, 1); acc += i.c
            i.dl = dl
        return L
    def account(g, L):
        for i in L:
            if i.k == 'pad': continue
            p = int(i.pos)
            for q in range(-3, 4):
                if 0 <= p + q < len(g.load): g.load[p + q] += i.c / 7.0
    def fill(g, L, p0, p1, dl=None):
        p0 = int(p0 + 0.999); p1 = int(p1)
        tot = sum(i.c for i in L); lo, hi = 0.0, 20.0
        for _ in range(50):
            lam = (lo + hi) / 2
            if sum(max(0.02, lam - g.load[m]) for m in range(p0, p1)) > tot: hi = lam
            else: lo = lam
        room = [max(0.02, hi - g.load[m]) for m in range(p0, p1)]
        m = 0; acc = 0; base = 0.0
        for i in L:
            while m < len(room) - 1 and base + room[m] <= acc: base += room[m]; m += 1
            i.pos = p0 + m + min(0.99, (acc - base) / room[m]); i.dl = dl; acc += i.c
        for k, r in enumerate(room): g.load[p0 + k] += r
        g.levels.append((p0, p1, round(hi, 2)))
        return L
    def production(g):
        rows = []
        progs = []
        def newrow(s, ai, imm):
            rows.append((s, ai, imm + STAGES[s][0][1] * 256)); return len(rows) - 1
        rr = lambda n: RAW + (n % NRAW) * 4
        tctr = [0]
        def tmp():
            t = TMP + tctr[0] % 8; tctr[0] += 1; return t
        octr = [0]
        def lo(dst, n, i): return I(f"v_lshlrev_b32 v{dst}, 16, v{rr(n)+i}", 'valu', rd=V(rr(n)+i), wr=V(dst), need=[(('v', rr(n)), ('R', n))], tag=('use', n))
        def hi(dst, n, i): return I(f"v_and_b32 v{dst}, s{SMASK}, v{rr(n)+i}", 'valu', rd=V(rr(n)+i), wr=V(dst), need=[(('v', rr(n)), ('R', n))], tag=('use', n))
        def sub(d, a, b): return I(f"v_sub_f32 v{d}, v{a}, v{b}", 'valu', rd=V(a) + V(b), wr=V(d))
        def cvt(d, a, b): return I(f"v_cvt_pk_bf16_f32 v{d}, v{a}, v{b}", 'valu', rd=V(a) + V(b), wr=V(d))
        def wr(s, i, arr, src): return I(f"ds_write_b128 v{WA+i}, {vr(src,4)} offset:{arr*ARR}", 'dsw', rd=V(WA + i) + V(src, 4), need=[(('v', WA + i), ('WA', s))])
        def krow(base, const, imm):
            rows.append(('k', base, const, imm)); return len(rows) - 1
        def toggles(s):
            op = 'v_add_u32' if s % 2 else 'v_subrev_u32'
            return [I(f"{op} v{WA+i}, {BUF}, v{WA+i}", 'valu', rd=V(WA + i), wr=V(WA + i), tag=(('v', WA + i), ('WA', s))) for i in range(9)]
        P8 = list(range(PERS, PERS + 8))
        def init2(na, nb, PP=P8):
            L = []
            for d in range(4):
                t0, t1 = tmp(), tmp(); p0, p1 = PP[2*d], PP[2*d+1]
                L += [lo(p0, na, d), hi(p1, na, d), lo(t0, nb, d), hi(t1, nb, d), sub(p0, p0, t0), sub(p1, p1, t1)]
            return L
        def corner(mp, mm, np_, nm, o0, o1, PP=P8):
            L = []
            for d in range(4):
                a, b, c, e = [tmp() for _ in range(4)]
                p0, p1 = PP[2*d], PP[2*d+1]
                L += [lo(a, mp, d), hi(b, mp, d), lo(c, mm, d), hi(e, mm, d), sub(a, a, c), sub(b, b, e),
                      sub(c, p0, a), sub(e, p1, b), lo(p0, np_, d), hi(p1, np_, d), cvt(o0 + d, c, e),
                      lo(c, nm, d), hi(e, nm, d), sub(p0, p0, c), sub(p1, p1, e), sub(a, p0, a), sub(b, p1, b), cvt(o1 + d, a, b)]
            return L
        def steps(L, s, seq):
            pend = None
            for ty, i in seq:
                if ty == 'K' and i == 5 and g.o.coop == 3:
                    sc = [('s', SPS), ('s', 'scc')]
                    if pend is not None: L += pend; pend = None
                    L.append(I(f"s_add_u32 s{SPS}, s{SPS}, {2*73728-8192}\ns_addc_u32 s{SPS+1}, s{SPS+1}, 0", 'salu', rd=sc, wr=sc, tag=(('s', 'scc'), 'park')))
                KB, kd = (KB0, 0) if g.o.coop == 1 else (KA0, -1024)
                if g.o.coop == 3 and ty == 'K':
                    if i < 5: kd = 1024
                    run = i // 5; i = i % 5
                else: run = 0
                if ty == 'P':
                    for arr in range(2):
                        rows.append(('park', s - 5, 2 * i + arr)); n = len(rows) - 1
                        w = wr(s, i, arr, rr(n)); w.need.append((('v', rr(n)), ('R', n))); w.tag = ('use', n)
                        pad = I("", 'pad'); pad.c = 6
                        L += [w, pad]
                        if pend is not None: L += pend; pend = None
                    continue
                if ty == 'K' and i == 0:
                    nb, na = krow(KA0, 0, 2048), krow(KB, 2048 + kd, 0); L += init2(na, nb, KPERS)
                stepstart = len(L)
                o0 = OUT + (octr[0] % 2) * 8; o1 = o0 + 4; octr[0] += 1
                if ty == 'B':
                    n2, n3, n4 = newrow(s, i, 3072), newrow(s, i + 1, 0), newrow(s, i + 1, 1024)
                    for d in range(4):
                        a, b, c, e, f, h = [tmp() for _ in range(6)]
                        L += [lo(a, n3, d), hi(b, n3, d), lo(c, n4, d), hi(e, n4, d), lo(f, n2, d), hi(h, n2, d),
                              sub(c, c, a), sub(e, e, b), sub(f, f, a), sub(h, h, b), cvt(o0 + d, c, e), cvt(o1 + d, f, h)]
                elif ty == 'C':
                    n3, n5 = newrow(s, i + 1, 0), newrow(s, i + 1, 2048)
                    for d in range(4):
                        a, b, c, e = [tmp() for _ in range(4)]
                        p0, p1 = PERS + 2*d, PERS + 2*d + 1
                        L += [lo(a, n3, d), hi(b, n3, d), sub(c, p0, a), sub(e, p1, b), lo(p0, n5, d), hi(p1, n5, d), cvt(o0 + d, c, e),
                              sub(a, p0, a), sub(b, p1, b), cvt(o1 + d, a, b)]
                elif ty == 'D':
                    n3, n4, n5, n6 = [newrow(s, i + 1, 1024 * q) for q in range(4)]
                    L += corner(n4, n3, n6, n5, o0, o1)
                elif ty == 'E':
                    n2 = newrow(s, i, 3072); n3, n4, n5 = [newrow(s, i + 1, 1024 * q) for q in range(3)]
                    L += corner(n2, n3, n4, n5, o0, o1)
                elif ty == 'K':
                    c0 = 4096 * (i + 1)
                    mp, mm, nm, np_ = krow(KB, c0 + kd, 0), krow(KA0, c0, 0), krow(KA0, c0, 2048), krow(KB, c0 + 2048 + kd, 0)
                    L += corner(mp, mm, np_, nm, o0, o1, KPERS)
                if ty == 'K': w0, w1 = g.parkop(2 * i, o0, True, run), g.parkop(2 * i + 1, o1, True, run)
                else: w0, w1 = [wr(s, i, 0, o0)], [wr(s, i, 1, o1)]
                if pend is not None:
                    m = stepstart + (len(L) - stepstart) // 2; L[m:m] = pend
                L += w0; pend = w1
            if pend is not None:
                pad = I("", 'pad'); pad.c = 10
                L += [pad] + pend
        firstP = {}; kctr = [0]
        for s in range(1, 9):
            ty = PTYPE[s]; L = []
            PS = {0: 99, 1: 5, 2: 7, 3: 5}[g.o.coop]
            if s >= PS: ty = 'P'
            if s == PS or (g.o.coop == 3 and s == 7):
                pad = I("", 'pad'); pad.c = g.o.fpad; L.append(pad)
                L += g.flagcheck(0 if s == PS else 1); firstP[0 if s == PS else 2] = (len(progs), len(L) - 1)
                pad = I("", 'pad'); pad.c = 30; L.append(pad)
            L += toggles(s)
            if ty == 'C':
                n1 = newrow(s, 0, 2048)
                for d in range(4): L += [lo(PERS + 2*d, n1, d), hi(PERS + 2*d + 1, n1, d)]
            elif ty == 'D': nb, na = newrow(s, 0, 2048), newrow(s, 0, 3072); L += init2(na, nb)
            elif ty == 'E': na, nb = newrow(s, 0, 1024), newrow(s, 0, 2048); L += init2(na, nb)
            if ty == 'P' and (g.o.coop < 3 or s >= 7):
                for i, arr in ([(i, arr) for arr in range(2) for i in range(9)] if g.o.pm else [(i, arr) for i in range(9) for arr in range(2)]):
                    if 1:
                        rows.append(('park', 7 - PS + arr, 2 * i + s - 7) if g.o.pm else ('park', s - PS, 2 * i + arr)); n = len(rows) - 1
                        w = wr(s, i, arr, rr(n)); w.need.append((('v', rr(n)), ('R', n))); w.tag = ('use', n)
                        pad = I("", 'pad'); pad.c = 4
                        L += [w, pad]
            else:
                pat = g.o.kpat.split(',')[s - 1] if g.o.coop and s <= len(g.o.kpat.split(',')) else '.' * 9
                seq = []; mi_ = 0
                for ch in pat:
                    if ch == 'K': seq.append(('K', kctr[0])); kctr[0] += 1
                    else: seq.append((ty, mi_)); mi_ += 1
                assert mi_ == 9
                steps(L, s, seq)
            progs.append(L)
        last = {}
        for ps, L in enumerate(progs):
            for k, op in enumerate(L):
                if op.tag and op.tag[0] == 'use': last[op.tag[1]] = (ps, k); op.tag = None
        cur = {}; nxt = [0]
        def load(n):
            if rows[n][0] == 'park':
                L = g.parkop(rows[n][2], rr(n), False, rows[n][1]); L[-1].tag = (('v', rr(n)), ('R', n)); return L
            if rows[n][0] == 'k': _, base, const, imm = rows[n]
            else: base, const, imm = XBASE, 4096 * rows[n][1], rows[n][2]
            L = []; hit = [r for r in (XA, XA + 1) if cur.get(r) == (base, const)]
            if hit: r = hit[0]
            else:
                r = XA + nxt[0]
                L.append(I(f"v_add_u32 v{r}, {const}, v{base}", 'valu', rd=V(base), wr=V(r))); cur[r] = (base, const)
            nxt[0] = 1 - (r - XA)
            L.append(I(f"buffer_load_dwordx4 {vr(rr(n),4)}, v{r}, s[{SX}:{SX+3}], 0 offen offset:{imm}" + (g.o.kxflags + " ;k" if rows[n][0] == 'k' else (g.o.xlflags if rows[n][0] <= g.o.xlmax else "")), 'vload', rd=V(r), wr=V(rr(n), 4), tag=(('v', rr(n)), ('R', n))))
            return L
        head = []
        for n in range(NRAW): head += load(n)
        ins = {}
        prev = (0, -1)
        for n in range(NRAW, len(rows)):
            at = max(last[n - NRAW], prev)
            if rows[n][0] == 'park' and rows[n][1] in firstP: at = max(at, firstP[rows[n][1]])
            prev = at
            ins.setdefault(at, []).extend(load(n))
        res = []
        for ps, L in enumerate(progs):
            R = []
            for k, op in enumerate(L):
                R.append(op); R += ins.get((ps, k), [])
            res.append(R)
        return head, res
    def parkop(g, slot, reg, store, buf=0):
        L = []; B = SPS if store else SPK
        sc = [('s', B), ('s', 'scc')]
        if not store:
            tgt = buf * 73728 + slot * 1024
            if g.pkbase is None or not (-4096 <= tgt - g.pkbase <= 3072):
                g.pkbase = tgt + 4096
                L.append(I(f"s_add_u32 s{B}, s{SW}, {g.pkbase}\ns_addc_u32 s{B+1}, s{SW+1}, 0", 'salu', rd=sc, wr=sc, tag=(('s', 'scc'), 'park')))
            L.append(I(f"global_load_dwordx4 {vr(reg,4)}, v{PKA}, s[{B}:{B+1}] offset:{tgt-g.pkbase}{g.o.lflags}", 'vload', rd=V(PKA) + [('s', B), ('m', 'flagok')], wr=V(reg, 4), need=[(('m', 'ok', buf // 2 if g.o.coop == 3 else 0), 1)]))
            return L
        if slot % 8 == 0 and slot:
            L.append(I(f"s_add_u32 s{B}, s{B}, 8192\ns_addc_u32 s{B+1}, s{B+1}, 0", 'salu', rd=sc, wr=sc, tag=(('s', 'scc'), 'park')))
        if slot == 0 and not store:
            L.append(I(f"s_add_u32 s{B}, s{SW}, {buf*73728+4096}\ns_addc_u32 s{B+1}, s{SW+1}, 0", 'salu', rd=sc, wr=sc, tag=(('s', 'scc'), 'park')))
        off = (slot % 8) * 1024 - 4096
        if store: L.append(I(f"global_store_dwordx4 v{PKA}, {vr(reg,4)}, s[{B}:{B+1}] offset:{off}{g.o.kflags}", 'vstore4', rd=V(PKA) + V(reg, 4) + [('s', B)], wr=[('m', 'parkord')], tag=(('m', 'parkord', buf), slot)))
        else: L.append(I(f"global_load_dwordx4 {vr(reg,4)}, v{PKA}, s[{B}:{B+1}] offset:{off}{g.o.lflags}", 'vload', rd=V(PKA) + [('s', B), ('m', 'flagok')], wr=V(reg, 4), need=[(('m', 'ok', buf // 2 if g.o.coop == 3 else 0), 1)]))
        return L
    def flagload(g, n): return f"v_mov_b32 v{FLR}, 64\nglobal_load_dwordx4 {vr(FLR,4)}, v{FLR}, s[{SFL}:{SFL+1}] offset:{16*n} sc1"
    def flagcheck(g, n):
        red = f"v_and_b32 v{FLR}, v{FLR}, v{FLR+1}\nv_and_b32 v{FLR+2}, v{FLR+2}, v{FLR+3}\nv_and_b32 v{FLR}, v{FLR}, v{FLR+2}\ns_nop 1\nv_readfirstlane_b32 s35, v{FLR}\ns_nop 3\ns_cmp_eq_u32 s35, 64"
        t = f"{red}\ns_cbranch_scc1 L_flok{n}\ns_mov_b32 s33, 0\nL_flspin{n}:\ns_add_u32 s33, s33, 1\ns_cmp_gt_u32 s33, 0x40000\ns_cbranch_scc1 L_flok{n}\ns_sleep 8\n{g.flagload(n)}\ns_waitcnt vmcnt(0)\n{red}\ns_cbranch_scc0 L_flspin{n}\nL_flok{n}:"
        i = I(t, 'valu', rd=V(FLR, 4) + [('s', 'scc')], wr=V(FLR, 4) + [('s', 'scc'), ('m', 'flagok')], tag=(('s', 'scc'), 'flag'), need=[(('m', 'fl'), n)])
        j = I("", 'mark', rd=[('m', 'flagok')], wr=[('m', 'flagok')], tag=(('m', 'ok', n), 1)); j.c = 0
        return [i, j]
    def acc_copy(g, dst, src, tiles):
        L = []
        for t in tiles:
            for r in range(4):
                d = accreg(dst, t)[1] + r; s_ = accreg(src, t)[1] + r
                L.append(I(f"v_accvgpr_write_b32 a{d}, v{s_}", 'valu', rd=V(s_), wr=A(d), sym=('lin', ('a', d), [(('v', s_), 1)])))
        return L
    def acc_sub(g, dst, src, tiles):
        L = []
        for t in tiles:
            for r in range(4):
                d = accreg(dst, t)[1] + r; s_ = accreg(src, t)[1] + r
                L.append(I(f"v_sub_f32 v{d}, v{d}, v{s_}", 'valu', rd=V(d) + V(s_), wr=V(d), sym=('lin', ('v', d), [(('v', d), 1), (('v', s_), -1)])))
        return L
    def acc_addA(g, dst, vsrc, asrc, tiles):
        L = []
        for t in tiles:
            for r in range(4):
                s_ = accreg(asrc, t)[1] + r
                L.append(I(f"v_accvgpr_read_b32 v{ACT+r}, a{s_}", 'valu', rd=A(s_), wr=V(ACT + r), sym=('lin', ('v', ACT + r), [(('a', s_), 1)]), tag=(('m', 'fl'), None)))
            for r in range(4):
                d = accreg(dst, t)[1] + r; v_ = accreg(vsrc, t)[1] + r
                L.append(I(f"v_add_f32 v{d}, v{v_}, v{ACT+r}", 'valu', rd=V(v_) + V(ACT + r), wr=V(d), sym=('lin', ('v', d), [(('v', v_), 1), (('v', ACT + r), 1)])))
        return L
    def epi(g, st, j, F):
        L = []; q = QOF[st]; Gq = F + 4
        af, f = accreg(st, 2 * j); gg = f + 4
        R4 = range(4)
        if af == 'a':
            L += [I(f"v_accvgpr_read_b32 v{F+r}, a{f+r}", 'valu', rd=A(f+r), wr=V(F+r), sym=('use', ('a', f + r), (q, j, 0))) for r in R4]
            L += [I(f"v_accvgpr_read_b32 v{Gq+r}, a{gg+r}", 'valu', rd=A(gg+r), wr=V(Gq+r), sym=('use', ('a', gg + r), (q, j, 1))) for r in R4]
            if not g.o.fold:
                L += [I(f"v_mul_f32 v{F+r}, s{SC1}, v{F+r}", 'valu', rd=V(F+r), wr=V(F+r)) for r in R4]
                L += [I(f"v_mul_f32 v{Gq+r}, s{SC2}, v{Gq+r}", 'valu', rd=V(Gq+r), wr=V(Gq+r)) for r in R4]
        elif not g.o.fold:
            L += [I(f"v_mul_f32 v{F+r}, s{SC1}, v{f+r}", 'valu', rd=V(f+r), wr=V(F+r), sym=('use', ('v', f + r), (q, j, 0))) for r in R4]
            L += [I(f"v_mul_f32 v{Gq+r}, s{SC2}, v{gg+r}", 'valu', rd=V(gg+r), wr=V(Gq+r), sym=('use', ('v', gg + r), (q, j, 1))) for r in R4]
        u = g.o.fold and af == 'v'
        if u: assert F == f
        L += [I(f"v_med3_f32 v{F+r}, v{F+r}, -s{SCL}, s{SCL}", 'valu', rd=V(F+r), wr=V(F+r), sym=('use', ('v', f + r), (q, j, 0)) if u else None) for r in R4]
        L += [I(f"v_exp_f32 v{Gq+r}, v{Gq+r}", 'trans', rd=V(Gq+r), wr=V(Gq+r), sym=('use', ('v', gg + r), (q, j, 1)) if u else None) for r in R4]
        L += [I(f"v_exp_f32 v{F+r}, v{F+r}", 'trans', rd=V(F+r), wr=V(F+r)) for r in R4]
        L += [I(f"v_add_f32 v{Gq+r}, 1.0, v{Gq+r}", 'valu', rd=V(Gq+r), wr=V(Gq+r)) for r in R4]
        L += [I(f"v_fmac_f32 v{Gq+r}, v{F+r}, v{Gq+r}", 'valu', rd=V(Gq+r) + V(F+r), wr=V(Gq+r)) for r in R4]
        L += [I(f"v_rcp_f32 v{Gq+r}, v{Gq+r}", 'trans', rd=V(Gq+r), wr=V(Gq+r)) for r in R4]
        L += [I(f"v_fma_f32 v{F+r}, v{F+r}, v{Gq+r}, -v{Gq+r}", 'valu', rd=V(Gq+r) + V(F+r), wr=V(F+r)) for r in R4]
        L += [I(f"v_add_u32 v{Gq}, {4096*j}, v{SB}", 'valu', rd=V(SB), wr=V(Gq)),
              I(f"v_cvt_pk_bf16_f32 v{F}, v{F}, v{F+1}", 'valu', rd=V(F, 2), wr=V(F)),
              I(f"v_cvt_pk_bf16_f32 v{F+1}, v{F+2}, v{F+3}", 'valu', rd=V(F+2, 2), wr=V(F+1)),
              I(f"buffer_store_dwordx2 {vr(F,2)}, v{Gq}, s[{SO}:{SO+3}], 0 offen offset:{q*1024}{g.o.sflags}", 'vstore', rd=V(F, 2) + V(Gq))]
        return L
    def stamp(g, n):
        if not g.o.stamps or g.o.trace >= 0: return []
        return [I(f"s_memtime s[{SST+4*n}:{SST+4*n+1}]", 'salu'), I(f"s_memrealtime s[{SST+4*n+2}:{SST+4*n+3}]", 'salu')]
    def barrier(g, n):
        return g.stamp(n) + [I("s_waitcnt lgkmcnt(0)", 'lgkm0'), I("s_barrier", 'salu')]
    def body(g):
        M = g.mfmas(); NG = len(GROUPS); F = []
        head, prods = g.production()
        pre = []
        def stg(i, dh): return (16 if dh == 0 else 80) + 4 * i
        def xl(dh):
            L = []
            for i in range(9):
                r = XA + i % 2
                L.append(I(f"v_add_u32 v{r}, {4096*(i+1)}, v{XBASE}", 'valu', rd=V(XBASE), wr=V(r)))
                L.append(I(f"buffer_load_dwordx4 {vr(stg(i,dh),4)}, v{r}, s[{SX}:{SX+3}], 0 offen offset:{dh*256}{g.o.xlflags}", 'vload', rd=V(r), wr=V(stg(i, dh), 4)))
            return L
        def xw(dh): return [I(f"ds_write_b128 v{WA+i}, {vr(stg(i,dh),4)} offset:{dh*ARR}", 'dsw', rd=V(WA + i) + V(stg(i, dh), 4), need=[(('v', WA + i), ('WA', 0))]) for i in range(9)]
        pre += xl(0) + g.wloads(0)
        if g.o.pf: pre.append(I(f"buffer_load_dword v{PFD}, v{PFA}, s[28:31], 0 offen", 'vload', rd=V(PFA), wr=V(PFD)))
        pre += xl(1) + g.wloads(1)
        pre.append(I(g.late_setup, 'valu'))
        pre += xw(0)
        pre += g.barrier(1)
        if g.o.spin1: pre.append(I(g.spin(g.o.spin1, 'L_sp1'), 'lgkm0'))
        pre += [g.xread(0, c) for c in range(7)]
        F += g.spread(head, 4, 90)
        F += g.spread(xw(1), 56, 130, dl=g.P(0, 2, 3))
        B = [I("s_waitcnt lgkmcnt(0)", 'lgkm0'), I("s_barrier", 'salu')]
        for i in B: i.pos = g.P(0, 2, 6) + 0.2; i.c = 0; i.dl = g.P(0, 2, 6) + 1
        F += B
        for G in range(2, NG):
            if g.o.pm and G >= 69:
                if G == 69: F += g.spread(g.wloads(69) + g.wloads(70) + g.wloads(71), g.idx[(67, 0)] + 1, g.idx[(68, 2)], dl=g.idx[(68, 5)])
                continue
            F += g.spread(g.wloads(G), g.idx[(G - 2, 0)] + 1, (g.idx[(G - 2, g.o.wwin)] if g.o.wwin < 8 else g.idx[(G - 1, 0)]) - 2, dl=g.idx[(G - 1, 0)])
        for G in range(NG):
            s = GROUPS[G][0]; used = sorted({j + k for j in range(8) for k in taps(GROUPS[G][2])})
            lastg = (G % 8 == 7)
            if g.o.pm and G >= 70:
                for c in used:
                    op = g.xread(G, c)
                    op.pos = g.idx[(68, c)] + 2.5 + 4 * (G - 70) if c < 6 else g.idx[(G, c - 5)] + 8.5 + 6 * (G - 70)
                    op.dl = max(op.pos + 1, g.idx[(G, max(0, c - 3))] - 10); F.append(op)
                continue
            for c in used:
                if c >= 7:
                    op = g.xread(G, c)
                    op.pos = g.idx[(G, 0)] + 2 * (c - 7) + 0.5 if lastg else g.idx[(G, c - 7)] + 2.5
                    op.dl = g.idx[(G, c - 3)] - 10 if not lastg else g.idx[(G, 1)] + 2; F.append(op)
                elif G > 0:
                    op = g.xread(G, c)
                    p = g.idx[(G - 1, c + 1)] + 4.5
                    if G % 8 == 0: p = max(p, g.idx[(G - 1, 2)] + 1.5 + 2 * c)
                    op.pos = p; op.dl = max(p + 1, g.idx[(G, max(0, c - 3))] - 10); F.append(op)
            if lastg and s < 8:
                L = []
                for a in range(2):
                    op = 'v_add_u32' if (s + 1) % 2 else 'v_subrev_u32'
                    L.append(I(f"{op} v{RB+a}, {BUF}, v{RB+a}", 'valu', rd=V(RB + a), wr=V(RB + a), tag=(('v', RB + a), ('RB', s + 1))))
                L[0].pos = g.idx[(G, 1)] + 3.1; L[1].pos = g.idx[(G, 1)] + 4.1
                B = g.barrier(s + 2)
                for i in B: i.pos = g.idx[(G, 2)] + 0.2; i.c = 0
                for i in L + B: i.dl = g.idx[(G, 2)] + 1
                F += L + B
        if g.o.pf:
            D = g.o.pfd
            for n in range(1, 18 - D):
                a = I(f"s_mov_b32 s36, L_h{n+D}-L_pc", 'salu', wr=[('s', 36)])
                a2 = I(f"s_mov_b32 s30, {'L_h%d+128' % (n+D+1) if n + D + 1 < 18 else 'L_end'}-L_pc", 'salu', wr=[('s', 30)])
                b = I(f"buffer_load_dword v{PFD}, v{PFA}, s[28:31], s36 offen", 'vload', rd=V(PFA) + [('s', 36), ('s', 30)], wr=V(PFD))
                a.pos = g.idx[(4 * n, 6)] + 2; a2.pos = a.pos + 1; b.pos = a.pos + 2; F += [a, a2, b]
                a.tag = (('s', 36), ('C', n)); b.need = [(('s', 36), ('C', n))]
        if g.o.coop:
            if g.o.coop == 1: FL = [(0, 17, g.P(3, g.o.fbar), True, g.P(3, 7, 2) + g.o.fload)]
            elif g.o.coop == 2: FL = [(0, 9, g.P(4, 7, 2), False, g.P(5, 5))]
            else: FL = [(0, 9, g.P(g.o.fb1 // 8, g.o.fb1 % 8, 2), g.o.fb1 % 8 != 7, g.P(3, 5, 4)), (1, 9, g.P(g.o.fb2 // 8, g.o.fb2 % 8, 2), g.o.fb2 % 8 != 7, g.P(5, 5, 4))]
            for run, lastslot, pb, own, pl in FL:
                B = [I("s_nop 0", 'salu', rd=[('m', 'park'), ('m', 'parkord')], need=[(('m', 'parkord', run), lastslot)])]
                if own: B.append(I("s_barrier", 'salu'))
                for i in B: i.pos = pb + 0.1; i.c = 0; i.dl = pb + 1
                fs = I(f"global_store_dword v{VFO}, v{VFO}, s[{SFL}:{SFL+1}] offset:{16*run} sc1", 'vstore', rd=V(VFO)); fs.pos = pb + 1.2
                fl = I(g.flagload(run), 'vload', rd=V(FLR), wr=V(FLR, 4), tag=(('m', 'fl'), run)); fl.pos = pl
                F += B + [fs, fl]
        if g.o.extra:
            kind, n = g.o.extra[0], int(g.o.extra[1:])
            for s in (1, 2):
                L = []
                for q in range(n):
                    src = 244 + (q * 5) % 12; d = EPI + 4 + q % 8
                    if kind == 'v': L.append(I([f"v_lshlrev_b32 v{d}, 16, v{src}", f"v_and_b32 v{d}, s{SMASK}, v{src}", f"v_sub_f32 v{d}, v{EPI+4+(q+6)%8}, v{EPI+4+(q+7)%8}"][q % 3], 'valu'))
                    if kind == 'a': L.append(I(f"v_accvgpr_read_b32 v{d}, a{(q*7)%128}", 'valu'))
                    if kind == 'd': L.append(I(f"ds_read_b128 v[{EPI+4+4*(q%2)}:{EPI+7+4*(q%2)}], v{RB} offset:{(q*288)%30000}", 'dsr', rd=V(RB)))
                    if kind == 'g': L.append(I(f"buffer_load_dwordx4 v[{EPI+4+4*(q%2)}:{EPI+7+4*(q%2)}], v{WL}, s[{SW}:{SW+3}], s37 offen offset:{(q%4)*1024}{g.o.xflags}\ns_add_u32 s37, s37, {g.o.xstep}", 'vload'))
                F += g.spread(L, g.P(s, 0) - 40, g.P(s, 7))
        g.load = [0.0] * (len(M) + 8); g.levels = []
        g.account(F)
        def SP(*a, **k):
            L = g.spread(*a, **k); g.account(L); return L
        PP = lambda s, gr, j: g.P(s, gr, j) if j < 8 else g.P(s + (gr + 1) // 8, (gr + 1) % 8, j - 8)
        for j in range(8):
            F += SP(g.acc_copy(2, 0, [2 * j, 2 * j + 1]), PP(2, 7, j + 1) + 6, PP(2, 7, j + 2) + 6, dl=g.P(3, 0, j) - 3)
        F += SP(g.acc_copy(3, 0, range(16)), g.P(3, 0, 2), g.P(3, 3), dl=g.P(3, 4) - 4)
        F += SP(g.acc_sub(1, 0, range(16)), g.P(3, 3), g.P(3, 7), dl=g.P(4, 0))
        a0, a1 = g.P(4, 3, 2), g.P(5, 0, 5)
        for j in range(8):
            F += SP(g.acc_addA(0, 1, 2, [2 * j, 2 * j + 1]), a0 + (a1 - a0) * j / 8, a0 + (a1 - a0) * (j + 1) / 8, dl=g.P(5, 0, j) - 4)
        F += SP(g.acc_addA(1, 1, 3, range(0, g.o.a1split)), g.P(5, 0, 6), g.P(5, 4) - 10, dl=g.P(5, 4) - 4)
        if g.o.a1split < 16: F += SP(g.acc_addA(1, 1, 3, range(g.o.a1split, 16)), g.P(6, 0) + 8, g.P(6, 4) - 10, dl=g.P(6, 4) - 4)
        nE = g.o.nearly
        tl = [(0, j) for j in range(8)] + [(1, j) for j in range(8)]
        def inplace(st, j): return accreg(st, 2 * j)[1]
        if not g.o.coop: F += SP(sum((g.epi(st, j, inplace(st, j)) for st, j in tl[:nE]), []), g.P(6, 3, 2), g.P(7, 7, 2), dl=g.P(8, 0))
        for s in range(8):
            p0 = g.P(s, 0) + 134 if s == 0 else g.P(s - 1, 7, 2) + 1; p1 = g.P(s, 7, 1)
            if s >= {0: 99, 1: 4, 2: 6, 3: g.o.spfrom}[g.o.coop]: F += SP(prods[s], p0, p1, dl=g.P(s, 7, 2))
            else: F += g.fill(prods[s], p0, p1, dl=g.P(s, 7, 2))
        tail = g.stamp(10)
        if g.o.pm:
            F += g.fill(sum((g.epi(0, j, inplace(0, j)) for j in range(8)), []), g.P(6, 3, 2), g.P(7, 1, 0), dl=g.P(8, 0))
            F += g.fill(sum((g.epi(1, j, inplace(1, j)) for j in range(8)), []), g.P(7, 1, 0), g.P(7, 7, 4), dl=g.P(8, 1))
            F += g.fill(sum((g.epi(2, j, inplace(1, j)) for j in range(8)), []), g.P(7, 7, 4), g.P(8, 5, 1), dl=len(M))
            for j in range(8):
                L = g.epi(3, j, inplace(1, j))
                if j < 7: F += g.spread(L, g.P(8, 7, j + 1) + 3, (g.P(8, 7, j + 2) + 3 if j < 6 else len(M) - 2))
                else: tail += L
        else:
            if g.o.coop:
                F += g.fill(sum((g.epi(0, j, inplace(0, j)) for j in range(8)), []), g.P(6, 3, 2), g.P(7, 1, 0), dl=g.P(8, 0))
                F += g.fill(sum((g.epi(1, j, inplace(1, j)) for j in range(8)), []), g.P(7, 1, 0), g.P(8, 3, 2), dl=g.P(8, 4))
            else: F += g.fill(sum((g.epi(st, j, inplace(st, j)) for st, j in tl[nE:]), []), g.P(7, 7, 2), g.P(8, 3, 2), dl=g.P(8, 4))
            F += g.fill(sum((g.epi(2, j, inplace(0, j)) for j in range(8)), []), g.P(8, 3, 2), g.P(8, 7, g.o.y0end), dl=len(M))
            for j in range(8):
                L = g.epi(3, j, inplace(1, j))
                if j < g.o.y2in: F += g.spread(L, g.P(8, 7, g.o.y0end) + (len(M) - g.P(8, 7, g.o.y0end)) * j / g.o.y2in, g.P(8, 7, g.o.y0end) + (len(M) - g.P(8, 7, g.o.y0end)) * (j + 1) / g.o.y2in)
                else: tail += L
        sys.stderr.write(f"levels {g.levels}\n")
        F = [i for i in F if i.k != 'pad']
        if g.o.trace >= 0:
            for n in range(49):
                g.tr[g.o.trace + n * g.o.tstep] = n
        sk = g.o.skip
        if 'valu' in sk: F = [i for i in F if i.k not in ('valu', 'trans') or i.t.startswith('v_add_u32') or i.t.startswith('v_subrev_u32')]
        if 'wld' in sk: F = [i for i in F if not (i.k == 'vload' and 'global_load' in i.t)]
        if 'xld' in sk: F = [i for i in F if not (i.k == 'vload' and f's[{SX}:' in i.t)]
        if 'dsr' in sk: F = [i for i in F if i.k != 'dsr']
        if 'dsw' in sk: F = [i for i in F if i.k != 'dsw']
        if 'st' in sk: F = [i for i in F if i.k != 'vstore']
        if 'kst' in sk: F = [i for i in F if i.k != 'vstore4']
        if 'kld' in sk: F = [i for i in F if not i.t.endswith(';k')]
        if 'bar' in sk: F = [i for i in F if i.t != 's_barrier']
        for n, i in enumerate(F): i.seq = n
        F.sort(key=lambda i: (i.pos, i.seq))
        MEM = ('vload', 'dsr', 'dsw', 'dsw32', 'vstore', 'vstore4')
        def indep(x, skipped):
            xr, xw = set(x.rd), set(x.wr)
            for y in skipped:
                if y.k == 'lgkm0' or y.t == 's_barrier' or x.k == 'lgkm0' or x.t == 's_barrier': return False
                if xr & set(y.wr) or xw & set(y.rd) or xw & set(y.wr): return False
            return True
        gaps = []; Q = list(F); late = 0
        for mi, m in enumerate(M):
            gap = []
            if mi in g.tr and g.tr[mi] < 48: gap.append(I(f"s_memtime s[{92+2*(g.tr[mi]%2)}:{93+2*(g.tr[mi]%2)}]", 'salu'))
            if mi - 1 in g.tr and g.tr[mi - 1] > 0: gap.append(I(f"s_mov_b32 s{SST+g.tr[mi-1]-1}, s{92+2*((g.tr[mi-1]-1)%2)}", 'salu'))
            nready = 0; backlog = 0; force = 0
            while nready < len(Q) and Q[nready].pos < mi + 1:
                backlog += Q[nready].c
                if Q[nready].dl is not None and Q[nready].dl <= mi + 1: force = nready + 1
                nready += 1
            lim = 16 + (4 if backlog > g.o.backlog else 0) + (4 if backlog > 3 * g.o.backlog else 0)
            W = min(nready, g.o.look)
            taken = set()
            def pick(pred):
                sk = []
                for k in range(W):
                    if k in taken: continue
                    if pred(Q[k]) and indep(Q[k], sk): return k
                    sk.append(Q[k])
                return None
            while True:
                k = pick(lambda x: x.k in ('salu', 'lgkm0', 'mark'))
                if k is None or (gap and Q[k].k == 'salu' and Q[k].t != 's_barrier' and not Q[k].t.startswith('s_mem')): break
                gap.append(Q[k]); taken.add(k)
            vok = mi - g.lastv >= g.o.gsep
            k = pick(lambda x: x.k in MEM and (vok or x.k not in ('vload', 'vstore', 'vstore4')) and (x.k != 'dsw' or mi - g.lastdsw >= g.o.dswsep))
            if gap and (backlog >= 4 or (k is not None and Q[k].k == 'dsw32')): k = None
            if k is not None and (Q[k].k != 'dsw' or mi - g.lastdsw >= g.o.dswsep):
                gap.append(Q[k]); taken.add(k)
                if Q[k].k == 'dsw': g.lastdsw = mi
                if Q[k].k in ('vload', 'vstore', 'vstore4'): g.lastv = mi + {'vstore': g.o.xsep, 'vstore4': g.o.ysep}.get(Q[k].k, 0)
            while True:
                k = pick(lambda x: x.k in ('valu', 'trans'))
                if k is None or gapcost(gap + [Q[k]]) > lim: break
                gap.append(Q[k]); taken.add(k)
            for k in range(force):
                if k not in taken: gap.append(Q[k]); taken.add(k); late += 1
            Q = [x for k, x in enumerate(Q) if k not in taken] if taken else Q
            gaps.append(gap)
        sys.stderr.write(f"mfma {len(M)} fillers {len(F)} forced {late} leftover {len(Q)}\n")
        return pre, M, gaps, Q + tail
    def finalize(g, parts):
        pre, M, gaps, tail = parts
        segs = [list(pre)] + [list(x) for x in gaps]; segs[-1] += tail
        def linear():
            for k, sg in enumerate(segs):
                if k: yield M[k - 1]
                for i in sg: yield i
        tags = {('v', RB): ('RB', 0), ('v', RB + 1): ('RB', 0)}
        for i in range(9): tags[('v', WA + i)] = ('WA', 0)
        for i in linear():
            for r, t in i.need:
                assert g.o.skip or tags.get(r) == t, (i.t, r, t, tags.get(r))
            if i.tag: tags[i.tag[0]] = i.tag[1]
        if not g.o.skip:
            from collections import Counter
            val = {}; used = 0
            PTS = {0: ['11', '12', '21', '22'], 1: ['12', '13', '22', '23'], 2: ['21', '22', '31', '32'], 3: ['22', '23', '32', '33']}
            for i in linear():
                if not i.sym:
                    for r in i.wr: val.pop(r, None)
                    continue
                if i.sym[0] == 'mfma':
                    for n, r in enumerate(i.wr):
                        c = Counter(val[i.creads[n]]) if i.creads else Counter()
                        c[i.sym[1]] += 1; val[r] = c
                elif i.sym[0] == 'lin':
                    c = Counter()
                    for r, sg in i.sym[2]:
                        for kk, vv in val[r].items(): c[kk] += sg * vv
                    val[i.sym[1]] = c
                else:
                    q, j, h = i.sym[2]
                    want = {(pt, dh, kp, k, j, h): 1 for pt in PTS[q] for dh in range(2) for kp in range(4) for k in taps(pt)}
                    got = {kk: vv for kk, vv in val[i.sym[1]].items() if vv}
                    assert got == want, (i.t, q, j, h); used += 1
                    for r in i.wr: val.pop(r, None)
            assert used == 256
        vm = []; lg = []; nw = 0; floor = 0
        head = {}
        def handle(i, k, lst):
            nonlocal vm, lg, nw
            regs = set(i.rd) | set(i.wr)
            for name, q, T, Tmin, mx in (('vmcnt', vm, g.o.tvm, g.o.hvm, 63), ('lgkmcnt', lg, g.o.tlg, g.o.hlg, 15)):
                last = -1
                for n, (dst, sg) in enumerate(q):
                    if dst & regs: last = n
                if last < 0: continue
                if q[last][1] >= k or k == len(segs) - 1 or k < floor:
                    while len(q) - 1 - last > mx: last += 1
                    lst.append(I(f"s_waitcnt {name}({len(q)-1-last})", 'salu')); nw += 1
                else:
                    best = k
                    for c in range(k, max(floor - 1, k - 12, q[last][1] + Tmin - 1), -1):
                        cur = lst + rest if c == k else segs[c]
                        if c in head or gapcost([I('', 'salu')] + cur) == gapcost(cur): best = c; break
                    while last + 1 < len(q) and best - q[last + 1][1] >= T: last += 1
                    n = sum(1 for e in q[last + 1:] if e[1] < best)
                    while n > mx: last += 1; n -= 1
                    h = head.setdefault(best, {})
                    h[name] = min(n, h.get(name, 99))
                if name == 'vmcnt': vm = q[last + 1:]
                else: lg = q[last + 1:]
        for k in range(len(segs)):
            lst = []
            for n, i in enumerate(segs[k]):
                rest = segs[k][n:]
                handle(i, k, lst)
                lst.append(i)
                if i.k == 'lgkm0': lg = []; floor = k + 1
                if i.k == 'vload': vm.append((set(i.wr), k))
                if i.k in ('vstore', 'vstore4'): vm.append(({('m', 'park')} if i.k == 'vstore4' else set(), k))
                if i.k == 'dsr': lg.append((set(i.wr), k))
                if i.k in ('dsw', 'dsw32'): lg.append((set(), k))
            rest = []
            if k < len(M): handle(M[k], k, lst)
            segs[k] = lst
        for k, h in head.items():
            segs[k].insert(0, I("s_waitcnt " + " ".join(f"{a}({b})" for a, b in h.items()), 'salu')); nw += 1
        st = [0] * 9
        for G in range(len(GROUPS)):
            for k in range(g.idx[(G, 0)], g.idx[(G + 1, 0)]):
                if k + 1 < len(segs) - 1: st[G // 8] += gapcost(segs[k + 1])
        sys.stderr.write(f"model cycles {st} sum {sum(st)} tail {gapcost(segs[-1])}\n")
        if g.o.stall:
            for k in range(1, len(segs) - 1, g.o.stall): segs[k].append(I("s_nop 7", 'salu'))
        out = [i for i in linear() if i.k != 'mark']
        res = []; nn = 0
        isv = lambda k: k in ('valu', 'trans')
        for i in out:
            req = 0; dist = 0
            for p in reversed(res[-12:]):
                w = 0
                pw, prd = set(p.wr), set(p.rd)
                if isv(p.k) and i.k == 'mfma' and pw & set(i.rd): w = 2
                if p.k == 'mfma':
                    if isv(i.k) and pw & (set(i.rd) | set(i.wr)): w = 8
                    if i.k in ('vstore', 'vstore4', 'dsw', 'dsw32', 'vload', 'dsr') and pw & (set(i.rd) | set(i.wr)): w = 8
                    if isv(i.k) and set(p.creads) & set(i.wr): w = max(w, 3)
                if p.k == 'trans' and i.k != 'trans' and pw & set(i.rd): w = max(w, 1)
                if p.k == 'trans' and i.k == 'trans' and pw & set(i.rd): w = max(w, 1)
                if p.k in ('vstore', 'vstore4', 'dsw', 'dsw32') and isv(i.k) and prd & set(i.wr): w = max(w, 2)
                req = max(req, w - dist)
                dist += (int(p.t.split()[1]) + 1) if p.t.startswith('s_nop') else 1
            if req > 0: res.append(I(f"s_nop {req-1}", 'salu')); nn += 1
            res.append(i)
        sys.stderr.write(f"waits {nw} nops {nn} total {len(res)}\n")
        return res
    def dbgstamp(g, slot, inv, back, vt=240):
        if not g.o.dbg: return ""
        t = f"s_and_b32 s96, s2, 0x38\ns_cmp_lg_u32 s96, 0\ns_cbranch_scc1 L_dbg{slot}\ns_memrealtime s[96:97]\ns_load_dwordx2 s[98:99], s[0:1], 24\ns_waitcnt lgkmcnt(0)\n"
        if not back: t += "s_add_u32 s98, s98, 512\ns_addc_u32 s99, s99, 0\n"
        if inv: t += "s_not_b32 s96, s96\n"
        t += f"v_mov_b32 v{vt}, s96\nv_mov_b32 v{vt+1}, {4*slot}\ns_mov_b64 s[94:95], exec\ns_mov_b64 exec, 1\nglobal_atomic_umax v{vt+1}, v{vt}, s[98:99]\ns_mov_b64 exec, s[94:95]\nL_dbg{slot}:"
        return t
    def spin(g, ticks, lab):
        return (f"s_load_dwordx2 s[98:99], s[0:1], 32\ns_waitcnt lgkmcnt(0)\ns_add_u32 s98, s98, {100<<20}\ns_addc_u32 s99, s99, 0\ns_load_dword s95, s[98:99], 0\ns_waitcnt lgkmcnt(0)\n"
                f"{lab}:\ns_memrealtime s[96:97]\ns_waitcnt lgkmcnt(0)\ns_sub_u32 s96, s96, s95\ns_cmp_lt_u32 s96, {ticks}\ns_cbranch_scc1 {lab}")
    def main_kernel(g):
        E = g.out.append
        E(f".globl {KN}\n.p2align 8\n.type {KN},@function\n{KN}:")
        E("s_cmp_ge_u32 s2, 256\ns_cbranch_scc1 L_end")
        E(g.dbgstamp(2, True, True)); E(g.dbgstamp(3, False, True))
        if g.o.spin0: E(g.spin(g.o.spin0, 'L_sp0'))
        if g.o.stamps: E(f"s_memtime s[{SST}:{SST+1}]\ns_memrealtime s[{SST+2}:{SST+3}]")
        E("s_load_dwordx2 s[4:5], s[0:1], 0\ns_load_dwordx2 s[6:7], s[0:1], 16\ns_load_dwordx2 s[26:27], s[0:1], 32")
        if g.o.map == 0:
            E("s_and_b32 s30, s2, 7\ns_lshr_b32 s31, s2, 3\ns_and_b32 s32, s31, 3\ns_lshr_b32 s31, s31, 2\ns_lshl_b32 s30, s30, 3\ns_add_u32 s30, s30, s31")
        elif g.o.map == 3: E("s_and_b32 s31, s2, 7\ns_lshr_b32 s33, s2, 3\ns_mul_i32 s30, s31, 31\ns_add_u32 s30, s30, s33\ns_and_b32 s32, s30, 3\ns_lshr_b32 s30, s30, 2\ns_cmp_ge_u32 s30, 31\ns_addc_u32 s30, s30, 0\ns_cmp_eq_u32 s33, 31\ns_cbranch_scc0 L_map\ns_and_b32 s32, s31, 3\ns_lshr_b32 s30, s31, 2\ns_lshl_b32 s30, s30, 5\ns_add_u32 s30, s30, 31\nL_map:")
        elif g.o.map == 1:
            E("s_and_b32 s32, s2, 3\ns_lshr_b32 s30, s2, 2")
        else:
            E("s_and_b32 s32, s2, 1\ns_lshl_b32 s32, s32, 1\ns_bfe_u32 s31, s2, 0x10003\ns_add_u32 s32, s32, s31\ns_bfe_u32 s30, s2, 0x20001\ns_lshl_b32 s30, s30, 4\ns_lshr_b32 s31, s2, 4\ns_add_u32 s30, s30, s31")
        E("s_mov_b32 s3, s30\ns_lshr_b32 s33, s30, 5\ns_and_b32 s34, s30, 31\ns_lshl_b32 s34, s34, 18")
        E("s_mul_i32 s33, s33, 8192000")
        E("v_and_b32 v202, 15, v0\nv_bfe_u32 v203, v0, 4, 1\nv_lshrrev_b32 v204, 5, v0\nv_mul_u32_u24 v205, 9, v204")
        E("v_lshlrev_b32 v206, 12, v205\nv_lshlrev_b32 v207, 9, v203\nv_lshlrev_b32 v208, 4, v202")
        E(f"v_add3_u32 v206, v206, v207, v208\ns_sub_u32 s35, s34, {4*4096}\nv_add_u32 v{XBASE}, s35, v206")
        E("v_and_b32 v200, 63, v0\nv_lshrrev_b32 v201, 6, v0")
        E(f"s_lshl_b32 s36, s32, 2\nv_add_u32 v206, s36, v201\nv_mul_u32_u24 v206, {STREAM}, v206\nv_lshl_add_u32 v{WL}, v200, 4, v206")
        E(f"v_lshl_add_u32 v{PFA}, v200, 2, v201\nv_lshlrev_b32 v{PFA}, 7, v{PFA}")
        E(f"s_add_u32 s{SX+2}, s34, 262144\ns_min_u32 s{SX+2}, s{SX+2}, 8192000\ns_mov_b32 s{SX+3}, 0x20000\ns_mov_b32 s{SW+2}, {0x10000000 if g.o.stamps else 16*STREAM}\ns_mov_b32 s{SW+3}, 0x20000")
        E(f"s_getpc_b64 s[28:29]\nL_pc:\ns_mov_b32 s30, L_h{g.o.pfd+1}-L_pc+128\ns_mov_b32 s31, 0x20000\ns_mov_b32 s37, 0")
        E("s_waitcnt lgkmcnt(0)")
        E(f"s_add_u32 s{SX}, s4, s33\ns_addc_u32 s{SX+1}, s5, 0\ns_mov_b32 s{SW}, s26\ns_mov_b32 s{SW+1}, s27\ns_add_u32 s{SWO}, s26, 4096\ns_addc_u32 s{SWO+1}, s27, 0")
        T = []
        T.append(f"v_and_b32 v206, 7, v202\nv_mul_u32_u24 v206, {S2}, v206\nv_lshrrev_b32 v207, 3, v202\nv_mul_u32_u24 v207, {S1}, v207\nv_lshlrev_b32 v208, 4, v203\nv_add3_u32 v206, v206, v207, v208")
        for i in range(9):
            T.append(f"v_add_u32 v207, {i}, v205\nv_and_b32 v208, 7, v207\nv_mul_u32_u24 v208, 288, v208\nv_lshrrev_b32 v207, 3, v207\nv_lshlrev_b32 v207, 5, v207\nv_add3_u32 v{WA+i}, v206, v207, v208")
        T.append(f"v_bfe_u32 v206, v0, 5, 1\nv_mul_u32_u24 v206, {S2}, v206\nv_mul_u32_u24 v207, {S1}, v203\nv_lshlrev_b32 v208, 4, v202\nv_add3_u32 v{RB}, v206, v207, v208\nv_add_u32 v{RB+1}, {ARR}, v{RB}")
        T.append("v_lshrrev_b32 v206, 1, v202\nv_lshlrev_b32 v206, 15, v206\nv_and_b32 v207, 1, v202\nv_lshlrev_b32 v207, 9, v207\nv_lshlrev_b32 v208, 5, v201\nv_add3_u32 v206, v206, v207, v208")
        T.append(f"v_lshrrev_b32 v207, 4, v200\nv_lshlrev_b32 v207, 3, v207\ns_lshl_b32 s36, s32, 7\ns_add_u32 s36, s36, s34\nv_add3_u32 v{SB}, v206, v207, s36")
        T.append(f"s_mov_b32 s{SC1}, {hex(fb(2*1.4426950408889634))}\ns_mov_b32 s{SC2}, {hex(fb(-1.4426950408889634))}\ns_mov_b32 s{SCL}, {hex(fb(32.0))}\ns_mov_b32 s{SMASK}, 0xffff0000")
        T.append(f"s_add_u32 s{SO}, s6, s33\ns_addc_u32 s{SO+1}, s7, 0\ns_mov_b32 s{SO+2}, 8192000\ns_mov_b32 s{SO+3}, 0x20000")
        T.append(f"v_mul_u32_u24 v206, 18432, v201\nv_lshl_add_u32 v{PKA}, v200, 4, v206\ns_mul_i32 s36, s3, {4*73728}\ns_add_u32 s36, s36, {g.o.park0 << 20}\ns_add_u32 s{SW}, s26, s36\ns_addc_u32 s{SW+1}, s27, 0")
        if g.o.coop >= 2: T.append(f"s_and_b32 s36, s32, 1\ns_mul_i32 s36, s36, 73728\ns_lshr_b32 s35, s32, 1\ns_lshl_b32 s35, s35, 13\ns_add_u32 s36, s36, s35\ns_add_u32 s36, s36, 4096\ns_add_u32 s{SPS}, s{SW}, s36\ns_addc_u32 s{SPS+1}, s{SW+1}, 0")
        else: T.append(f"s_mul_i32 s36, s32, 73728\ns_add_u32 s36, s36, 4096\ns_add_u32 s{SPS}, s{SW}, s36\ns_addc_u32 s{SPS+1}, s{SW+1}, 0")
        T.append(f"s_lshl_b32 s36, s3, 7\ns_add_u32 s36, s36, {FLG0-64}\ns_add_u32 s{SFL}, s26, s36\ns_addc_u32 s{SFL+1}, s27, 0\ns_lshl_b32 s36, s32, 2\ns_add_u32 s36, s36, 64\nv_mov_b32 v{VFO}, s36")
        if g.o.coop >= 2: T.append(f"s_and_b32 s36, s32, 1\ns_lshl_b32 s36, s36, 8\ns_lshr_b32 s35, s32, 1\ns_lshl_b32 s35, s35, 14\ns_add_u32 s36, s36, s35\nv_add_u32 v{KA0}, s36, v{XBASE}")
        else: T.append(f"s_and_b32 s36, s32, 1\ns_lshl_b32 s36, s36, 8\nv_add_u32 v{KA0}, s36, v{XBASE}\ns_movk_i32 s35, -1024\ns_cmp_lt_u32 s32, 2\ns_cselect_b32 s36, 1024, s35\nv_add_u32 v{KB0}, s36, v{KA0}")
        g.late_setup = "\n".join(T)
        for i in g.finalize(g.body()): E(i.t)
        if g.o.stamps:
            n = 12
            E(f"s_mov_b32 s{SW}, s26\ns_mov_b32 s{SW+1}, s27\ns_mov_b32 s{SW+2}, 0x10000000")
            if g.o.trace < 0: E(f"s_waitcnt vmcnt(0)\ns_memtime s[{SST+44}:{SST+45}]\ns_memrealtime s[{SST+46}:{SST+47}]\ns_waitcnt lgkmcnt(0)")
            E(f"v_mbcnt_lo_u32_b32 v20, -1, 0\nv_mbcnt_hi_u32_b32 v20, -1, v20\nv_lshlrev_b32 v21, 4, v20\nv_sub_u32 v21, v{WL}, v21\ns_lshl_b32 s36, s32, 2\ns_mul_i32 s36, s36, {STREAM}\nv_subrev_u32 v21, s36, v21\nv_or_b32 v21, v21, v20")
            E("v_cmp_eq_u32 vcc, 0, v21\ns_and_saveexec_b64 s[90:91], vcc\ns_cbranch_execz L_end")
            E(f"s_mul_i32 s36, s2, {16*n}\ns_add_u32 s36, s36, {200<<20}")
            for k in range(n):
                for j in range(4): E(f"v_mov_b32 v{24+j}, s{SST+4*k+j}")
                E(f"buffer_store_dwordx4 v[24:27], v21, s[{SW}:{SW+3}], s36 offen offset:{16*k}\ns_nop 1")
        if g.o.dbg: E(g.dbgstamp(4, False, True)); E("s_waitcnt vmcnt(0)"); E(g.dbgstamp(5, False, True)); E(g.dbgstamp(6, True, True))
        if g.o.spinend: E("s_waitcnt vmcnt(0)"); E(g.spin(g.o.spinend, 'L_spe'))
        E("L_end:\ns_endpgm")
    def prep_kernel(g):
        E = g.out.append
        E(f".globl {PN}\n.p2align 8\n.type {PN},@function\n{PN}:")
        E("s_cmp_ge_u32 s2, 256\ns_cbranch_scc1 LP_end2")
        E(g.dbgstamp(0, True, False, 116))
        if g.o.spinend or g.o.spin0 or g.o.spin1:
            E(f"s_cmp_lg_u32 s2, 0\ns_cbranch_scc1 LP_ns\ns_memrealtime s[96:97]\ns_load_dwordx2 s[98:99], s[0:1], 32\ns_waitcnt lgkmcnt(0)\nv_mov_b32 v116, s96\nv_mov_b32 v117, {100<<20}\nglobal_store_dword v117, v116, s[98:99]\nLP_ns:")
        ps = lambda n: E(f"s_memtime s[{60+4*n}:{61+4*n}]\ns_memrealtime s[{62+4*n}:{63+4*n}]") if g.o.pstamps else None
        ps(0)
        E("s_load_dwordx2 s[4:5], s[0:1], 8\ns_load_dwordx2 s[6:7], s[0:1], 32\ns_load_dwordx2 s[40:41], s[0:1], 0")
        E("s_and_b32 s20, s2, 1\ns_bfe_u32 s21, s2, 0x50001\ns_lshr_b32 s22, s2, 6")
        E("v_lshrrev_b32 v4, 6, v0\nv_lshlrev_b32 v1, 18, v4\nv_bfe_u32 v2, v0, 5, 1\nv_lshlrev_b32 v2, 10, v2\nv_and_b32 v3, 31, v0\nv_lshlrev_b32 v3, 4, v3\nv_add3_u32 v1, v1, v2, v3")
        E("s_lshl_b32 s23, s20, 9\ns_lshl_b32 s24, s21, 13\ns_add_u32 s23, s23, s24\ns_lshl_b32 s25, s22, 20\ns_add_u32 s23, s23, s25\ns_sub_u32 s23, s23, 262144")
        E("v_readfirstlane_b32 s26, v4\nv_add_u32 v1, s23, v1\nv_add_u32 v2, 2048, v1\nv_add_u32 v3, 4096, v1\nv_add_u32 v4, 6144, v1")
        E("s_mul_i32 s26, s26, 4352\ns_mov_b32 s10, 3932160\ns_mov_b32 s11, 0x20000\ns_mov_b32 m0, s26")
        E("s_waitcnt lgkmcnt(0)")
        ps(1)
        E("s_mov_b32 s8, s4\ns_mov_b32 s9, s5")
        for i in range(4):
            E(f"buffer_load_dwordx4 v{1+i}, s[8:11], 0 offen lds")
            if i < 3: E("s_add_u32 m0, m0, 1088\ns_nop 0")
        E(f"s_mov_b32 s12, s6\ns_mov_b32 s13, s7\ns_mov_b32 s14, {16*STREAM}\ns_mov_b32 s15, 0x20000")
        if g.o.warm:
            E(f"s_getpc_b64 s[44:45]\nLP_pc:\ns_add_u32 s44, s44, {KN}-LP_pc\ns_addc_u32 s45, s45, 0\ns_mov_b32 s46, L_h3-{KN}\ns_mov_b32 s47, 0x20000")
            E("v_lshlrev_b32 v5, 7, v0\nbuffer_load_dword v116, v5, s[44:47], 0 offen")
            if g.o.map == 3: E("s_and_b32 s49, s2, 7\ns_lshr_b32 s50, s2, 3\ns_mul_i32 s48, s49, 31\ns_add_u32 s48, s48, s50\ns_and_b32 s52, s48, 3\ns_lshr_b32 s48, s48, 2\ns_cmp_ge_u32 s48, 31\ns_addc_u32 s48, s48, 0\ns_cmp_eq_u32 s50, 31\ns_cbranch_scc0 LP_map\ns_and_b32 s52, s49, 3\ns_lshr_b32 s48, s49, 2\ns_lshl_b32 s48, s48, 5\ns_add_u32 s48, s48, 31\nLP_map:")
            else: E("s_and_b32 s48, s2, 7\ns_lshr_b32 s49, s2, 5\ns_lshl_b32 s48, s48, 3\ns_add_u32 s48, s48, s49\ns_bfe_u32 s52, s2, 0x20003")
            E("s_lshr_b32 s49, s48, 5\ns_and_b32 s48, s48, 31\ns_lshl_b32 s48, s48, 18\ns_mul_i32 s49, s49, 8192000")
            E("s_add_u32 s40, s40, s49\ns_addc_u32 s41, s41, 0\ns_add_u32 s42, s48, 262144\ns_min_u32 s42, s42, 8192000\ns_mov_b32 s43, 0x20000")
            if g.o.warm == 1:
                E("s_lshl_b32 s49, s52, 7\ns_add_u32 s48, s48, s49\ns_sub_u32 s48, s48, 12288")
                E("v_lshrrev_b32 v6, 1, v0\nv_lshlrev_b32 v6, 12, v6\nv_and_b32 v7, 1, v0\nv_lshlrev_b32 v7, 9, v7\nv_add3_u32 v6, v6, v7, s48")
                E(f"buffer_load_dword v117, v6, s[40:43], 0 offen{g.o.wmflags}")
                for ch in g.o.wph: E(f"buffer_load_dword v117, v6, s[40:43], 0 offen offset:{1024*(int(ch)+1)}{g.o.wmflags}")
            else:
                E("s_lshl_b32 s49, s52, 16\ns_add_u32 s48, s48, s49\nv_add_u32 v6, s48, v5\nv_add_u32 v7, 0x8000, v6")
                if g.o.warm in (2, 4): E(f"buffer_load_dword v117, v6, s[40:43], 0 offen{g.o.wmflags}\nbuffer_load_dword v117, v7, s[40:43], 0 offen{g.o.wmflags}")
        E(f"v_lshrrev_b32 v3, 4, v0\nv_mul_u32_u24 v3, {STREAM}, v3\nv_and_b32 v4, 15, v0\nv_lshlrev_b32 v4, 4, v4\nv_add_u32 v3, v3, v4")
        E("s_lshr_b32 s27, s21, 4\ns_bfe_u32 s28, s21, 0x20001\ns_and_b32 s29, s21, 1\ns_lshl_b32 s29, s29, 1\ns_bfe_u32 s30, s21, 0x10003\ns_add_u32 s29, s29, s30\ns_lshl_b32 s29, s29, 8")
        E("v_add_u32 v3, s29, v3")
        E("v_bfe_u32 v1, v0, 3, 1\nv_mul_u32_u24 v1, 1088, v1\nv_bfe_u32 v2, v0, 2, 1\nv_lshlrev_b32 v2, 9, v2\nv_lshrrev_b32 v4, 4, v0\nv_lshlrev_b32 v4, 5, v4\nv_add3_u32 v1, v1, v2, v4\nv_and_b32 v2, 3, v0\nv_lshl_add_u32 v1, v2, 3, v1")
        E("s_mov_b32 s33, 0xffff0000")
        if g.o.coop: E(f"s_lshr_b32 s34, s2, 2\ns_lshl_b32 s34, s34, 7\ns_and_b32 s35, s2, 3\ns_lshl_b32 s35, s35, 2\ns_add_u32 s34, s34, s35\ns_add_u32 s34, s34, {FLG0}\nv_mov_b32 v118, s34\nv_mov_b32 v119, 0")
        E(f"s_mov_b32 s37, {hex(fb(2*1.4426950408889634))}\ns_cmp_eq_u32 s20, 0\ns_cselect_b32 s37, s37, {hex(fb(-1.4426950408889634))}")
        PTS9 = ['22', '23', '21', '12', '32', '13', '33', '31', '11']
        E("s_lshl_b32 s34, s28, 3\ns_lshl_b32 s35, s20, 2\ns_add_u32 s34, s34, s35\ns_add_u32 s34, s34, s22")
        E("s_mul_i32 s36, s28, 6\ns_mul_i32 s35, s20, 3\ns_add_u32 s36, s36, s35\ns_add_u32 s36, s36, s22")
        for n, pt in enumerate(PTS9):
            base = GOFF[(pt, 0, 0)]; dstr = GOFF[(pt, 1, 0)] - base
            E(f"s_mul_i32 s{80+n}, s27, {dstr}\ns_add_u32 s{80+n}, s{80+n}, s{36 if pt == '11' else 34}\ns_add_u32 s{80+n}, s{80+n}, {base-taps(pt)[0]}\ns_lshl_b32 s{80+n}, s{80+n}, 10")
        E(f"s_cmp_eq_u32 s22, 0\ns_cselect_b32 s88, {16*STREAM}, s88")
        E(f"s_waitcnt vmcnt({[0, 2 + len(g.o.wph), 3, 1, 3][g.o.warm]})\ns_barrier")
        ps(2)
        PK = {'11': 112, '13': 100, '31': 108, '33': 104}
        rawn = ['11', '13', '31', '33']; rawp = [PK[x] for x in rawn]
        st = lambda pt, o: E(f"buffer_store_dwordx4 v[{o}:{o+3}], v3, s[12:15], s{80+PTS9.index(pt)} offen{g.o.pflags}")
        for r in range(4):
            for hf in range(2): E(f"ds_read_b64_tr_b16 v[{rawp[r]+2*hf}:{rawp[r]+2*hf+1}], v1 offset:{r*4352+hf*2176}")
        g_ = lambda r: 8 + 8 * r
        def comb(pt, dst, x, y, o):
            for i in range(8): E(f"v_add_f32 v{dst+i}, v{x+i}, v{y+i}")
            for i in range(4): E(f"v_cvt_pk_bf16_f32 v{o+i}, v{dst+2*i}, v{dst+2*i+1}")
            st(pt, o)
        for r in range(4):
            E(f"s_waitcnt lgkmcnt({6-2*r})")
            if not g.o.fold: st(rawn[r], rawp[r])
            for i in range(4): E(f"v_lshlrev_b32 v{g_(r)+2*i}, 16, v{rawp[r]+i}\nv_and_b32 v{g_(r)+2*i+1}, s33, v{rawp[r]+i}")
            if g.o.fold:
                for i in range(8): E(f"v_mul_f32 v{g_(r)+i}, s37, v{g_(r)+i}")
                for i in range(4): E(f"v_cvt_pk_bf16_f32 v{rawp[r]+i}, v{g_(r)+2*i}, v{g_(r)+2*i+1}")
                st(rawn[r], rawp[r])
            if r == 1: comb('12', 40, g_(0), g_(1), 80)
            if r == 2: comb('21', 56, g_(0), g_(2), 84)
        if g.o.coop: E("global_store_dword v118, v119, s[6:7]\nglobal_store_dword v118, v119, s[6:7] offset:16")
        comb('32', 48, g_(2), g_(3), 88); comb('22', 72, 40, 48, 92); comb('23', 64, g_(1), g_(3), 96)
        if g.o.warm == 3: E(f"buffer_load_dword v117, v6, s[40:43], 0 offen{g.o.wmflags}\nbuffer_load_dword v117, v7, s[40:43], 0 offen{g.o.wmflags}")
        if g.o.warm == 4: E(f"s_waitcnt vmcnt({10 if g.o.coop else 9})\nbuffer_load_dword v117, v6, s[40:43], 0 offen sc1\nbuffer_load_dword v117, v7, s[40:43], 0 offen sc1")
        E("LP_end:")
        if g.o.pstamps:
            ps(3); E("s_waitcnt vmcnt(0)"); ps(4)
            E(f"s_waitcnt lgkmcnt(0)\ns_mov_b32 s14, 0x10000000\ns_mul_i32 s31, s2, 80\ns_add_u32 s31, s31, {210<<20}\nv_cmp_eq_u32 vcc, 0, v0\ns_and_saveexec_b64 s[50:51], vcc\ns_cbranch_execz LP_end2\nv_mov_b32 v3, 0")
            for k in range(5):
                for j in range(4): E(f"v_mov_b32 v{24+j}, s{60+4*k+j}")
                E(f"buffer_store_dwordx4 v[24:27], v3, s[12:15], s31 offen offset:{16*k}\ns_nop 1")
        if g.o.dbg: E("s_waitcnt vmcnt(0)"); E(g.dbgstamp(1, False, False, 116))
        E("LP_end2:\ns_endpgm")
    def emit(g):
        E = g.out.append
        E(f"; F(4,4) nested fast-FIR (Karatsuba x2) dilated conv + gated activation; generated by gen.py")
        E(f"; @launch kernel={PN} grid=(256,1,1) block=(256,1,1) lds=17408")
        E(f"; @launch kernel={KN} grid=(256,1,1) block=(256,1,1) lds={LDS_BYTES}")
        E('.amdgcn_target "amdgcn-amd-amdhsa--gfx950"\n.text')
        g.prep_kernel(); g.main_kernel()
        for n, nv, ao in ((PN, 120, 120), (KN, 512, 256)):
            E(f""".section .rodata,"a"
.p2align 6
.amdhsa_kernel {n}
  .amdhsa_next_free_vgpr {nv}
  .amdhsa_next_free_sgpr 100
  .amdhsa_accum_offset {ao}
  .amdhsa_group_segment_fixed_size 0
  .amdhsa_kernarg_size 40
  .amdhsa_user_sgpr_count 2
  .amdhsa_user_sgpr_kernarg_segment_ptr 1
  .amdhsa_system_sgpr_workgroup_id_x 1
  .amdhsa_float_denorm_mode_32 3
.end_amdhsa_kernel""")
        return "\n".join(x for x in g.out if x) + "\n"

if __name__ == '__main__':
    ap = argparse.ArgumentParser()
    ap.add_argument('-o', default='standalone__autoregressive_conv_wavernn__speech.s')
    ap.add_argument('--stamps', action='store_true'); ap.add_argument('--cap', type=int, default=2); ap.add_argument('--backlog', type=int, default=10)
    ap.add_argument('--tvm', type=int, default=80); ap.add_argument('--tlg', type=int, default=10)
    ap.add_argument('--wflags', default=''); ap.add_argument('--sflags', default='nt')
    ap.add_argument('--skip', default=''); ap.add_argument('--pf', type=int, default=1); ap.add_argument('--map', type=int, default=3); ap.add_argument('--look', type=int, default=16); ap.add_argument('--dswsep', type=int, default=6)
    ap.add_argument('--pm', type=int, default=1); ap.add_argument('--spfrom', type=int, default=5); ap.add_argument('--fb1', type=int, default=23); ap.add_argument('--fb2', type=int, default=39); ap.add_argument('--wph', default=''); ap.add_argument('--fold', type=int, default=1); ap.add_argument('--coop', type=int, default=0); ap.add_argument('--kpat', default='.........,..K...K...K.,K..K..K...K..,K..K.......'); ap.add_argument('--wmflags', default=''); ap.add_argument('--xlflags', default=''); ap.add_argument('--xlmax', type=int, default=9); ap.add_argument('--park0', type=int, default=16); ap.add_argument('--kxflags', default=''); ap.add_argument('--fbar', type=int, default=5); ap.add_argument('--fload', type=int, default=20); ap.add_argument('--fpad', type=int, default=50); ap.add_argument('--kflags', default='sc1'); ap.add_argument('--lflags', default='sc1'); ap.add_argument('--pstamps', action='store_true'); ap.add_argument('--gsep', type=int, default=3); ap.add_argument('--xsep', type=int, default=0); ap.add_argument('--ysep', type=int, default=0); ap.add_argument('--b32', type=int, default=0); ap.add_argument('--a1split', type=int, default=16); ap.add_argument('--warm', type=int, default=1, choices=[0, 1, 2, 3, 4]); ap.add_argument('--pflags', default=''); ap.add_argument('--pfd', type=int, default=2); ap.add_argument('--snake', type=int, default=1); ap.add_argument('--nearly', type=int, default=9); ap.add_argument('--y0end', type=int, default=2); ap.add_argument('--y2in', type=int, default=4); ap.add_argument('--wwin', type=int, default=6); ap.add_argument('--extra', default=''); ap.add_argument('--xflags', default=''); ap.add_argument('--xstep', type=int, default=1024); ap.add_argument('--dbg', action='store_true'); ap.add_argument('--spinend', type=int, default=0); ap.add_argument('--spin0', type=int, default=0); ap.add_argument('--spin1', type=int, default=0); ap.add_argument('--stall', type=int, default=0); ap.add_argument('--hvm', type=int, default=48); ap.add_argument('--hlg', type=int, default=8); ap.add_argument('--trace', type=int, default=-1); ap.add_argument('--tstep', type=int, default=8)
    o = ap.parse_args()
    o.skip = [x for x in o.skip.split(',') if x]
    if o.coop == 3 and o.kpat.count('K') == 9: o.kpat = '.........,.......K..,.K..K..K..K..,...K...K...,..K..K..K...'; o.fpad = 2
    if o.coop == 2 and o.kpat.count('K') == 9: o.kpat = '.........,.........,....K...K..,.K..K...K...'; o.fpad = 2; o.a1split = 4
    if o.wflags: o.wflags = ' ' + o.wflags
    if o.xflags: o.xflags = ' ' + o.xflags
    if o.pflags: o.pflags = ' ' + o.pflags
    if o.kflags: o.kflags = ' ' + o.kflags
    if o.lflags: o.lflags = ' ' + o.lflags
    if o.kxflags: o.kxflags = ' ' + o.kxflags
    if o.xlflags: o.xlflags = ' ' + o.xlflags
    if o.wmflags: o.wmflags = ' ' + o.wmflags
    if o.sflags: o.sflags = ' ' + o.sflags
    if o.coop < 2: o.pm = 0
    build_tables(o.pm)
    open(o.o, 'w').write(Gen(o).emit())
```

```python
import numpy as np, itertools
np.set_printoptions(linewidth=220, precision=5, suppress=True)
NAMES = ['A', 'B', 'C1', 'C2', 'U', 'P1', 'P2', 'S1', 'S2', 'Z', 'I']
def make(a, v1, v2):
    b = 1 / a; sg = -(a + b)
    e = np.eye(9)
    z = lambda k: e[k] + sg * e[k+1] + e[k+2]
    s = lambda k: sum((-1)**(5-i) * e[k+i] for i in range(6))
    a2, b2 = z(4) - z(1), z(5) - z(2)
    a1, b1 = a2 - 2 * (z(3) - z(2)), b2 - 2 * (z(4) - z(3))
    R1 = np.array([[1,0,-1,1,0],[0,1,-1,0,1]], float)
    R2 = np.array([[1,0,-1,-1,0],[0,1,1,0,-1]], float)
    BT = {}; AT = {}
    BT['A'] = s(2) - b * s(1); BT['B'] = s(2) - a * s(1); BT['U'] = z(1) + z(3) + z(5)
    BT['Z'] = s(0) + sg * s(1) + s(2); BT['I'] = s(1) + sg * s(2) + s(3)
    AT['A'] = np.array([a**q for q in range(5)]); AT['B'] = np.array([b**q for q in range(5)]); AT['U'] = np.ones(5)
    AT['Z'] = np.eye(5)[0]; AT['I'] = np.eye(5)[4]
    for n, (x, y, R, v) in enumerate(((a1, b1, R1, v1), (a2, b2, R2, v2))):
        sgn, perm, cs = v
        ins = [x, y, x + cs * y]
        for nm, k in zip(('C', 'P', 'S'), perm): BT[f'{nm}{n+1}'] = ins[k]
        AT[f'C{n+1}'] = R[0] + sgn * R[1]; AT[f'P{n+1}'] = R[0]; AT[f'S{n+1}'] = R[1]
    ATm = np.array([AT[n] for n in NAMES]).T; BTm = np.array([BT[n] for n in NAMES])
    Mx = np.array([[ATm[q, p] * BTm[p, c] for p in range(11)] for q in range(5) for c in range(9)])
    rhs = np.array([[1.0 if c == q + r else 0.0 for r in range(5)] for q in range(5) for c in range(9)])
    G, *_ = np.linalg.lstsq(Mx, rhs, rcond=None)
    if np.abs(Mx @ G - rhs).max() > 1e-9: return None
    return ATm, G, BTm
def amp(AT, G, BT): return np.sqrt(np.array([sum(AT[q,p]**2 * (BT[p]**2).sum() * (G[p]**2).sum() * 2 for p in range(11)) for q in range(5)]) / 5)
if __name__ == '__main__':
    vs = [(sg, pm, cs) for sg in (1,-1) for pm in itertools.permutations(range(3)) for cs in (1,-1)]
    for a in (-1.5, -4/3, -1.4, -2):
        res = []
        for v1 in vs:
            for v2 in vs:
                r = make(a, v1, v2)
                if r: res.append((amp(*r).max(), (amp(*r)**2).mean()**.5, v1, v2))
        res.sort(key=lambda t: t[1]); print(a, len(res), res[:4])
    AT, G, BT = make(-1.5, res[0][2], res[0][3]); print(AT); print(BT); print(G); print(amp(AT,G,BT))
```

```python
import sys, struct, argparse, os
import numpy as np
sys.path.insert(0, os.path.dirname(os.path.abspath(__file__)))
import alg
KN = "standalone__autoregressive_conv_wavernn__speech_kernel"
PN = "prep_kernel"
fb = lambda f: struct.unpack('<I', struct.pack('<f', float(f)))[0]
hx = lambda f: hex(fb(f))
LOG2E = 1.4426950408889634

AA = -1.5; BB = 1 / AA; SIG = -(AA + BB)
NAMES = alg.NAMES
AT, GM, BT = alg.make(AA, (-1, (2, 0, 1), 1), (1, (2, 0, 1), -1))
ix = {n: i for i, n in enumerate(NAMES)}
basis = np.array([AT[:, ix[n]] for n in ('U', 'P1', 'S1', 'P2', 'S2')]).T
for n in ('A', 'B'):
    c = np.linalg.solve(basis, AT[:, ix[n]]); AT[:, ix[n]] /= c[0]; GM[ix[n]] *= c[0]
CA = np.linalg.solve(basis, AT[:, ix['A']]); CB = np.linalg.solve(basis, AT[:, ix['B']])
GM[np.abs(GM) < 1e-12] = 0

J, NT, NS_, NG = 7, 3, 11, 88
SV = 1056; BUF = 60 * SV; LDS_BYTES = 2 * BUF
STREAM = NG * 6 * 1024
NV = 1602; TPB = NV * 1024
T0 = 16 << 20
NWG = 232; NWP = 192; NTP = 801
SETOF = {'A': 0, 'B': 1, 'C1': 2, 'C2': 3, 'U': 4, 'P1': 2, 'P2': 3, 'S1': 1, 'S2': 0, 'Z': 2, 'I': 0}
FRESH = ('A', 'B', 'C1', 'C2')

def R(f, n, c=1): return [(f, n + i) for i in range(c)]
def V(n, c=1): return R('v', n, c)
def A(n, c=1): return R('a', n, c)
def rr(f, n, c): return f"{f}[{n}:{n+c-1}]"
class I:
    __slots__ = ('t', 'k', 'rd', 'wr', 'c', 'need', 'tag', 'pos', 'dl', 'seq', 'creads', 'sym')
    def __init__(s, t, k, rd=(), wr=(), need=None, tag=None, creads=(), sym=None):
        s.t = t; s.k = k; s.rd = list(rd); s.wr = list(wr); s.need = need or []; s.tag = tag; s.sym = sym
        s.c = {'trans': 2, 'salu': 0, 'vstore': 2}.get(k, 1); s.pos = None; s.dl = None; s.creads = list(creads)
def gapcost(gap):
    t = 4; sawv = False; pg = False
    for i in gap:
        if i.k in ('valu', 'trans'): t = max(t, 8) + (8 if i.k == 'trans' else 4) + (4 if pg and t == 12 else 0); sawv = True
        elif i.k in ('vload', 'dma', 'dsr', 'vstore'): t += 8 + (8 if sawv else 0)
        else: t += 4 * (1 + i.t.count('\n'))
        pg = i.k == 'vstore' or 's36 offen' in i.t
    return max(t, 16)

SB, RB, WL, DA, PFA, PFD, TM, EP = 0, 1, 3, 4, 8, 9, 10, 16
def acc(st, t): return ('a', 4 * t) if st == 4 else ('v', 32 + 56 * st + 4 * t)
ST, SO, SWO, SCL, SWB, SK = 8, 16, 20, 22, 23, 60
SST = 40 - 0

class Gen:
    def __init__(g, o): g.o = o; g.out = []; g.lastv = -99
    def wr_(g, G, n): return 'a', 56 + (G % g.o.nring) * 24 + 4 * n
    def xr_(g, G, c):
        e = G - (NG - g.o.ns + 1)
        if e >= 0: return 'a', 212 + e * 20 + (c % 5) * 4
        return 'a', 176 + 4 * c
    def mfmas(g):
        M = []; g.idx = {}
        units = [[G] for G in range(NG - g.o.ns)] + [list(range(NG - g.o.ns, NG))]
        for U in units:
            pt = NAMES[U[0] // 8]; st = SETOF[pt]; first = U[0] % 8 == 0 and pt in FRESH
            for j in range(J):
                for G in U: g.idx[(G, j)] = len(M)
                for hi, h in enumerate((0, 1) if j % 2 == 0 else (1, 0)):
                    order = [(G, k) for G in U for k in range(NT)]
                    if hi: order.reverse()
                    for n, (G, k) in enumerate(order):
                        af, a = acc(st, 2 * j + h); wf, w = g.wr_(G, h * NT + k); xf, x = g.xr_(G, j + k)
                        cs, cr = ('0', []) if first and n == 0 else (rr(af, a, 4), R(af, a, 4))
                        M.append(I(f"v_mfma_f32_16x16x32_bf16 {rr(af,a,4)}, {rr(wf,w,4)}, {rr(xf,x,4)}, {cs}", 'mfma', rd=R(wf, w, 4) + R(xf, x, 4) + cr, wr=R(af, a, 4),
                                   creads=cr, sym=('mfma', (pt, G % 8, k, j, h)), need=[((wf, w), ('W', G, h, k)), ((xf, x), ('X', G, j + k))]))
        g.idx[(NG, 0)] = len(M)
        for s in range(NS_): M[g.idx[(8 * s, 0)]].t = f"L_h{s}:\n" + M[g.idx[(8 * s, 0)]].t
        return M
    def P(g, s, gr=0, j=0):
        G = s * 8 + gr + j // J; return g.idx[(G, j % J)]
    def wloads(g, G):
        L = []
        for n in range(6):
            f = G * 6 + n
            if f % 8 == 0 and f: L.append(I(f"s_add_u32 s{SWO}, s{SWO}, 8192\ns_addc_u32 s{SWO+1}, s{SWO+1}, 0", 'salu', rd=[('s', SWO)], wr=[('s', SWO)]))
            wf, w = g.wr_(G, n)
            L.append(I(f"global_load_dwordx4 {rr(wf,w,4)}, v{WL}, s[{SWO}:{SWO+1}] offset:{(f%8)*1024-4096}{g.o.wflags}", 'vload', rd=V(WL) + [('s', SWO)], wr=R(wf, w, 4), tag=((wf, w), ('W', G, n // NT, n % NT))))
        return L
    def xread(g, G, c):
        s = G // 8; xf, x = g.xr_(G, c)
        return I(f"ds_read_b128 {rr(xf,x,4)}, v{RB+s%2} offset:{c*SV+(G%8)*32}", 'dsr', rd=V(RB + s % 2), wr=R(xf, x, 4), tag=((xf, x), ('X', G, c)), need=[(('m', 'buf', s % 2), s)])
    def dmas(g, s):
        L = []
        if s: L.append(I(f"s_add_u32 s{ST}, s{ST}, {2*TPB}\ns_addc_u32 s{ST+1}, s{ST+1}, 0", 'salu', rd=[('s', ST)], wr=[('s', ST)]))
        for n in range(15):
            L.append(I(f"s_add_u32 m0, s{SWB}, {(s%2)*BUF + n*SV - (n%4)*1024}", 'salu', wr=[('s', 'm0')]))
            L.append(I(f"buffer_load_dwordx4 v{DA+n//4}, s[{ST}:{ST+3}], 0 offen offset:{(n%4)*1024}{g.o.tflags} lds", 'dma', rd=V(DA + n // 4) + [('s', 'm0'), ('s', ST)], wr=[('m', 'dmaord')],
                       tag=(('m', 'buf', s % 2), ('fill', s, n)), need=[(('m', 'free', s % 2), s)]))
        return L
    def barrier(g, s):
        L = []
        if g.o.stamps and g.o.trace < 0 and s < 10: L += [I(f"s_memtime s[{g.sst(s+1)}:{g.sst(s+1)+1}]", 'salu'), I(f"s_memrealtime s[{g.sst(s+1)+2}:{g.sst(s+1)+3}]", 'salu')]
        L += [I("s_nop 0", 'salu', rd=[('m', 'dma'), ('m', 'dmaord')], need=[(('m', 'buf', s % 2), ('fill', s, 14))]),
              I("s_waitcnt lgkmcnt(0)", 'lgkm0', tag=(('m', 'buf', s % 2), s)), I("s_barrier", 'salu', tag=(('m', 'free', (s + 1) % 2), s + 1))]
        return L
    def sst(g, n): return (40 + 4 * n) if n < 5 else (68 + 4 * (n - 5))
    def spread(g, L, p0, p1, dl=None):
        tot = sum(i.c for i in L); a = 0
        for i in L: i.pos = p0 + (p1 - p0) * a / max(tot, 1); a += i.c; i.dl = dl
        for i in L:
            for q in range(-3, 4):
                if 0 <= int(i.pos) + q < len(g.load): g.load[int(i.pos) + q] += i.c / 7.0
        return L
    def fill(g, L, p0, p1, dl=None):
        p0 = int(p0 + 0.999); p1 = int(p1); tot = sum(i.c for i in L); lo, hi = 0.0, 20.0
        for _ in range(50):
            lam = (lo + hi) / 2
            if sum(max(0.02, lam - g.load[m]) for m in range(p0, p1)) > tot: hi = lam
            else: lo = lam
        room = [max(0.02, hi - g.load[m]) for m in range(p0, p1)]; m = 0; a = 0; base = 0.0
        for i in L:
            while m < len(room) - 1 and base + room[m] <= a: base += room[m]; m += 1
            i.pos = p0 + m + min(0.99, (a - base) / room[m]); i.dl = dl; a += i.c
        for k, r in enumerate(room): g.load[p0 + k] += r
        g.levels.append((p0, p1, round(hi, 2))); return L
    def lin(g, text, d, terms, df='v'):
        return I(text, 'valu', rd=[r for r, c in terms], wr=[(df, d)], sym=('lin', (df, d), terms))
    def add(g, d, a, b, sg=1): return g.lin(f"{'v_add_f32' if sg > 0 else 'v_sub_f32'} v{d}, v{a}, v{b}", d, [(('v', a), 1), (('v', b), sg)])
    def rdU(g, d, n): return g.lin(f"v_accvgpr_read_b32 v{d}, a{n}", d, [(('a', n), 1)])
    def fmac(g, d, k, a): return g.lin(f"v_fmac_f32 v{d}, s{SK+k}, v{a}", d, [(('v', d), 1), (('v', a), g.K[k])])
    def fma(g, d, k, a, c, sg=1): return g.lin(f"v_fma_f32 v{d}, s{SK+k}, v{a}, {'-' if sg < 0 else ''}v{c}", d, [(('v', c), sg), (('v', a), g.K[k])])
    def regs(g, n): return [32 + 56 * st + n for st in range(4)]
    def inter(g, progs, w=2):
        L = []
        for i in range(0, len(progs), w):
            for ops in zip(*progs[i:i + w]): L += list(ops)
        return L
    def initU(g):
        P = []
        for n in range(56):
            v = g.regs(n); t = TM + n % 4
            P.append([g.add(t, v[0], v[1]), g.lin(f"v_accvgpr_write_b32 a{n}, v{t}", n, [(('v', t), 1)], 'a')])
        return g.inter(P)
    def mix(g):
        P = []
        for n in range(56):
            al, be, c1, c2 = g.regs(n); t1 = TM + 2 * (n % 2); t2 = t1 + 1
            P.append([g.fma(t1, 2, al, c1, -1), g.fma(t2, 7, be, c2), g.fmac(c1, 0, al), g.fmac(c2, 4, al), g.fmac(c1, 1, be), g.fmac(c2, 5, be), g.fma(al, 6, al, t2), g.fma(be, 3, be, t1)])
        return g.inter(P)
    def splitP(g, j, F):
        P = []
        for n in range(8 * j, 8 * j + 8):
            _, _, p1, p2 = g.regs(n); t = TM + 2 * (n % 2); w = t + 1; f = F + n % 8
            P.append([g.rdU(t, n), g.add(f, p1, p2, -1), g.add(w, p1, p2), g.add(f, f, t), g.add(p1, t, w), g.add(p2, t, w, -1)])
        return g.inter(P)
    def useS1(g):
        P = []
        for n in range(56):
            _, s1, _, p2 = g.regs(n); t = TM + n % 4
            P.append([g.rdU(t, n), g.add(p2, p2, s1, -1), g.add(s1, s1, t)])
        return g.inter(P)
    def useS2(g, j):
        P = []
        for n in range(8 * j, 8 * j + 8):
            s2, e1, _, p2 = g.regs(n)
            P.append([g.add(p2, p2, s2), g.add(e1, e1, s2), g.lin(f"v_fma_f32 v{s2}, -2.0, v{s2}, v{e1}", s2, [(('v', e1), 1), (('v', s2), -2)])])
        return g.inter(P, 4)
    def epi(g, q, j, F):
        L = []; Gq = F + 4; R4 = range(4)
        L += [I(f"v_med3_f32 v{F+r}, v{F+r}, -s{SCL}, s{SCL}", 'valu', rd=V(F+r), wr=V(F+r), sym=('use', ('v', F + r), (q, j, 0))) for r in R4]
        L += [I(f"v_exp_f32 v{Gq+r}, v{Gq+r}", 'trans', rd=V(Gq+r), wr=V(Gq+r), sym=('use', ('v', Gq + r), (q, j, 1))) for r in R4]
        L += [I(f"v_exp_f32 v{F+r}, v{F+r}", 'trans', rd=V(F+r), wr=V(F+r)) for r in R4]
        L += [I(f"v_add_f32 v{Gq+r}, 1.0, v{Gq+r}", 'valu', rd=V(Gq+r), wr=V(Gq+r)) for r in R4]
        L += [I(f"v_fmac_f32 v{Gq+r}, v{F+r}, v{Gq+r}", 'valu', rd=V(Gq+r) + V(F+r), wr=V(Gq+r)) for r in R4]
        L += [I(f"v_rcp_f32 v{Gq+r}, v{Gq+r}", 'trans', rd=V(Gq+r), wr=V(Gq+r)) for r in R4]
        L += [I(f"v_fma_f32 v{F+r}, v{F+r}, v{Gq+r}, -v{Gq+r}", 'valu', rd=V(Gq+r) + V(F+r), wr=V(F+r)) for r in R4]
        L += [I(f"v_add_u32 v{Gq}, {(10*j+2*q)*512}, v{SB}", 'valu', rd=V(SB), wr=V(Gq)),
              I(f"v_cvt_pk_bf16_f32 v{F}, v{F}, v{F+1}", 'valu', rd=V(F, 2), wr=V(F)),
              I(f"v_cvt_pk_bf16_f32 v{F+1}, v{F+2}, v{F+3}", 'valu', rd=V(F+2, 2), wr=V(F+1)),
              I(f"buffer_store_dwordx2 {rr('v',F,2)}, v{Gq}, s[{SO}:{SO+3}], 0 offen{g.o.sflags}", 'vstore', rd=V(F, 2) + V(Gq))]
        return L
    def body(g):
        o = g.o; M = g.mfmas(); F = []; g.load = [0.0] * (len(M) + 8); g.levels = []
        g.K = [CA[1], CB[1], CA[2], CB[2], CA[3], CB[3], CA[4], CB[4]]
        NR = o.nring; SG = NG - o.ns
        pre = g.wloads(0) + g.dmas(0) if o.wfirst else g.dmas(0) + g.wloads(0)
        pre.append(I(f"buffer_load_dword v{PFD}, v{PFA}, s[28:31], 0 offen", 'vload', rd=V(PFA), wr=V(PFD)))
        for G in range(1, o.wpre): pre += g.wloads(G)
        pre.append(I(g.late, 'valu'))
        pre += g.barrier(0) + [g.xread(0, c) for c in range(6)]
        wend = 1
        for G in range(o.wpre, NG):
            w0 = max(wend, g.idx[(max(G - NR + 1, 0), 0)] + 1); wend = w0 + o.wwin
            F += g.spread(g.wloads(G), w0, wend, dl=min(g.idx[(G - 1, 0)], g.idx[(SG - 1, 4)]))
        for G in range(NG):
            s = G // 8; lastg = G % 8 == 7 and s < NS_ - 1
            for c in range(9):
                if G == 0 and c < 6: continue
                op = g.xread(G, c)
                if G > SG:
                    e = G - SG
                    op.pos = g.idx[(SG - 1, c)] + 1.5 + 2 * e if c < 5 else g.idx[(G, c - 4)] + 2.5 + 5 * e
                    op.dl = max(op.pos + 1, g.idx[(G, max(0, c - 2))] - 8)
                elif c >= 6:
                    op.pos = g.idx[(G, 0)] + 2 * (c - 6) + 0.5 if lastg else g.idx[(G, c - 6)] + 1.5
                    op.dl = g.idx[(G, 1)] + 2 if lastg else g.idx[(G, c - 2)] - 8
                else:
                    p = g.idx[(G - 1, c + 1)] + 3.5
                    if G % 8 == 0: p = max(p, g.idx[(G - 1, 2)] + 4.5 + 2 * c)
                    op.pos = p; op.dl = max(p + 1, g.idx[(G, max(0, c - 2))] - 8)
                g.load[int(op.pos)] += 1; F.append(op)
            if lastg:
                B = g.barrier(s + 1)
                for i in B: i.pos = g.idx[(G, 2)] + 3.2; i.c = 0; i.dl = g.idx[(G, 2)] + 4
                F += B
        for s in range(1, NS_):
            p0 = o.dma0 if s == 1 else g.P(s - 2, 7, 2) + 6
            F += g.spread(g.dmas(s), p0, p0 + o.dwin, dl=g.P(s - 1, 6))
        for n in range(0, NS_ - 2):
            a = I(f"s_mov_b32 s36, L_h{n+2}-L_pc", 'salu', wr=[('s', 36)])
            a2 = I(f"s_mov_b32 s30, {'L_h%d+128' % (n+3) if n + 3 < NS_ else 'L_end'}-L_pc", 'salu', wr=[('s', 30)])
            b = I(f"buffer_load_dword v{PFD}, v{PFA}, s[28:31], s36 offen", 'vload', rd=V(PFA) + [('s', 36), ('s', 30)], wr=V(PFD))
            a.pos = g.P(n, 6); a2.pos = a.pos + 1; b.pos = a.pos + 2; F += [a, a2, b]
        inp = lambda st, j: acc(st, 2 * j)[1]
        F += g.fill(g.initU(), g.P(2) + 8, g.P(3, 6), dl=g.P(4) - 4)
        F += g.fill(g.mix(), g.P(4) + 8, g.P(5) - 8, dl=g.P(5) - 4)
        L = []
        for j in range(J): L += g.splitP(j, EP + 8 * (j % 2)) + g.epi(3, j, EP + 8 * (j % 2))
        F += g.fill(L, g.P(7) + 8, g.P(8, o.e3), dl=g.P(9) - 4)
        F += g.fill(g.useS1(), g.P(8, o.e3), g.P(8, 7, 2), dl=g.P(9) - 4)
        L = []
        for j in range(J): L += g.useS2(j)
        for j in range(J): L += g.epi(2, j, inp(3, j))
        n9 = o.n9
        for j in range(n9): L += g.epi(1, j, inp(1, j))
        F += g.fill(L, g.P(9) + 8, g.P(10), dl=g.P(10, 1))
        for i in L[:56 * 3]: i.dl = g.P(10) - 4
        L = []
        for j in range(n9, J): L += g.epi(1, j, inp(1, j))
        for j in range(J): L += g.epi(0, j, inp(2, j))
        F += g.fill(L, g.P(10) + 2, g.idx[(SG, 1)] + 3, dl=len(M))
        tail = []
        for j in range(J):
            L = g.epi(4, j, inp(0, j))
            if j < J - 1: F += g.spread(L, g.idx[(SG, j + 1)] + 3, g.idx[(SG, j + 2)] + 3 if j < J - 2 else len(M) - 2)
            else: tail += L
        sys.stderr.write(f"levels {g.levels}\n")
        sk = o.skip
        F = [i for i in F if i.k not in sk]
        tr = {o.trace + n * o.tstep: n for n in range(49)} if o.trace >= 0 else {}
        trs = lambda n: g.sst(n // 4) + n % 4
        for n, i in enumerate(F): i.seq = n
        F.sort(key=lambda i: (i.pos, i.seq))
        VM = ('vload', 'dma', 'vstore')
        def indep(x, skipped):
            xr, xw = set(x.rd), set(x.wr)
            for y in skipped:
                if y.k == 'lgkm0' or y.t == 's_barrier' or x.k == 'lgkm0' or x.t == 's_barrier': return False
                if xr & set(y.wr) or xw & set(y.rd) or xw & set(y.wr): return False
            return True
        gaps = []; Q = list(F); late = 0
        for mi, m in enumerate(M):
            gap = []
            if mi in tr and tr[mi] < 48: gap.append(I(f"s_memtime s[{96+2*(tr[mi]%2)}:{97+2*(tr[mi]%2)}]", 'salu'))
            if mi - 1 in tr and tr[mi - 1] > 0: gap.append(I(f"s_mov_b32 s{trs(tr[mi-1]-1)}, s{96+2*((tr[mi-1]-1)%2)}", 'salu'))
            nready = 0; backlog = 0; force = 0
            while nready < len(Q) and Q[nready].pos < mi + 1:
                backlog += Q[nready].c
                if Q[nready].dl is not None and Q[nready].dl <= mi + 1: force = nready + 1
                nready += 1
            lim = 16 + (4 if backlog > o.backlog else 0) + (4 if backlog > 3 * o.backlog else 0)
            W = min(nready, o.look); taken = set()
            def pick(pred):
                sk = []
                for k in range(W):
                    if k in taken: continue
                    if pred(Q[k]) and indep(Q[k], sk): return k
                    sk.append(Q[k])
            while True:
                k = pick(lambda x: x.k in ('salu', 'lgkm0'))
                if k is None or (gap and Q[k].k == 'salu' and Q[k].t not in ('s_barrier', 's_nop 0') and not Q[k].t.startswith('s_mem')): break
                gap.append(Q[k]); taken.add(k)
            vok = mi - g.lastv >= o.gsep
            k = pick(lambda x: x.k == 'dsr' or (vok and x.k in VM and not (x.k == 'dma' and gap)))
            if gap and (backlog >= 4 or (k is not None and gapcost(gap + [Q[k]]) > 16)): k = None
            if k is not None:
                gap.append(Q[k]); taken.add(k)
                if Q[k].k in VM: g.lastv = mi
            while True:
                k = pick(lambda x: x.k in ('valu', 'trans'))
                if k is None or gapcost(gap + [Q[k]]) > lim: break
                gap.append(Q[k]); taken.add(k)
            for k in range(force):
                if k not in taken: gap.append(Q[k]); taken.add(k); late += 1
            Q = [x for k, x in enumerate(Q) if k not in taken] if taken else Q
            gaps.append(gap)
        sys.stderr.write(f"mfma {len(M)} fillers {len(F)} forced {late} leftover {len(Q)}\n")
        return pre, M, gaps, Q + tail
    def finalize(g, parts):
        o = g.o; pre, M, gaps, tail = parts
        segs = [list(pre)] + [list(x) for x in gaps]; segs[-1] += tail
        def linear():
            for k, sg in enumerate(segs):
                if k: yield M[k - 1]
                for i in sg: yield i
        if not o.skip:
            tags = {('m', 'free', 0): 0}
            for i in linear():
                for r, t in i.need: assert tags.get(r) == t, (i.t, r, t, tags.get(r))
                if i.tag: tags[i.tag[0]] = i.tag[1]
            val = {}; used = 0
            for i in linear():
                if not i.sym:
                    for r in i.wr: val.pop(r, None)
                elif i.sym[0] == 'mfma':
                    for n, r in enumerate(i.wr):
                        c = dict(val[i.creads[n]]) if i.creads else {}
                        c[i.sym[1] + (n,)] = c.get(i.sym[1] + (n,), 0) + 1; val[r] = c
                elif i.sym[0] == 'lin':
                    c = {}
                    for r, cf in i.sym[2]:
                        for kk, vv in val[r].items(): c[kk] = c.get(kk, 0) + cf * vv
                    val[i.sym[1]] = c
                else:
                    q, j, h = i.sym[2]; got = {kk: vv for kk, vv in val[i.sym[1]].items() if abs(vv) > 1e-9}
                    want = {(pt, kp, k, j, h, i.sym[1][1] % 4): AT[q, ix[pt]] for pt in NAMES for kp in range(8) for k in range(NT) if abs(AT[q, ix[pt]]) > 1e-9}
                    assert got.keys() == want.keys() and all(abs(got[x] - want[x]) < 1e-9 for x in want), (i.t, q, j, h); used += 1
                    for r in i.wr: val.pop(r, None)
            assert used == 280
        vm = []; lg = []; nw = 0; floor = 0; head = {}
        def handle(i, k, lst):
            nonlocal vm, lg, nw
            regs = set(i.rd) | set(i.wr)
            for name, q, T, Tmin, mx in (('vmcnt', vm, o.tvm, o.hvm, 63), ('lgkmcnt', lg, o.tlg, o.hlg, 15)):
                last = -1
                for n, (dst, sg) in enumerate(q):
                    if dst & regs: last = n
                if last < 0: continue
                if q[last][1] >= k or k == len(segs) - 1 or k < floor:
                    while len(q) - 1 - last > mx: last += 1
                    lst.append(I(f"s_waitcnt {name}({len(q)-1-last})", 'salu')); nw += 1
                else:
                    best = k
                    for c in range(k, max(floor - 1, k - 12, q[last][1] + Tmin - 1), -1):
                        cur = lst + rest if c == k else segs[c]
                        if c in head or gapcost([I('', 'salu')] + cur) == gapcost(cur): best = c; break
                    while last + 1 < len(q) and best - q[last + 1][1] >= T: last += 1
                    n = sum(1 for e in q[last + 1:] if e[1] < best)
                    while n > mx: last += 1; n -= 1
                    h = head.setdefault(best, {}); h[name] = min(n, h.get(name, 99))
                if name == 'vmcnt': vm = q[last + 1:]
                else: lg = q[last + 1:]
        for k in range(len(segs)):
            lst = []
            for n, i in enumerate(segs[k]):
                rest = segs[k][n:]; handle(i, k, lst); lst.append(i)
                if i.k == 'lgkm0': lg = []; floor = k + 1
                if i.k == 'vload': vm.append((set(i.wr), k))
                if i.k == 'dma': vm.append(({('m', 'dma')}, k))
                if i.k == 'vstore': vm.append((set(), k))
                if i.k == 'dsr': lg.append((set(i.wr), k))
            rest = []
            if k < len(M): handle(M[k], k, lst)
            segs[k] = lst
        for k, h in head.items(): segs[k].insert(0, I("s_waitcnt " + " ".join(f"{a}({b})" for a, b in h.items()), 'salu')); nw += 1
        st = [sum(gapcost(segs[k + 1]) for k in range(g.P(s), g.P(s + 1)) if k + 1 < len(segs) - 1) for s in range(NS_)]
        sys.stderr.write(f"model cycles {st} sum {sum(st)} tail {gapcost(segs[-1])}\n")
        res = []; nn = 0; isv = lambda k: k in ('valu', 'trans')
        for i in linear():
            req = 0; dist = 0
            for p in reversed(res[-12:]):
                w = 0; pw, prd = set(p.wr), set(p.rd)
                if isv(p.k) and i.k == 'mfma' and pw & set(i.rd): w = 2
                if p.k == 'mfma':
                    if i.k != 'mfma' and pw & (set(i.rd) | set(i.wr)): w = 8
                    if isv(i.k) and set(p.creads) & set(i.wr): w = max(w, 3)
                if p.k == 'trans' and pw & set(i.rd): w = max(w, 1)
                if p.k == 'vstore' and isv(i.k) and prd & set(i.wr): w = max(w, 2)
                if ('s', 'm0') in pw and i.k == 'dma': w = max(w, 1)
                req = max(req, w - dist)
                dist += (int(p.t.split()[1]) + 1) if p.t.startswith('s_nop') else 1
            if req > 0: res.append(I(f"s_nop {req-1}", 'salu')); nn += 1
            res.append(i)
        sys.stderr.write(f"waits {nw} nops {nn} total {len(res)}\n")
        return res
    def main_kernel(g):
        E = g.out.append; o = g.o
        E(f".globl {KN}\n.p2align 8\n.type {KN},@function\n{KN}:")
        E(f"s_cmp_ge_u32 s2, {NWG}\ns_cbranch_scc1 L_end")
        if o.stamps: E("s_memtime s[40:41]\ns_memrealtime s[42:43]")
        E("s_load_dwordx2 s[6:7], s[0:1], 16\ns_load_dwordx2 s[26:27], s[0:1], 32")
        E("s_and_b32 s31, s2, 7\ns_lshr_b32 s33, s2, 3\ns_mul_i32 s30, s31, 29\ns_add_u32 s30, s30, s33\ns_and_b32 s32, s30, 3\ns_lshr_b32 s30, s30, 2")
        E("s_cmp_ge_u32 s30, 29\ns_cselect_b32 s33, 1, 0\ns_mul_i32 s34, s33, 29\ns_sub_u32 s34, s30, s34")
        E("v_and_b32 v20, 63, v0\nv_lshrrev_b32 v21, 6, v0\nv_mul_u32_u24 v22, 15360, v21\nv_lshl_add_u32 v22, v20, 4, v22")
        E(f"v_readfirstlane_b32 s{SWB}, v21\ns_mul_i32 s35, s34, {56*1024}\nv_add_u32 v{DA}, s35, v22\nv_add_u32 v{DA+1}, 4096, v{DA}\nv_add_u32 v{DA+2}, 8192, v{DA}\nv_add_u32 v{DA+3}, 12288, v{DA}")
        E(f"s_mul_i32 s{SWB}, s{SWB}, {15*SV}\ns_lshl_b32 s36, s32, 2\nv_add_u32 v22, s36, v21\nv_mul_u32_u24 v22, {STREAM}, v22\nv_lshl_add_u32 v{WL}, v20, 4, v22")
        E(f"v_lshl_add_u32 v{PFA}, v20, 2, v21\nv_lshlrev_b32 v{PFA}, 7, v{PFA}")
        E(f"s_mul_i32 s35, s33, {TPB}\ns_add_u32 s35, s35, {T0}\ns_mov_b32 s{ST+2}, {TPB}\ns_mov_b32 s{ST+3}, 0x20000")
        E("s_getpc_b64 s[28:29]\nL_pc:\ns_mov_b32 s30, L_h2-L_pc+128\ns_mov_b32 s31, 0x20000\ns_waitcnt lgkmcnt(0)")
        E(f"s_add_u32 s{ST}, s26, s35\ns_addc_u32 s{ST+1}, s27, 0\ns_add_u32 s{SWO}, s26, 4096\ns_addc_u32 s{SWO+1}, s27, 0")
        T = []
        T.append(f"v_bfe_u32 v22, v0, 1, 3\nv_and_b32 v23, 1, v0\nv_mul_u32_u24 v24, {7*SV}, v22\nv_lshl_add_u32 v24, v23, 9, v24\nv_bfe_u32 v25, v0, 4, 1\nv_lshl_add_u32 v24, v25, 8, v24\nv_bfe_u32 v25, v0, 5, 1\nv_xor_b32 v25, v25, v23\nv_lshl_add_u32 v{RB}, v25, 4, v24\nv_add_u32 v{RB+1}, {BUF}, v{RB}")
        T.append(f"v_mul_u32_u24 v24, {70*512}, v22\nv_lshl_add_u32 v24, v23, 9, v24\nv_lshl_add_u32 v24, v21, 5, v24\nv_lshrrev_b32 v25, 4, v20\nv_lshl_add_u32 v24, v25, 3, v24\ns_mul_i32 s35, s34, {560*512}\ns_lshl_b32 s36, s32, 7\ns_add_u32 s35, s35, s36\nv_add_u32 v{SB}, s35, v24")
        T.append(f"s_mul_i32 s35, s33, 8192000\ns_add_u32 s{SO}, s6, s35\ns_addc_u32 s{SO+1}, s7, 0\ns_mov_b32 s{SO+2}, 8192000\ns_mov_b32 s{SO+3}, 0x20000\ns_mov_b32 s{SCL}, {hx(32.0)}")
        for k, c in enumerate([CA[1], CB[1], CA[2], CB[2], CA[3], CB[3], CA[4], CB[4]]): T.append(f"s_mov_b32 s{SK+k}, {hx(c)}")
        g.late = "\n".join(T)
        for i in g.finalize(g.body()): E(i.t)
        if o.stamps:
            if o.trace < 0: E(f"s_waitcnt vmcnt(0)\ns_memtime s[{g.sst(11)}:{g.sst(11)+1}]\ns_memrealtime s[{g.sst(11)+2}:{g.sst(11)+3}]\ns_waitcnt lgkmcnt(0)")
            E(f"s_mov_b32 s12, s26\ns_mov_b32 s13, s27\ns_mov_b32 s14, 0x10000000\ns_mov_b32 s15, 0x20000\nv_cmp_eq_u32 vcc, 0, v{PFA}\ns_and_saveexec_b64 s[4:5], vcc\ns_cbranch_execz L_end")
            E(f"s_mul_i32 s36, s2, 192\ns_add_u32 s36, s36, {200<<20}")
            for k in range(12):
                for j in range(4): E(f"v_mov_b32 v{24+j}, s{g.sst(k)+j}")
                E(f"buffer_store_dwordx4 v[24:27], v{PFA}, s[12:15], s36 offen offset:{16*k}\ns_nop 1")
        E("L_end:\ns_endpgm")
    def prep_kernel(g):
        E = g.out.append; o = g.o
        ps = lambda n: E(f"s_memtime s[{60+4*n}:{61+4*n}]\ns_memrealtime s[{62+4*n}:{63+4*n}]") if o.pstamps else None
        E(f".globl {PN}\n.p2align 8\n.type {PN},@function\n{PN}:")
        E(f"s_cmp_ge_u32 s2, {NWP+NTP}\ns_cbranch_scc1 LP_end2")
        ps(0)
        E("s_load_dwordx4 s[16:19], s[0:1], 0\ns_load_dwordx2 s[6:7], s[0:1], 32\ns_mov_b32 s33, 0xffff0000\nv_lshrrev_b32 v4, 6, v0\nv_and_b32 v5, 63, v0")
        E(f"s_mov_b32 s11, 0x20000\ns_mov_b32 s15, 0x20000\nv_readfirstlane_b32 s26, v4\ns_cmp_ge_u32 s2, {NWP}\ns_cbranch_scc1 LP_T")
        E("s_and_b32 s20, s2, 1\ns_bfe_u32 s21, s2, 0x50001\ns_lshr_b32 s22, s2, 6")
        E("v_lshlrev_b32 v1, 11, v4\nv_bfe_u32 v2, v0, 5, 1\nv_lshl_add_u32 v1, v2, 10, v1\nv_and_b32 v3, 31, v0\nv_lshl_add_u32 v1, v3, 4, v1")
        E(f"s_lshl_b32 s23, s20, 9\ns_lshl_b32 s24, s21, 13\ns_add_u32 s23, s23, s24\ns_mul_i32 s25, s22, {5*262144}\ns_add_u32 s23, s23, s25\ns_mul_i32 s26, s26, 1088\ns_mov_b32 s10, 3932160\ns_mov_b32 m0, s26")
        E("s_waitcnt lgkmcnt(0)\ns_mov_b32 s8, s18\ns_mov_b32 s9, s19")
        for r in range(5):
            E(f"buffer_load_dwordx4 v1, s[8:11], s23 offen{o.rwflags} lds")
            if r < 4: E("s_add_u32 m0, m0, 4352\ns_add_u32 s23, s23, 262144")
        E(f"s_mov_b32 s12, s6\ns_mov_b32 s13, s7\ns_mov_b32 s14, {16*STREAM}")
        E(f"v_lshrrev_b32 v3, 4, v0\nv_mul_u32_u24 v3, {STREAM}, v3\nv_and_b32 v4, 15, v0\nv_lshl_add_u32 v3, v4, 4, v3")
        E("s_bfe_u32 s28, s21, 0x30001\ns_and_b32 s29, s21, 1\ns_lshl_b32 s29, s29, 1\ns_lshr_b32 s30, s21, 4\ns_add_u32 s29, s29, s30\ns_lshl_b32 s29, s29, 8")
        E("s_mul_i32 s28, s28, 6\ns_mul_i32 s30, s20, 3\ns_add_u32 s28, s28, s30\ns_add_u32 s28, s28, s22\ns_lshl_b32 s28, s28, 10\ns_add_u32 s28, s28, s29")
        E("v_bfe_u32 v1, v0, 3, 1\nv_mul_u32_u24 v1, 1088, v1\nv_bfe_u32 v2, v0, 2, 1\nv_lshlrev_b32 v2, 9, v2\nv_lshrrev_b32 v4, 4, v0\nv_lshlrev_b32 v4, 5, v4\nv_add3_u32 v1, v1, v2, v4\nv_and_b32 v2, 3, v0\nv_lshl_add_u32 v1, v2, 3, v1")
        E(f"s_mov_b32 s37, {hx(2*LOG2E)}\ns_cmp_eq_u32 s20, 0\ns_cselect_b32 s37, s37, {hx(-LOG2E)}\ns_waitcnt vmcnt(0)\ns_barrier")
        for r in range(5):
            for hf in range(2): E(f"ds_read_b64_tr_b16 v[{48+4*r+2*hf}:{49+4*r+2*hf}], v1 offset:{r*4352+hf*2176}")
        for r in range(5):
            E(f"s_waitcnt lgkmcnt({8-2*r})")
            for i in range(4): E(f"v_lshlrev_b32 v{8+8*r+2*i}, 16, v{48+4*r+i}\nv_and_b32 v{9+8*r+2*i}, s33, v{48+4*r+i}")
            for i in range(8): E(f"v_mul_f32 v{8+8*r+i}, s37, v{8+8*r+i}")
        for p in range(11):
            d = 68 + 8 * (p % 2); ob = 84 + 4 * (p % 8); nz = [r for r in range(5) if GM[p, r]]
            for n, r in enumerate(nz):
                for i in range(8): E(f"v_mul_f32 v{d+i}, {hx(GM[p,r])}, v{8+8*r+i}" if n == 0 else f"v_fmac_f32 v{d+i}, {hx(GM[p,r])}, v{8+8*r+i}")
            for i in range(4): E(f"v_cvt_pk_bf16_f32 v{ob+i}, v{d+2*i}, v{d+2*i+1}")
            E(f"buffer_store_dwordx4 v[{ob}:{ob+3}], v3, s[12:15], s28 offen{o.pflags}\ns_add_u32 s28, s28, {48*1024}")
        E("s_branch LP_end")
        E(f"LP_T:\ns_sub_u32 s20, s2, {NWP}\ns_lshl_b32 s20, s20, 2\ns_add_u32 s20, s20, s26\ns_cmp_ge_u32 s20, {NV}\ns_cselect_b32 s21, 1, 0\ns_mul_i32 s22, s21, {NV}\ns_sub_u32 s22, s20, s22")
        E("s_mul_i32 s23, s22, 5120\ns_sub_u32 s23, s23, 14336\nv_lshlrev_b32 v1, 4, v5\nv_add_u32 v1, s23, v1\ns_mul_i32 s24, s21, 8192000\ns_mov_b32 s10, 8192000")
        E("s_waitcnt lgkmcnt(0)\ns_add_u32 s8, s16, s24\ns_addc_u32 s9, s17, 0")
        for c in range(9):
            if c: E(f"v_add_u32 v{1+c%2}, 1024, v{1+(c+1)%2}")
            E(f"buffer_load_dwordx4 v[{8+4*c}:{11+4*c}], v{1+c%2}, s[8:11], 0 offen{o.xflags}")
        E(f"s_add_u32 s12, s6, {T0}\ns_addc_u32 s13, s7, 0\ns_mov_b32 s14, {22*TPB}\ns_lshl_b32 s28, s20, 10\nv_lshrrev_b32 v3, 5, v5\nv_xor_b32 v3, v3, v5\nv_lshlrev_b32 v3, 4, v3")
        E(f"s_mov_b32 s40, {hx(SIG)}\ns_mov_b32 s41, s40\ns_mov_b32 s42, {hx(-BB)}\ns_mov_b32 s43, s42\ns_mov_b32 s44, {hx(-AA)}\ns_mov_b32 s45, s44\ns_mov_b32 s46, {hx(-2.0)}\ns_mov_b32 s47, s46")
        X = lambda c: 44 + 2 * c; Z = lambda k: 60 + 2 * k; S = lambda k: 72 + 2 * k
        X = lambda c: 44 + 2 * c
        Z = lambda k: 60 + 2 * k
        S = lambda k: 72 + 2 * k
        T1, T2 = 80, 82; OB = 84
        p2 = lambda r: f"v[{r}:{r+1}]"
        padd = lambda d, a, b: E(f"v_pk_add_f32 {p2(d)}, {p2(a)}, {p2(b)}")
        psub = lambda d, a, b: E(f"v_pk_add_f32 {p2(d)}, {p2(a)}, {p2(b)} neg_lo:[0,1] neg_hi:[0,1]")
        pfma = lambda d, s, a, c: E(f"v_pk_fma_f32 {p2(d)}, {p2(a)}, s[{s}:{s+1}], {p2(c)}")
        for d in range(4):
            def out(n, r):
                E(f"v_cvt_pk_bf16_f32 v{OB+4*ix[n]+d}, v{r}, v{r+1}")
                if d == 3: E(f"s_add_u32 s29, s28, {2*TPB*ix[n]}\nbuffer_store_dwordx4 v[{OB+4*ix[n]}:{OB+4*ix[n]+3}], v3, s[12:15], s29 offen{o.qflags}")
            for c in range(9):
                if d == 0: E(f"s_waitcnt vmcnt({8-c})")
                E(f"v_lshlrev_b32 v{X(c)}, 16, v{8+4*c+d}\nv_and_b32 v{X(c)+1}, s33, v{8+4*c+d}")
            if d == 0: ps(1)
            psub(S(0), X(1), X(0)); psub(T1, X(3), X(2)); psub(T2, X(5), X(4)); padd(S(0), S(0), T1); padd(S(0), S(0), T2)
            for k in range(3): psub(T1, X(k + 6), X(k)); psub(S(k + 1), T1, S(k))
            for k in range(1, 6): padd(Z(k), X(k), X(k + 2))
            for k in range(1, 6): pfma(Z(k), 40, X(k + 1), Z(k))
            pfma(T1, 42, S(1), S(2)); pfma(T2, 44, S(1), S(2)); out('A', T1); out('B', T2)
            padd(S(0), S(0), S(2)); padd(S(3), S(3), S(1)); pfma(S(0), 40, S(1), S(0)); pfma(S(3), 40, S(2), S(3))
            a2, b2, a1, b1 = X(0), X(1), X(2), X(3)
            psub(a2, Z(4), Z(1)); psub(b2, Z(5), Z(2)); psub(a1, Z(3), Z(2)); psub(b1, Z(4), Z(3)); pfma(a1, 46, a1, a2); pfma(b1, 46, b1, b2)
            padd(T1, a1, b1); psub(T2, a2, b2); padd(Z(1), Z(1), Z(3)); out('C1', T1); out('C2', T2); padd(Z(1), Z(1), Z(5))
            out('U', Z(1)); out('P1', a1); out('P2', a2); out('S1', b1); out('S2', b2); out('Z', S(0)); out('I', S(3))
        E("LP_end:")
        if o.pstamps:
            ps(2); ps(3); E("s_waitcnt vmcnt(0)"); ps(4)
            E(f"s_waitcnt lgkmcnt(0)\ns_mov_b32 s12, s6\ns_mov_b32 s13, s7\ns_mov_b32 s14, 0x10000000\ns_mul_i32 s31, s2, 80\ns_add_u32 s31, s31, {210<<20}\nv_cmp_eq_u32 vcc, 0, v0\ns_and_saveexec_b64 s[50:51], vcc\ns_cbranch_execz LP_end2\nv_mov_b32 v3, 0")
            for k in range(5):
                for j in range(4): E(f"v_mov_b32 v{24+j}, s{60+4*k+j}")
                E(f"buffer_store_dwordx4 v[24:27], v3, s[12:15], s31 offen offset:{16*k}\ns_nop 1")
        E("LP_end2:\ns_endpgm")
    def emit(g):
        E = g.out.append
        E(f"; @launch kernel={PN} grid=({NWP+NTP},1,1) block=(256,1,1) lds=21760")
        E(f"; @launch kernel={KN} grid=({NWG},1,1) block=(256,1,1) lds={LDS_BYTES}")
        E('.amdgcn_target "amdgcn-amd-amdhsa--gfx950"\n.text')
        g.prep_kernel(); g.main_kernel()
        for n, nv, ao in ((PN, 128, 128), (KN, 512, 256)):
            E(f""".section .rodata,"a"
.p2align 6
.amdhsa_kernel {n}
  .amdhsa_next_free_vgpr {nv}
  .amdhsa_next_free_sgpr 100
  .amdhsa_accum_offset {ao}
  .amdhsa_group_segment_fixed_size 0
  .amdhsa_kernarg_size 40
  .amdhsa_user_sgpr_count 2
  .amdhsa_user_sgpr_kernarg_segment_ptr 1
  .amdhsa_system_sgpr_workgroup_id_x 1
  .amdhsa_float_denorm_mode_32 3
.end_amdhsa_kernel""")
        return "\n".join(x for x in g.out if x) + "\n"

if __name__ == '__main__':
    ap = argparse.ArgumentParser()
    ap.add_argument('-o', default='f5.s')
    for n in ('stamps', 'pstamps'): ap.add_argument('--' + n, action='store_true')
    for n, d in dict(backlog=10, look=16, tvm=110, hvm=60, tlg=10, hlg=8, gsep=3, nring=5, ns=3, wpre=3, wwin=30, dma0=30, dwin=180, e3=3, n9=2, trace=-1, tstep=6, wfirst=0).items(): ap.add_argument('--' + n, type=int, default=d)
    fl = dict(wflags='', sflags='nt', tflags='', rwflags='nt', pflags='', xflags='', qflags='')
    for n, d in fl.items(): ap.add_argument('--' + n, default=d)
    ap.add_argument('--skip', default='')
    o = ap.parse_args()
    for n in fl:
        if getattr(o, n): setattr(o, n, ' ' + getattr(o, n))
    o.skip = [x for x in o.skip.split(',') if x]
    open(o.o, 'w').write(Gen(o).emit())
```
